```python
import torch

def _softmax(x, axis=-1):
    return torch.softmax(x, dim=axis)
def _gelu(x):
    return torch.nn.functional.gelu(x, approximate="tanh")
def _silu(x):
    return torch.nn.functional.silu(x)
def _sigmoid(x):
    return torch.sigmoid(x)
def _layernorm(x, axis=-1, eps=1e-5):
    m = x.mean(dim=axis, keepdim=True)
    v = x.var(dim=axis, keepdim=True, unbiased=False)
    return (x - m) / torch.sqrt(v + eps)
def _scatter_add(tgt, idx, src, axis=0):
    return tgt.clone().index_add_(axis, idx, src)
def _segment_sum(src, seg, n):
    out = torch.zeros((n,) + src.shape[1:], dtype=src.dtype)
    return out.index_add_(0, seg, src)
def _pad(x, pw):
    flat = tuple(v for pair in reversed(pw) for v in pair)
    return torch.nn.functional.pad(x, flat)

kernel_name = 'sequential_preLN__ssm_conv_s4__dense_activation_squared_relu__prompt'

def setup_inputs():

    _w = (lambda a: (lambda t: t.to(torch.bfloat16) if t.is_floating_point() else t)(torch.as_tensor(a)))
    def _A_setup():
        B, L, D, N = 1, 2048, 512, 128
        A_re = -(lambda _x: torch.exp(torch.as_tensor(_x)))((lambda *s: torch.randn(*s, dtype=torch.bfloat16) * 3.2)(D, N))
        A_im = torch.pi * (lambda *s: torch.randn(*s, dtype=torch.bfloat16) * 0.05)(D, N)
        B_re = (lambda *s: torch.randn(*s, dtype=torch.bfloat16) * 0.1)(D, N)
        B_im = (lambda *s: torch.randn(*s, dtype=torch.bfloat16) * 0.1)(D, N)
        C_re = (lambda *s: torch.randn(*s, dtype=torch.bfloat16) * 0.1)(D, N)
        C_im = (lambda *s: torch.randn(*s, dtype=torch.bfloat16) * 0.1)(D, N)
        log_dt = (lambda *s: torch.randn(*s, dtype=torch.bfloat16) * 0.05)(D) * 0.5 - 4.0
        Dskip = (lambda *s: torch.randn(*s, dtype=torch.bfloat16) * 0.05)(D)
        return {
            "u": _w((lambda *s: torch.randn(*s, dtype=torch.bfloat16) * 0.05)(B, L, D)),
            "A_re": _w(A_re),
            "A_im": _w(A_im),
            "B_re": _w(B_re),
            "B_im": _w(B_im),
            "C_re": _w(C_re),
            "C_im": _w(C_im),
            "log_dt": _w(log_dt),
            "Dskip": _w(Dskip),
        }
    _A_in = _A_setup()

    def _B_setup():
        B, S, D, F = 1, 2048, 512, 1792
        return {
            "x": _w((lambda *s: torch.randn(*s, dtype=torch.bfloat16) * 0.05)(B, S, D)),
            "w1": _w((lambda *s: torch.randn(*s, dtype=torch.bfloat16) * 0.05)(D, F)),
            "b1": _w((lambda *s: torch.randn(*s, dtype=torch.bfloat16) * 0.2)(F)),
            "w2": _w((lambda *s: torch.randn(*s, dtype=torch.bfloat16) * 0.05)(F, D)),
            "b2": _w((lambda *s: torch.randn(*s, dtype=torch.bfloat16) * 1.6)(D)),
        }
    _B_in = _B_setup()

    return {
        "A_u": _A_in["u"],
        "A_A_re": _A_in["A_re"],
        "A_A_im": _A_in["A_im"],
        "A_B_re": _A_in["B_re"],
        "A_B_im": _A_in["B_im"],
        "A_C_re": _A_in["C_re"],
        "A_C_im": _A_in["C_im"],
        "A_log_dt": _A_in["log_dt"],
        "A_Dskip": _A_in["Dskip"],
        "B_x": _B_in["x"],
        "B_w1": _B_in["w1"],
        "B_b1": _B_in["b1"],
        "B_w2": _B_in["w2"],
        "B_b2": _B_in["b2"],
    }

def reference(A_u, A_A_re, A_A_im, A_B_re, A_B_im, A_C_re, A_C_im, A_log_dt, A_Dskip, B_x, B_w1, B_b1, B_w2, B_b2):
    def _A_ref(u, A_re, A_im, B_re, B_im, C_re, C_im, log_dt, Dskip):
        Bsz, L, D = u.shape
        dt = torch.exp(log_dt)[:, None]
        A = A_re + 1j * A_im
        Bc = B_re + 1j * B_im
        Cc = C_re + 1j * C_im
        logdA = dt * A
        dB = dt * Bc
        l = (lambda x, dt: x.to(dt))(torch.arange(L), A_re.dtype)
        P = torch.exp(logdA[:, :, None] * l[None, None, :])
        K = torch.einsum("dn,dnl,dn->dl", Cc, P, dB).real
        L2 = 2 * L
        Kp = _pad(K, ((0, 0), (0, L)))
        up = (lambda x, *d: x.permute(*d))(u, 0, 2, 1)
        up = _pad(up, ((0, 0), (0, 0), (0, L)))
        Kf = (lambda x, axes=(-2,-1): torch.fft.rfft2(x.float(), dim=axes))(Kp[:, None, :], axes=(-2, -1))
        Uf = (lambda x, axes=(-2,-1): torch.fft.rfft2(x.float(), dim=axes))(up[:, :, None, :], axes=(-2, -1))
        Yf = Uf * Kf[None, :, :, :]
        y = (lambda x, s, axes=(-2,-1): torch.fft.irfft2(x, s=s, dim=axes).to(torch.bfloat16))(Yf, (1, L2), axes=(-2, -1))[:, :, 0, :L]
        y = (lambda x, *d: x.permute(*d))(y, 0, 2, 1) + u * Dskip[None, None, :]
        return y

    def _B_ref(x, w1, b1, w2, b2):
        h = torch.einsum("bsd,df->bsf", x, w1) + b1
        zero = torch.zeros_like(h)
        r = torch.where(h > zero, h, zero)
        h = r * r
        out = torch.einsum("bsf,fd->bsd", h, w2) + b2
        return out

    x = A_u
    h = x + _A_ref(_layernorm(x, axis=-1), A_A_re, A_A_im, A_B_re, A_B_im, A_C_re, A_C_im, A_log_dt, A_Dskip)
    h2 = h + _B_ref(_layernorm(h, axis=-1), B_w1, B_b1, B_w2, B_b2)
    return h2
```

```python
import re
TRANS = ("v_exp_f32", "v_log_f32", "v_rcp_f32", "v_rsq_f32", "v_sqrt_f32", "v_sin_f32", "v_cos_f32", "v_rcp_iflag_f32")
REG_RE = re.compile(r"\b([vas])(\d+)\b|\b([vas])\[(\d+):(\d+)\]|\b(vcc|exec|m0|scc)\b")
def regs_of(txt):
    out = set()
    for m in REG_RE.finditer(txt):
        if m.group(1): out.add(m.group(1) + m.group(2))
        elif m.group(3):
            for k in range(int(m.group(4)), int(m.group(5)) + 1): out.add(m.group(3) + str(k))
        else: out.add(m.group(6))
    return out
def split_ops(s):
    ops, depth, cur = [], 0, ""
    for ch in s:
        if ch in "[(": depth += 1
        if ch in "])": depth -= 1
        if ch == "," and depth == 0:
            ops.append(cur.strip()); cur = ""
        else: cur += ch
    if cur.strip(): ops.append(cur.strip())
    return ops
def mfma_passes(op):
    if "4x4x4" in op: return 2
    if "16x16x32" in op or "16x16x16" in op: return 4
    if "32x32x16" in op or "32x32x8" in op: return 8
    raise ValueError(op)
class Ins:
    def __init__(self, text):
        self.text = text
        t = text.split(";")[0].strip()
        parts = t.split(None, 1)
        self.op = parts[0]
        rest = parts[1] if len(parts) > 1 else ""
        ops = split_ops(rest)
        self.ops = ops
        op = self.op
        self.w, self.r = set(), set()
        self.cls = "other"
        self.states = 1
        R = lambda k: regs_of(ops[k]) if k < len(ops) else set()
        allr = lambda a: set().union(*[regs_of(o) for o in ops[a:]]) if len(ops) > a else set()
        if op == "s_nop":
            self.states = int(ops[0], 0) + 1; self.cls = "nop"
        elif op.startswith("v_mfma"):
            self.cls = "mfma"; self.p = mfma_passes(op)
            self.w = R(0); self.A = R(1); self.B = R(2); self.C = R(3); self.r = self.A | self.B | self.C
        elif op.startswith("v_"):
            self.cls = "valu"
            if "permlane" in op and "swap" in op or op.startswith("v_swap"):
                self.w = R(0) | R(1); self.r = set(self.w)
            elif op.startswith(("v_add_co", "v_sub_co", "v_addc_co", "v_subb_co", "v_subrev_co")):
                self.w = R(0) | R(1); self.r = allr(2)
            else:
                self.w = R(0); self.r = allr(1)
                if op.startswith(("v_fmac", "v_dot2c", "v_pk_fmac", "v_writelane")) or "dpp" in text or "row_" in text or "quad_perm" in text:
                    self.r |= self.w
            self.dpp = ("row_" in text or "quad_perm" in text or "wave_" in text)
            self.trans = op.replace("_e32", "").replace("_e64", "") in TRANS
            self.dot = op.startswith("v_dot")
        elif op.startswith("ds_"):
            self.cls = "ds"
            if op.startswith(("ds_read", "ds_bpermute", "ds_permute", "ds_swizzle")): self.w = R(0); self.r = allr(1)
            else: self.r = allr(0)
        elif op.startswith(("buffer_", "global_")):
            self.cls = "vmem"
            self.lds = " lds" in (" " + t) and op.startswith("buffer_load") or "load_lds" in op
            if "load" in op and not self.lds: self.w = R(0); self.r = allr(1)
            else: self.r = allr(0)
            if self.lds: self.r.add("m0")
            self.wide_store = "store" in op and ("x3" in op or "x4" in op)
            if self.wide_store:
                self.data = R(0) if op.startswith("buffer") else R(1)
        elif op.startswith("s_"):
            self.cls = "salu"
            if op.startswith(("s_cmp", "s_waitcnt", "s_branch", "s_cbranch", "s_barrier", "s_setprio", "s_endpgm", "s_sleep", "s_bitcmp")):
                self.r = allr(0)
            else:
                self.w = R(0); self.r = allr(1)
                if "saveexec" in op: self.w.add("exec")
T2 = {2: 5, 4: 8, 8: 12, 16: 20}
T3 = {2: 4, 4: 6, 8: 10, 16: 18}
T4 = {2: 1, 4: 3, 8: 7, 16: 15}
def need(p, c):
    n = 0
    vw = lambda s: {x for x in s if x[0] in "va" and x not in ("vcc",)}
    sw = lambda s: {x for x in s if x[0] == "s" or x in ("vcc", "exec")}
    if p.cls == "valu":
        pv, ps = vw(p.w), sw(p.w)
        if c.cls == "mfma" and pv & c.r: n = max(n, 2)
        if c.cls == "valu":
            if p.trans and pv & c.r: n = max(n, 1)
            if ps & c.r: n = max(n, 4 if c.op.startswith(("v_readlane", "v_writelane")) else 2)
            if c.op.startswith(("v_readlane", "v_readfirstlane")) and pv & c.r: n = max(n, 1)
            if c.dpp and pv & c.r: n = max(n, 2)
            if "permlane" in c.op and pv & c.r: n = max(n, 2)
            if p.dot and pv & (c.r | c.w):
                same_c = c.op == p.op and not (pv & (regs_of(c.ops[1]) | regs_of(c.ops[2])))
                if not same_c: n = max(n, 3)
            if ("sdwa" in p.text or "op_sel" in p.text) and not p.op.startswith("v_pk") and pv & (c.r | c.w): n = max(n, 1)
        if p.dot and c.cls in ("ds", "vmem", "mfma") and pv & (c.r | c.w): n = max(n, 3)
        if p.trans and c.cls in ("ds", "vmem") and pv & c.r: n = max(n, 1)
        if c.cls == "vmem" and ps & c.r: n = max(n, 5)
    if p.cls == "mfma":
        if c.cls in ("valu", "ds", "vmem") and p.w & (c.r | c.w): n = max(n, T2[p.p])
        if c.cls == "mfma":
            if p.w & (c.A | c.B): n = max(n, T2[p.p])
            if p.w & c.C:
                if p.w == c.C and p.p == c.p: n = max(n, 2 if p.p == 2 else 0)
                else: n = max(n, T3[p.p])
            elif p.w & c.w: n = max(n, T3[p.p])
        if c.cls == "valu" and p.C & c.w: n = max(n, T4[p.p])
        if c.cls in ("ds", "vmem") and p.C & c.w: n = max(n, T4[p.p])
    if p.cls == "salu" and "m0" in p.w and c.cls == "vmem" and getattr(c, "lds", False): n = max(n, 1)
    if p.cls == "vmem" and getattr(p, "wide_store", False):
        if p.data & c.w: n = max(n, 2 if c.cls == "valu" else 1)
    return n
class Asm:
    def __init__(self):
        self.lines = []
        self.hist = []
        self.nlabel = 0
    def raw(self, s):
        self.lines.append(s)
    def label(self, name):
        self.lines.append(name + ":")
    def fence(self, n=0):
        if n: self.__call__("s_nop %d" % (n - 1))
    def reset(self):
        self.hist = []
    def __call__(self, text):
        for t in text.strip().split("\n"):
            t = t.strip()
            if not t or t.startswith(";"):
                if t: self.lines.append("    " + t)
                continue
            if t.endswith(":"):
                self.label(t[:-1]); continue
            ins = Ins(t)
            dist, req = 0, 0
            for p in reversed(self.hist):
                k = need(p, ins) - dist
                if k > req: req = k
                dist += p.states
                if dist > 24: break
            while req > 0:
                k = min(req, 16)
                nop = Ins("s_nop %d" % (k - 1))
                self.lines.append("    s_nop %d" % (k - 1)); self.hist.append(nop); req -= k
            self.lines.append("    " + t)
            self.hist.append(ins)
            if len(self.hist) > 64: self.hist = self.hist[-40:]
    def text(self):
        return "\n".join(self.lines) + "\n"
def vr(a, n=1): return "v%d" % a if n == 1 else "v[%d:%d]" % (a, a + n - 1)
def ar(a, n=1): return "a%d" % a if n == 1 else "a[%d:%d]" % (a, a + n - 1)
def sr(a, n=1): return "s%d" % a if n == 1 else "s[%d:%d]" % (a, a + n - 1)
import struct
def fhex(x): return "0x%08x" % struct.unpack("<I", struct.pack("<f", x))[0]
```

```python
import sys, math
from asmlib import *
NAME = "sequential_preLN__ssm_conv_s4__dense_activation_squared_relu__prompt"
RS = 4352
UT, XT, HT, KG = 0, 0x220000, 0x440000, 0x660000
W1P, W2P, CS, HF = 0xAA0000, 0xC60000, 0xE20000, 0xE30000
WS_USED = 0x1530000
TSB = 0x1600000
LOG2E = 1.4426950408889634
import numpy as np
LOG2E_HI = float(np.float32(LOG2E)); LOG2E_LO = LOG2E - LOG2E_HI
STAMP = False

def srd(a, s, base, nbytes):
    a(f"""
    s_mov_b32 s{s}, s{base}
    s_and_b32 s{s+1}, s{base+1}, 0xffff
    s_mov_b32 s{s+2}, {nbytes:#x}
    s_mov_b32 s{s+3}, 0x20000
    """)

def stamp_begin(a):
    if STAMP: a("s_memrealtime s[96:97]")
def stamp_end(a, k, wsrd):
    if not STAMP: return
    a(f"""
    s_waitcnt vmcnt(0) lgkmcnt(0)
    s_memrealtime s[100:101]
    s_waitcnt lgkmcnt(0)
    s_mov_b64 exec, 1
    v_mov_b32 v0, s96
    v_mov_b32 v1, s100
    v_mov_b32 v2, s99
    v_mov_b32 v3, s95
    s_lshl_b32 s98, s98, 7
    s_lshl_b32 s94, s94, 4
    s_add_u32 s98, s98, s94
    s_add_u32 s98, s98, {TSB + k * 0x20000:#x}
    v_mov_b32 v4, s98
    buffer_store_dwordx4 v[0:3], v4, s[{wsrd}:{wsrd+3}], 0 offen
    """)
def stamp_mid(a, reg):
    if STAMP:
        a(f"s_memrealtime s[100:101]\ns_waitcnt lgkmcnt(0)\ns_mov_b32 s{reg}, s100")

def cmul(a, d, x, y):
    a(f"v_pk_mul_f32 {vr(d,2)}, {vr(x,2)}, {vr(y,2)} op_sel_hi:[0,1]")
    a(f"v_pk_fma_f32 {vr(d,2)}, {vr(x,2)}, {vr(y,2)}, {vr(d,2)} op_sel:[1,1,0] op_sel_hi:[1,0,1] neg_lo:[1,0,0]")

def row_stats(a, vs, vq, vm, vri, t0):
    a(f"""
    v_mul_f32 v{vs}, {fhex(1/512)}, v{vs}
    v_mul_f32 v{vq}, {fhex(1/512)}, v{vq}
    v_fma_f32 v{vq}, -v{vs}, v{vs}, v{vq}
    v_max_f32 v{vq}, 0, v{vq}
    v_cvt_pk_bf16_f32 v{t0}, v{vs}, v{vq}
    v_lshlrev_b32 v{vm}, 16, v{t0}
    v_and_b32 v{t0}, 0xffff0000, v{t0}
    v_add_f32 v{t0}, {fhex(1e-5)}, v{t0}
    v_cvt_pk_bf16_f32 v{t0}, v{t0}, v{t0}
    v_and_b32 v{t0}, 0xffff0000, v{t0}
    v_sqrt_f32 v{t0}, v{t0}
    v_cvt_pk_bf16_f32 v{t0}, v{t0}, v{t0}
    v_and_b32 v{t0}, 0xffff0000, v{t0}
    v_rcp_f32 v{vri}, v{t0}
    """)

N_KG, N_LN, N_W1, N_W2 = 256, 128, 56, 56
K1_GRID = N_KG + N_LN + N_W1 + N_W2
PQ_PITCH = 544
P_BYTES = 22 * PQ_PITCH
CH_BYTES = P_BYTES + 32 * PQ_PITCH + 5632
T_OFF = P_BYTES + 32 * PQ_PITCH + 16
K1_LDS = 2 * CH_BYTES

def k1(a):
    a.reset()
    a.raw(".p2align 8\nk1_kernel:")
    stamp_begin(a)
    a(f"""
    s_cmp_ge_u32 s2, {K1_GRID}
    s_cbranch_scc1 K1_exit
    s_load_dwordx16 s[16:31], s[0:1], 0
    s_load_dwordx2 s[32:33], s[0:1], 80
    s_load_dwordx2 s[34:35], s[0:1], 96
    s_load_dwordx2 s[4:5], s[0:1], 128
    v_lshrrev_b32 v2, 6, v0
    v_and_b32 v1, 63, v0
    v_readfirstlane_b32 s3, v2
    s_mov_b32 s98, s2
    s_mov_b32 s94, s3
    s_mov_b32 s99, 0
    s_mov_b32 s95, 0
    s_cmp_ge_u32 s2, {N_KG}
    s_cbranch_scc1 K1_notkg
    """)
    a(f"""
    s_lshr_b32 s36, s3, 2               ; ch_local
    s_lshl_b32 s37, s2, 1
    s_add_u32 s37, s37, s36             ; d
    s_and_b32 s38, s3, 1                ; mh
    s_lshl_b32 s39, s37, 8
    s_lshl_b32 s40, s38, 7
    s_add_u32 s39, s39, s40
    v_lshl_add_u32 v3, v1, 1, s39
    s_lshl_b32 s40, s37, 1
    v_mov_b32 v4, s40
    s_waitcnt lgkmcnt(0)
    global_load_ushort v9, v4, s[30:31]
    global_load_ushort v10, v3, s[18:19]
    global_load_ushort v11, v3, s[20:21]
    global_load_ushort v12, v3, s[22:23]
    global_load_ushort v13, v3, s[24:25]
    global_load_ushort v14, v3, s[26:27]
    global_load_ushort v15, v3, s[28:29]
    """)
    srd(a, 8, 4, WS_USED if not STAMP else 0x2000000)
    a(f"""
    s_mul_i32 s41, s36, {CH_BYTES}
    s_lshl_b32 s42, s38, 8
    s_add_u32 s42, s42, s41
    v_lshl_add_u32 v5, v1, 2, s42
    s_and_b32 s43, s3, 3                ; q quadrant
    s_lshr_b32 s44, s43, 1              ; ib
    s_and_b32 s45, s43, 1               ; jb
    v_and_b32 v6, 15, v1                ; i / j
    v_lshrrev_b32 v7, 4, v1             ; h
    v_mul_u32_u24 v100, {PQ_PITCH}, v6
    v_lshl_add_u32 v100, v7, 4, v100
    s_mul_i32 s46, s44, {16*PQ_PITCH}
    s_add_u32 s46, s46, s41
    s_mul_i32 s47, s45, {16*PQ_PITCH}
    s_add_u32 s47, s47, s41
    s_add_u32 s47, s47, {P_BYTES}
    v_add_u32 v101, s47, v100           ; B (Q) addr
    v_add_u32 v100, s46, v100           ; A (P) addr
    s_lshl_b32 s48, s44, 2
    v_add_u32 v8, s48, v7
    v_mov_b32 v102, 1026
    v_mov_b32 v103, 256
    """)
    for hq, (base, step) in enumerate([(0, 1), (4, 1), (256, 2), (512, 256), (1536, 256), (516, 256)]):
        a(f"v_cmp_ne_u32 vcc, {hq}, v8")
        if base > 64:
            a(f"v_mov_b32 v2, {base}")
            a(f"v_cndmask_b32 v102, v2, v102, vcc")
        else:
            a(f"v_cndmask_b32 v102, {base}, v102, vcc")
        if step != 256: a(f"v_cndmask_b32 v103, {step}, v103, vcc")
    a(f"""
    s_lshl_b32 s48, s45, 7
    v_lshl_add_u32 v8, v6, 3, s48       ; 8*(16jb+j)
    v_add_u32 v102, v102, v8
    s_add_u32 s49, s41, {T_OFF}
    """)
    def skew(dst, src, tmp):
        a(f"""
        v_ashrrev_i32 v{tmp}, 6, v{src}
        v_lshl_add_u32 v{tmp}, v{tmp}, 2, s49
        v_lshl_add_u32 v{dst}, v{src}, 1, v{tmp}
        """)
    for r in range(4):
        skew(104 + r, 102, 8)
        if r < 3: a("v_add_u32 v102, v102, v103")
    a(f"""
    s_lshl_b32 s48, s43, 9
    s_sub_u32 s48, 2047, s48
    v_lshlrev_b32 v8, 3, v1
    v_sub_u32 v8, s48, v8
    v_cvt_f32_i32 v8, v8
    """)
    for e in range(0, 10, 2):
        a(f"v_add_f32 v102, {fhex(-float(e))}, v8")
        a(f"v_add_f32 v103, {fhex(-float(e+1))}, v8")
        a(f"v_cvt_pk_bf16_f32 v102, v102, v103")
        a(f"v_and_b32 v103, 0xffff0000, v102")
        a(f"v_lshlrev_b32 v102, 16, v102")
        a(f"v_cvt_i32_f32 v102, v102")
        skew(108 + e, 102, 2)
        if e + 1 <= 8:
            a(f"v_cvt_i32_f32 v103, v103")
            skew(108 + e + 1, 103, 2)
    a(f"""
    v_mov_b32 v120, 0
    v_mov_b32 v121, 0
    v_mov_b32 v122, 0
    v_mov_b32 v123, 0
    s_add_u32 s48, s49, -16
    v_mov_b32 v2, s48
    ds_write_b128 v2, v[120:123]
    s_mul_i32 s50, s37, {2*RS}
    s_add_u32 s50, s50, {KG:#x}         ; G0 row
    s_lshl_b32 s48, s43, 10
    s_add_u32 s48, s48, s50
    v_lshl_add_u32 v118, v1, 4, s48
    s_mul_i32 s51, s37, {RS}
    s_add_u32 s51, s51, {UT + 240}
    s_add_u32 s50, s50, 4096
    v_mul_u32_u24 v2, {RS}, v1
    v_add_u32 v2, s50, v2
    v_mov_b32 v8, s51
    v_cmp_eq_u32 vcc, 2, v1
    v_cndmask_b32 v2, v2, v8, vcc
    s_mov_b64 exec, 7
    buffer_store_dwordx4 v[120:123], v2, s[8:11], 0 offen
    s_mov_b64 exec, -1
    s_mov_b32 s52, {fhex(LOG2E_HI)}
    s_waitcnt vmcnt(5)
    v_lshlrev_b32 v9, 16, v9
    v_lshlrev_b32 v10, 16, v10
    v_lshlrev_b32 v11, 16, v11
    v_mul_f32 v16, s52, v9
    v_fma_f32 v17, v9, s52, -v16
    v_fmac_f32 v17, {fhex(LOG2E_LO)}, v9
    v_exp_f32 v16, v16
    v_mul_f32 v17, {fhex(math.log(2))}, v17
    v_fma_f32 v16, v16, v17, v16
    v_cvt_pk_bf16_f32 v16, v16, v16
    v_and_b32 v16, 0xffff0000, v16      ; dt
    v_mul_f32 v10, v16, v10
    v_mul_f32 v11, v16, v11
    v_mul_f32 v10, s52, v10             ; a2
    v_mul_f32 v11, 0.15915494, v11      ; b2
    """)
    def edirect(d, l):
        a(f"""
        v_mul_f32 v18, {fhex(float(l))}, v10
        v_mul_f32 v19, {fhex(float(l))}, v11
        v_exp_f32 v18, v18
        v_fract_f32 v19, v19
        v_cos_f32 v{d}, v19
        v_sin_f32 v{d+1}, v19
        v_pk_mul_f32 {vr(d,2)}, {vr(d,2)}, v[18:19] op_sel_hi:[1,0]
        """)
    cvt_t = [20, 21, 22, 23]
    cnt = [0]
    def put(src, row, isP):
        t = cvt_t[cnt[0] % 4]; cnt[0] += 1
        a(f"v_cvt_pk_bf16_f32 v{t}, v{src}, {'-' if isP else ''}v{src+1}")
        a(f"ds_write_b32 v5, v{t} offset:{row*PQ_PITCH + (0 if isP else P_BYTES)}")
    a(f"""
    s_bitcmp1_b32 s3, 1
    s_cbranch_scc1 K1_qpath
    """)
    E1, E256, E1024, E2, E4, E512 = 24, 26, 28, 30, 32, 34
    P = {k: 40 + 2 * k for k in range(8)}
    R = {256: 56, 260: 58, 512: 60, 768: 62, 1024: 64}
    TMP = [66, 68, 70, 72]
    edirect(E1, 1); edirect(E256, 256); edirect(E1024, 1024)
    a(f"""
    s_waitcnt vmcnt(1)
    v_lshlrev_b32 v12, 16, v12
    v_lshlrev_b32 v13, 16, v13
    v_lshlrev_b32 v14, 16, v14
    v_lshlrev_b32 v15, 16, v15
    v_mul_f32 v12, v16, v12
    v_mul_f32 v13, v16, v13
    """)
    cmul(a, E2, E1, E1); cmul(a, P[0], 14, 12); cmul(a, E512, E256, E256); cmul(a, E4, E2, E2)
    cmul(a, P[1], P[0], E1); put(P[0], 0, 1)
    cmul(a, P[2], P[0], E2); put(P[1], 1, 1)
    cmul(a, P[3], P[1], E2); put(P[2], 2, 1)
    cmul(a, P[4], P[0], E4); put(P[3], 3, 1)
    cmul(a, P[5], P[1], E4); put(P[4], 4, 1)
    cmul(a, P[6], P[2], E4); put(P[5], 5, 1)
    cmul(a, P[7], P[3], E4); put(P[6], 6, 1)
    cmul(a, R[256], P[0], E256); put(P[7], 7, 1)
    cmul(a, TMP[0], P[2], E256); put(R[256], 8, 1)
    cmul(a, R[260], P[4], E256); put(TMP[0], 9, 1)
    cmul(a, TMP[1], P[6], E256); put(R[260], 10, 1)
    cmul(a, R[512], P[0], E512); put(TMP[1], 11, 1)
    cmul(a, R[768], R[256], E512); put(R[512], 12, 1)
    cmul(a, R[1024], P[0], E1024); put(R[768], 13, 1)
    cmul(a, TMP[2], R[256], E1024); put(R[1024], 14, 1)
    cmul(a, TMP[3], R[512], E1024); put(TMP[2], 15, 1)
    cmul(a, TMP[0], R[768], E1024); put(TMP[3], 16, 1)
    cmul(a, TMP[1], R[1024], E1024); put(TMP[0], 17, 1)
    cmul(a, TMP[2], P[4], E512); put(TMP[1], 18, 1)
    cmul(a, TMP[3], R[260], E512); put(TMP[2], 20, 1)
    put(TMP[3], 21, 1)
    a("s_branch K1_pqdone")
    a.label("K1_qpath")
    Q = {j: 32 + 2 * j for j in range(1, 17)}
    edirect(Q[1], 8)
    a(f"v_mov_b32 v24, 0x00003f80")
    a(f"ds_write_b32 v5, v24 offset:{P_BYTES}")
    seq = []
    for j in range(2, 17):
        hb = 1 << (j.bit_length() - 1)
        if j == hb: seq.append((j, j // 2, j // 2))
        else: seq.append((j, hb, j - hb))
    prev = 1
    for (j, x, y) in seq:
        cmul(a, Q[j], Q[x], Q[y]); put(Q[prev], prev, 0); prev = j
    prevreg, prevrow = Q[16], 16
    for j in range(17, 32):
        t = TMP[j % 4]
        cmul(a, t, Q[16], Q[j - 16]); put(prevreg, prevrow, 0); prevreg, prevrow = t, j
    put(prevreg, prevrow, 0)
    a.label("K1_pqdone")
    a("s_waitcnt lgkmcnt(0)\ns_barrier")
    for s in range(8):
        a(f"ds_read_b128 {vr(24+8*s,4)}, v100 offset:{64*s}")
        a(f"ds_read_b128 {vr(28+8*s,4)}, v101 offset:{64*s}")
    for s in range(8):
        a(f"s_waitcnt lgkmcnt({14-2*s})")
        a(f"v_mfma_f32_16x16x32_bf16 v[20:23], {vr(24+8*s,4)}, {vr(28+8*s,4)}, {'0' if s==0 else 'v[20:23]'}")
    a(f"""
    v_cvt_pk_bf16_f32 v20, v20, v21
    v_cvt_pk_bf16_f32 v22, v22, v23
    ds_write_b16 v104, v20
    ds_write_b16_d16_hi v105, v20
    ds_write_b16 v106, v22
    ds_write_b16_d16_hi v107, v22
    s_waitcnt lgkmcnt(0)
    s_barrier
    """)
    for e in range(9):
        a(f"ds_read_u16 v{24+e}, v{108+e}")
    a("s_waitcnt lgkmcnt(0)")
    for k in range(4):
        a(f"v_lshl_or_b32 v{36+k}, v{24+2*k+1}, 16, v{24+2*k}")
        a(f"v_lshl_or_b32 v{40+k}, v{24+2*k+2}, 16, v{24+2*k+1}")
    a(f"""
    s_movk_i32 s48, {RS}
    buffer_store_dwordx4 v[40:43], v118, s[8:11], 0 offen
    buffer_store_dwordx4 v[36:39], v118, s[8:11], s48 offen
    s_branch K1_done
    """)
    a.label("K1_notkg")
    a(f"""
    s_cmp_ge_u32 s2, {N_KG + N_LN}
    s_cbranch_scc1 K1_prep
    s_sub_u32 s36, s2, {N_KG}
    s_and_b32 s37, s36, 7
    s_lshr_b32 s36, s36, 3
    s_and_b32 s38, s36, 1               ; hf
    s_lshr_b32 s36, s36, 1
    s_lshl_b32 s37, s37, 3
    s_add_u32 s36, s36, s37
    s_lshl_b32 s39, s36, 15
    ; S loads
    v_lshrrev_b32 v2, 4, v1
    v_and_b32 v3, 15, v1
    s_lshl_b32 s40, s3, 12
    s_add_u32 s40, s40, s39
    v_lshlrev_b32 v4, 10, v2
    v_lshl_add_u32 v4, v3, 4, v4
    v_add_u32 v4, s40, v4
    v_and_b32 v5, 3, v1
    v_lshrrev_b32 v6, 2, v1
    s_lshl_b32 s41, s38, 8
    s_lshl_b32 s42, s3, 5
    s_add_u32 s41, s41, s42
    s_lshl_b32 s42, s41, 1
    s_add_u32 s42, s42, s39
    v_lshlrev_b32 v7, 13, v5
    v_lshl_add_u32 v7, v6, 2, v7
    v_add_u32 v7, s42, v7
    v_add_u32 v8, 4096, v7
    s_waitcnt lgkmcnt(0)
    global_load_dwordx4 v[16:19], v4, s[16:17]
    global_load_dwordx4 v[20:23], v4, s[16:17] offset:256
    global_load_dwordx4 v[24:27], v4, s[16:17] offset:512
    global_load_dwordx4 v[28:31], v4, s[16:17] offset:768
    """)
    for e in range(8):
        a(f"global_load_dword v{32+e}, v{7 if e < 4 else 8}, s[16:17] offset:{(e%4)*1024}")
    srd(a, 8, 4, WS_USED if not STAMP else 0x2000000)
    a(f"""
    v_lshl_add_u32 v9, v6, 1, s41
    v_mul_u32_u24 v9, {RS}, v9
    v_lshl_add_u32 v9, v5, 4, v9
    s_lshl_b32 s43, s36, 6
    v_add_u32 v9, s43, v9
    s_lshl_b32 s44, s3, 5
    v_lshl_add_u32 v10, v2, 3, s44
    v_lshlrev_b32 v11, 6, v5
    v_mov_b32 v12, 0
    v_mov_b32 v13, 0
    v_mov_b32 v14, 0
    v_mov_b32 v15, 0
    s_mov_b32 s45, 0x3f803f80
    s_mov_b32 s46, 0x05040100
    s_mov_b32 s47, 0x07060302
    s_mov_b32 s48, {UT+256}
    s_mov_b32 s49, {UT+256+RS}
    s_mov_b32 s50, {XT}
    s_mov_b32 s51, {XT+RS}
    """)
    for k in range(4):
        a(f"s_waitcnt vmcnt({11-k})")
        for j in range(4):
            r = 16 + 4 * k + j
            a(f"v_dot2_f32_bf16 v{12+(j&1)}, v{r}, s45, v{12+(j&1)}")
            a(f"v_dot2_f32_bf16 v{14+(j&1)}, v{r}, v{r}, v{14+(j&1)}")
    a("v_add_f32 v12, v12, v13\nv_add_f32 v14, v14, v15")
    for sh in (8, 4, 2, 1):
        a(f"v_add_f32_dpp v12, v12, v12 row_ror:{sh} row_mask:0xf bank_mask:0xf")
        a(f"v_add_f32_dpp v14, v14, v14 row_ror:{sh} row_mask:0xf bank_mask:0xf")
    row_stats(a, 12, 14, 16, 17, 13)
    a(f"""
    ds_write_b64 v10, v[16:17]
    s_waitcnt vmcnt(0)
    """)
    for k in range(4):
        a(f"v_perm_b32 v{72+k}, v{32+2*k+1}, v{32+2*k}, s46")
        a(f"v_perm_b32 v{76+k}, v{32+2*k+1}, v{32+2*k}, s47")
    a(f"""
    buffer_store_dwordx4 v[72:75], v9, s[8:11], s50 offen
    buffer_store_dwordx4 v[76:79], v9, s[8:11], s51 offen
    """)
    for e in range(8):
        a(f"v_lshlrev_b32 v{40+e}, 16, v{32+e}")
        a(f"v_and_b32 v{48+e}, 0xffff0000, v{32+e}")
    a("s_waitcnt lgkmcnt(0)\ns_barrier")
    for k in range(4):
        a(f"ds_read_b128 {vr(16+4*k,4)}, v11 offset:{16*k}")
    for k in range(4):
        a(f"s_waitcnt lgkmcnt({3-k})")
        m0, r0, m1, r1 = 16 + 4 * k, 17 + 4 * k, 18 + 4 * k, 19 + 4 * k
        for c, base in enumerate((40, 48)):
            x0, x1 = base + 2 * k, base + 2 * k + 1
            o = 64 + 4 * c + k
            a(f"""
            v_sub_f32 v{x0}, v{x0}, v{m0}
            v_sub_f32 v{x1}, v{x1}, v{m1}
            v_cvt_pk_bf16_f32 v{x0}, v{x0}, v{x1}
            v_and_b32 v{x1}, 0xffff0000, v{x0}
            v_lshlrev_b32 v{x0}, 16, v{x0}
            v_mul_f32 v{x1}, v{x1}, v{r1}
            v_mul_f32 v{x0}, v{x0}, v{r0}
            v_cvt_pk_bf16_f32 v{o}, v{x0}, v{x1}
            """)
    a(f"""
    buffer_store_dwordx4 v[64:67], v9, s[8:11], s48 offen
    buffer_store_dwordx4 v[68:71], v9, s[8:11], s49 offen
    s_branch K1_done
    """)
    a.label("K1_prep")
    a(f"""
    v_and_b32 v2, 15, v1                ; p
    v_bfe_u32 v3, v1, 4, 1              ; h
    v_lshrrev_b32 v4, 5, v1             ; kk
    s_mov_b32 s46, 0x05040100
    s_mov_b32 s47, 0x07060302
    s_mov_b32 s45, 0x3f803f80
    v_lshlrev_b32 v6, 10, v4
    v_lshl_add_u32 v6, v3, 9, v6
    v_lshl_add_u32 v6, v2, 5, v6
    s_waitcnt lgkmcnt(0)
    """)
    srd(a, 8, 4, WS_USED if not STAMP else 0x2000000)
    a(f"""
    s_cmp_ge_u32 s2, {N_KG + N_LN + N_W1}
    s_cbranch_scc1 K1_w2
    s_sub_u32 s36, s2, {N_KG + N_LN}
    """)
    srd(a, 12, 32, 512 * 1792 * 2)
    a(f"""
    v_lshlrev_b32 v5, 1, v4
    v_add_u32 v5, v5, v3                ; 2kk+h
    v_mul_u32_u24 v5, {8*3584}, v5
    v_lshl_add_u32 v5, v2, 2, v5
    s_mul_i32 s37, s3, {64*3584}
    s_lshl_b32 s38, s36, 6
    s_add_u32 s37, s37, s38
    v_add_u32 v5, s37, v5
    v_add_u32 v7, {32*3584}, v5         ; pass1
    s_lshl_b32 s38, s36, 15
    s_lshl_b32 s39, s3, 12
    s_add_u32 s38, s38, s39
    s_add_u32 s38, s38, {W1P:#x}
    v_add_u32 v6, s38, v6
    """)
    for e in range(8): a(f"s_mov_b32 s{52+e}, {e*3584}")
    a("s_branch K1_prep_go")
    a.label("K1_w2")
    a(f"""
    s_sub_u32 s36, s2, {N_KG + N_LN + N_W1}
    """)
    srd(a, 12, 34, 512 * 1792 * 2)
    a(f"""
    s_lshl_b32 s37, s36, 3
    s_add_u32 s37, s37, s3              ; pair index 0..447 ; dblk = /28 ; jj = %28
    s_mul_i32 s38, s37, 2341
    s_lshr_b32 s38, s38, 16             ; /28
    s_mul_i32 s39, s38, 28
    s_sub_u32 s39, s37, s39
    v_lshlrev_b32 v5, 14, v4
    v_lshl_add_u32 v5, v3, 12, v5       ; h*4 rows
    v_lshl_add_u32 v5, v2, 2, v5
    s_lshl_b32 s40, s39, 16
    s_lshl_b32 s41, s38, 6
    s_add_u32 s40, s40, s41
    v_add_u32 v5, s40, v5
    v_add_u32 v7, {32*1024}, v5
    s_lshl_b32 s40, s37, 12
    s_add_u32 s40, s40, {W2P:#x}
    v_add_u32 v6, s40, v6
    """)
    for e in range(8): a(f"s_mov_b32 s{52+e}, {((e&3) + 8*(e>>2))*1024}")
    a.label("K1_prep_go")
    for ps in range(2):
        for e in range(8):
            a(f"buffer_load_dword v{16+8*ps+e}, v{5 if ps==0 else 7}, s[12:15], s{52+e} offen")
    a("v_mov_b32 v12, 0\nv_mov_b32 v13, 0")
    for ps in range(2):
        a(f"s_waitcnt vmcnt({8 if ps==0 else 2})")
        o = 32 + 8 * ps
        for k in range(4):
            a(f"v_perm_b32 v{o+k}, v{16+8*ps+2*k+1}, v{16+8*ps+2*k}, s46")
            a(f"v_perm_b32 v{o+4+k}, v{16+8*ps+2*k+1}, v{16+8*ps+2*k}, s47")
        a(f"buffer_store_dwordx4 {vr(o,4)}, v6, s[8:11], 0 offen offset:{2048*ps}")
        a(f"buffer_store_dwordx4 {vr(o+4,4)}, v6, s[8:11], 0 offen offset:{2048*ps+16}")
    a(f"""
    s_cmp_ge_u32 s2, {N_KG + N_LN + N_W1}
    s_cbranch_scc1 K1_done
    """)
    for ps in range(2):
        o = 32 + 8 * ps
        for k in range(4):
            a(f"v_dot2_f32_bf16 v12, v{o+k}, s45, v12")
            a(f"v_dot2_f32_bf16 v13, v{o+4+k}, s45, v13")
    a(f"""
    v_lshlrev_b32 v8, 3, v0
    ds_write_b64 v8, v[12:13]
    s_waitcnt lgkmcnt(0)
    s_barrier
    s_cmp_lg_u32 s3, 0
    s_cbranch_scc1 K1_done
    v_and_b32 v8, 31, v1
    v_lshlrev_b32 v8, 2, v8
    v_lshl_add_u32 v9, v4, 11, v8
    """)
    for k in range(16):
        a(f"ds_read_b32 v{16+k}, v9 offset:{128*k}")
    a("s_waitcnt lgkmcnt(0)")
    for st in (8, 4, 2, 1):
        for k in range(st): a(f"v_add_f32 v{16+k}, v{16+k}, v{16+k+st}")
    a(f"""
    v_mov_b32 v17, v16
    v_permlane32_swap_b32 v16, v17
    v_add_f32 v16, v16, v17
    s_lshl_b32 s37, s36, 7
    s_add_u32 s37, s37, {CS:#x}
    v_add_u32 v8, s37, v8
    buffer_store_dword v16, v8, s[8:11], 0 offen
    """)
    a.label("K1_done")
    stamp_end(a, 0, 8)
    a.label("K1_exit")
    a("s_endpgm")

def kd(name, vgpr, accum=None, sgpr=102):
    accum = accum or ((vgpr + 3) // 4 * 4)
    return f""".p2align 6
.amdhsa_kernel {name}
  .amdhsa_next_free_vgpr {vgpr}
  .amdhsa_next_free_sgpr {sgpr}
  .amdhsa_accum_offset {accum}
  .amdhsa_group_segment_fixed_size 0
  .amdhsa_kernarg_size 136
  .amdhsa_user_sgpr_count 2
  .amdhsa_user_sgpr_kernarg_segment_ptr 1
  .amdhsa_system_sgpr_workgroup_id_x 1
.end_amdhsa_kernel
"""

KC_STR = 4160
UC_STR = 4576
K2_CH = 4 * KC_STR + 2 * UC_STR + 64
K2_CH = (K2_CH + 255) // 256 * 256
K2_LDS = 2 * K2_CH
def k2(a):
    a.reset()
    a.raw(".p2align 8\nk2_kernel:")
    stamp_begin(a)
    a(f"""
    s_cmp_ge_u32 s2, 256
    s_cbranch_scc1 K2_exit
    s_load_dwordx2 s[4:5], s[0:1], 128
    s_load_dwordx2 s[6:7], s[0:1], 64
    v_lshrrev_b32 v2, 6, v0
    v_and_b32 v1, 63, v0
    v_readfirstlane_b32 s3, v2
    v_lshlrev_b32 v3, 4, v1             ; lane*16
    s_mov_b32 s98, s2
    s_mov_b32 s94, s3
    s_mov_b32 s99, 0
    s_mov_b32 s95, 0
    s_lshr_b32 s16, s3, 1               ; ch_local
    s_and_b32 s17, s3, 1                ; par
    s_lshl_b32 s18, s2, 1
    s_add_u32 s18, s18, s16             ; d
    s_mul_i32 s19, s16, {K2_CH}
    s_mul_i32 s20, s18, {2*RS}
    s_add_u32 s20, s20, {KG+4:#x}
    s_lshl_b32 s21, s17, 2
    s_sub_u32 s20, s20, s21
    s_add_u32 s21, s20, {RS}
    s_mul_i32 s22, s18, {RS}
    s_lshl_b32 s23, s17, 3
    s_add_u32 s23, s23, s22
    s_add_u32 s23, s23, {UT+256-8}
    s_mul_i32 s24, s17, {2*KC_STR}
    s_add_u32 s24, s24, s19
    s_add_u32 s25, s24, {KC_STR}
    s_mul_i32 s26, s17, {UC_STR}
    s_add_u32 s26, s26, s19
    s_add_u32 s26, s26, {4*KC_STR}
    s_add_u32 s27, s26, 448
    s_waitcnt lgkmcnt(0)
    """)
    srd(a, 8, 4, WS_USED if not STAMP else 0x2000000)
    for (dst, src) in ((27, 23), (24, 20), (25, 21)):
        a(f"s_mov_b32 m0, s{dst}")
        for k in range(4):
            a(f"buffer_load_dwordx4 v3, s[8:11], s{src} offen offset:{1024*k} lds")
    a(f"""
    v_and_b32 v4, 15, v1                ; i / j
    v_lshrrev_b32 v5, 4, v1             ; h
    v_lshrrev_b32 v6, 1, v4
    v_lshlrev_b32 v6, 6, v6
    v_lshl_add_u32 v6, v5, 4, v6        ; 64*(j>>1)+16h
    v_and_b32 v7, 1, v4
    v_lshl_add_u32 v8, v7, 3, v6
    s_lshl_b32 s28, s18, 1
    v_mov_b32 v9, s28
    global_load_ushort v10, v9, s[6:7]
    s_lshl_b32 s28, s17, 10
    s_sub_u32 s29, {6*512}, s28
    s_add_u32 s30, s22, {XT:#x}
    s_add_u32 s31, s30, s29
    s_add_u32 s30, s30, s28
    buffer_load_dwordx2 v[12:13], v8, s[8:11], s31 offen offset:512
    buffer_load_dwordx2 v[14:15], v8, s[8:11], s31 offen
    buffer_load_dwordx2 v[16:17], v8, s[8:11], s30 offen offset:512
    buffer_load_dwordx2 v[18:19], v8, s[8:11], s30 offen
    v_mov_b32 v20, 0
    v_mov_b32 v21, 0
    v_mov_b32 v22, 0
    v_mov_b32 v23, 0
    v_add_u32 v9, s26, v3
    s_add_u32 s32, s24, {4096-28*16}
    v_add_u32 v11, s32, v3
    v_cmp_lt_u32 vcc, 27, v1
    v_cndmask_b32 v9, v9, v11, vcc
    s_add_u32 s32, s25, {4096-31*16}
    v_add_u32 v11, s32, v3
    v_cmp_lt_u32 vcc, 30, v1
    v_cndmask_b32 v9, v9, v11, vcc
    s_mov_b32 exec_hi, 3
    ds_write_b128 v9, v[20:23]
    s_mov_b32 exec_hi, -1
    v_and_b32 v9, 3, v4
    v_mul_u32_u24 v9, {KC_STR}, v9
    v_lshrrev_b32 v11, 2, v4
    v_sub_u32 v11, v5, v11
    v_lshlrev_b32 v11, 4, v11
    v_add3_u32 v24, v9, v11, s19
    v_add_u32 v24, 48, v24              ; A base
    v_mul_u32_u24 v9, {UC_STR}, v7
    v_add3_u32 v25, v9, v6, s19
    v_add_u32 v25, {4*KC_STR}, v25      ; B base
    s_add_u32 s32, s19, {4*KC_STR+UC_STR+448}
    s_add_u32 s33, s32, s29
    s_add_u32 s32, s32, s28
    v_add_u32 v26, s33, v8
    v_add_u32 v27, s32, v8
    s_add_u32 s34, s22, {HT:#x}
    s_add_u32 s35, s34, s29
    s_add_u32 s34, s34, s28
    s_waitcnt vmcnt(5) lgkmcnt(0)
    s_barrier
    """)
    stamp_mid(a, 99)
    a(f"""
    ds_read_b64 v[28:29], v26 offset:512
    ds_read_b64 v[30:31], v26
    ds_read_b64 v[32:33], v27 offset:512
    ds_read_b64 v[34:35], v27
    s_cmp_eq_u32 s17, 1
    s_cbranch_scc1 K2_par1
    """)
    ACC = 40
    FA = [64, 128]; FB = [96, 160]
    def body(tiles):
        n = tiles[0] + 1
        def loads(r):
            bf = r & 1
            L = []
            for k in range(n):
                L.append(f"ds_read_b128 {vr(FA[bf]+4*k,4)}, v24 offset:{(7-k)*512+(7-r)*64}")
                L.append(f"ds_read_b128 {vr(FB[bf]+4*k,4)}, v25 offset:{k*512+(7-r)*64}")
            return L
        def mfmas(r):
            bf = r & 1
            M = []
            prs = [(ti, b, aa, b - aa) for ti, b in enumerate(tiles) for aa in range(b + 1)]
            prs.sort(key=lambda p: (max(p[2], p[3]), p[0]))
            first = set()
            for ti, b, aa, c in prs:
                cin = vr(ACC + 4 * ti, 4)
                if r == 0 and ti not in first: cin = "0"; first.add(ti)
                M.append((max(aa, c), f"v_mfma_f32_16x16x32_bf16 {vr(ACC+4*ti,4)}, {vr(FA[bf]+4*aa,4)}, {vr(FB[bf]+4*c,4)}, {cin}"))
            return M
        for l in loads(0): a(l)
        for r in range(8):
            nxt = loads(r + 1) if r < 7 else []
            M = mfmas(r)
            issued = 0
            cur_need = -1
            for idx, (k, m) in enumerate(M):
                if k > cur_need:
                    cur_need = k
                    outstanding_allowed = 2 * (n - 1 - k) + issued
                    a(f"s_waitcnt lgkmcnt({min(outstanding_allowed, 15)})")
                a(m)
                while issued < len(nxt) and 2 * (n - 1 - cur_need) + issued + 1 <= 15 and issued < (idx + 1) * len(nxt) // len(M) + 1:
                    a(nxt[issued]); issued += 1
            while issued < len(nxt):
                a(nxt[issued]); issued += 1
    body([7, 6, 1, 0])
    a("s_branch K2_epi")
    a.label("K2_par1")
    body([5, 4, 3, 2])
    a.label("K2_epi")
    stamp_mid(a, 95)
    a(f"""
    s_waitcnt vmcnt(0) lgkmcnt(0)
    v_lshlrev_b32 v10, 16, v10
    s_nop 4
    """)
    for ti in range(4):
        y, u, x, t = ACC + 4 * ti, 28 + 2 * ti, 12 + 2 * ti, 64 + 16 * ti
        for hf in range(2):
            q = t + 8 * hf
            a(f"""
            v_lshlrev_b32 v{q}, 16, v{u+hf}
            v_and_b32 v{q+1}, 0xffff0000, v{u+hf}
            v_cvt_pk_bf16_f32 v{q+2}, v{y+2*hf}, v{y+2*hf+1}
            v_mul_f32 v{q}, v{q}, v10
            v_mul_f32 v{q+1}, v{q+1}, v10
            v_and_b32 v{q+3}, 0xffff0000, v{q+2}
            v_cvt_pk_bf16_f32 v{q}, v{q}, v{q+1}
            v_lshlrev_b32 v{q+2}, 16, v{q+2}
            v_and_b32 v{q+1}, 0xffff0000, v{q}
            v_lshlrev_b32 v{q}, 16, v{q}
            v_add_f32 v{q+1}, v{q+1}, v{q+3}
            v_add_f32 v{q}, v{q}, v{q+2}
            v_lshlrev_b32 v{q+2}, 16, v{x+hf}
            v_cvt_pk_bf16_f32 v{q}, v{q}, v{q+1}
            v_and_b32 v{q+3}, 0xffff0000, v{x+hf}
            v_and_b32 v{q+1}, 0xffff0000, v{q}
            v_lshlrev_b32 v{q}, 16, v{q}
            v_add_f32 v{q+1}, v{q+1}, v{q+3}
            v_add_f32 v{q}, v{q}, v{q+2}
            v_cvt_pk_bf16_f32 v{56+2*ti+hf}, v{q}, v{q+1}
            """)
        a(f"buffer_store_dwordx2 {vr(56+2*ti,2)}, v8, s[8:11], s{35 if ti < 2 else 34} offen offset:{512 if ti%2==0 else 0}")
    stamp_end(a, 1, 8)
    a.label("K2_exit")
    a("s_endpgm")

K3_LDS = 131072 + 1024
K3_PRE = 3
def k3(a):
    a.reset()
    a.raw(".p2align 8\nk3_kernel:")
    stamp_begin(a)
    a(f"""
    s_cmp_ge_u32 s2, 224
    s_cbranch_scc1 K3_exit
    s_load_dwordx2 s[4:5], s[0:1], 128
    s_load_dwordx2 s[6:7], s[0:1], 88
    v_lshrrev_b32 v2, 6, v0
    v_and_b32 v1, 63, v0
    v_readfirstlane_b32 s3, v2
    v_lshlrev_b32 v3, 4, v1             ; lane*16
    s_mov_b32 s98, s2
    s_mov_b32 s94, s3
    s_mov_b32 s99, 0
    s_mov_b32 s95, 0
    s_and_b32 s16, s2, 7
    s_lshr_b32 s17, s2, 3               ; k 0..27
    s_mul_i32 s18, s17, 37
    s_lshr_b32 s18, s18, 8              ; k/7
    s_mul_i32 s19, s18, 7
    s_sub_u32 s19, s17, s19             ; k%7
    s_lshr_b32 s20, s16, 1
    s_lshl_b32 s20, s20, 2
    s_add_u32 s20, s20, s18             ; rb
    s_and_b32 s21, s16, 1
    s_mul_i32 s21, s21, 7
    s_add_u32 s21, s21, s19             ; ft
    s_lshl_b32 s21, s21, 2
    s_add_u32 s21, s21, s3              ; fb
    v_lshrrev_b32 v4, 4, v1             ; r4 / g
    v_and_b32 v5, 15, v1
    v_lshlrev_b32 v6, 2, v4
    v_xor_b32 v5, v5, v6
    v_mul_u32_u24 v6, {RS}, v4
    v_lshl_add_u32 v5, v5, 4, v6
    s_mul_i32 s22, s3, {16*RS}
    s_lshl_b32 s23, s20, 8
    s_add_u32 s22, s22, s23
    s_add_u32 s22, s22, {HT:#x}
    s_lshl_b32 s23, s3, 12              ; m0 value
    s_lshl_b32 s24, s21, 15
    s_add_u32 s24, s24, {W1P:#x}        ; W1P soffset
    s_waitcnt lgkmcnt(0)
    """)
    srd(a, 8, 4, WS_USED if not STAMP else 0x2000000)
    WF = 0
    def chunk_loads(c):
        L = []
        for k in range(4):
            adv_s = 4 * RS if k < 3 else 52 * RS
            adv_m = 1024 if k < 3 else 16384 - 3072
            L.append([f"s_mov_b32 m0, s23", f"s_add_u32 s23, s23, {adv_m}",
                      f"buffer_load_dwordx4 v5, s[8:11], s22 offen lds", f"s_add_u32 s22, s22, {adv_s}"])
        for k in range(4):
            x = [f"buffer_load_dwordx4 {ar(WF+16*c+4*k,4)}, v3, s[8:11], s24 offen offset:{1024*k}"]
            if k == 3: x.append("s_add_u32 s24, s24, 4096")
            L.append(x)
        return L
    for c in range(K3_PRE):
        for x in chunk_loads(c): a("\n".join(x))
    a(f"""
    v_lshrrev_b32 v6, 5, v1             ; hh
    s_lshl_b32 s25, s21, 7
    s_add_u32 s25, s25, {CS:#x}
    v_lshlrev_b32 v7, 4, v6
    s_lshl_b32 s26, s21, 6
    v_lshl_add_u32 v8, v6, 3, s26
    v_bfe_u32 v9, v1, 2, 2              ; r
    v_and_b32 v10, 3, v1                ; c4
    v_and_b32 v11, 1, v4                ; th
    v_lshl_add_u32 v12, v6, 3, v9       ; 8h + r
    v_lshlrev_b32 v12, 8, v12
    v_lshl_add_u32 v12, v11, 5, v12
    v_lshl_add_u32 v12, v10, 3, v12
    v_xor_b32 v9, s3, v9                ; w ^ r
    v_lshl_add_u32 v16, v9, 6, v12      ; base(qq=0)
    v_xor_b32 v17, 64, v16
    v_xor_b32 v18, 128, v16
    v_xor_b32 v19, 192, v16
    v_mov_b32 v14, 0x3f803f80
    v_mov_b32 v15, 0x3f803f80
    """)
    ACC = 64
    SQ, SM = 24, 28
    FR = [32, 48]
    def reads(s):
        bf = s & 1
        return [f"ds_read_b64_tr_b16 {vr(FR[bf]+4*q+2*hf,2)}, v{16+q} offset:{(s%16)*4096+hf*1024}" for q in range(4) for hf in range(2)]
    vm_issued = 8 * K3_PRE
    def wait_chunk(c, issued):
        return f"s_waitcnt vmcnt({issued - 8*(c+1)})"
    a(wait_chunk(0, vm_issued)); a("s_barrier")
    stamp_mid(a, 99)
    for x in reads(0): a(x)
    extra = []
    for s in range(32):
        c, ks = s // 4, s % 4
        bf = s & 1
        nl = chunk_loads(c + K3_PRE)[2*ks:2*ks+2] if c + K3_PRE < 8 else []
        pre = []
        if s + 1 < 32:
            if (s + 1) % 4 == 0:
                pre = [wait_chunk(c + 1, vm_issued), "s_barrier"]
            if s + 1 == 16:
                pre = pre + [f"v_add_u32 v{16+q}, 0x10000, v{16+q}" for q in range(4)]
            rd = reads(s + 1)
        else: rd = []
        wf = ar(WF + 4 * s, 4)
        z = s == 0
        f0 = FR[bf]
        a("s_waitcnt lgkmcnt(6)")
        a(f"v_mfma_f32_32x32x16_bf16 {vr(ACC,16)}, {wf}, {vr(f0,4)}, {'0' if z else vr(ACC,16)}")
        a("s_waitcnt lgkmcnt(0)")
        for x in pre: a(x)
        a(f"v_mfma_f32_4x4x4_16b_bf16 {vr(SQ,4)}, {vr(f0,2)}, {vr(f0,2)}, {'0' if z else vr(SQ,4)}")
        a(f"v_mfma_f32_4x4x4_16b_bf16 {vr(SM,4)}, v[14:15], {vr(f0,2)}, {'0' if z else vr(SM,4)}")
        for x in rd[0:3]: a(x)
        a(f"v_mfma_f32_32x32x16_bf16 {vr(ACC+16,16)}, {wf}, {vr(f0+4,4)}, {'0' if z else vr(ACC+16,16)}")
        for x in rd[3:6]: a(x)
        a(f"v_mfma_f32_4x4x4_16b_bf16 {vr(SQ,4)}, {vr(f0+2,2)}, {vr(f0+2,2)}, {vr(SQ,4)}")
        a(f"v_mfma_f32_4x4x4_16b_bf16 {vr(SM,4)}, v[14:15], {vr(f0+2,2)}, {vr(SM,4)}")
        a(f"v_mfma_f32_32x32x16_bf16 {vr(ACC+32,16)}, {wf}, {vr(f0+8,4)}, {'0' if z else vr(ACC+32,16)}")
        for x in rd[6:8]: a(x)
        if nl: a("\n".join(nl[0])); vm_issued += 1
        a(f"v_mfma_f32_32x32x16_bf16 {vr(ACC+48,16)}, {wf}, {vr(f0+12,4)}, {'0' if z else vr(ACC+48,16)}")
        if nl: a("\n".join(nl[1])); vm_issued += 1
        if s == 24:
            for g in range(4):
                a(f"buffer_load_dwordx4 {vr(128+4*g,4)}, v7, s[8:11], s25 offen offset:{32*g}")
                a(f"global_load_dwordx2 {vr(160+2*g,2)}, v8, s[6:7] offset:{16*g}")
            vm_issued += 8
    stamp_mid(a, 95)
    a(f"""
    v_cmp_eq_u32 vcc, 1, v10
    v_cmp_eq_u32 s[28:29], 2, v10
    v_cmp_eq_u32 s[30:31], 3, v10
    v_cndmask_b32 v{SQ}, v{SQ}, v{SQ+1}, vcc
    v_cndmask_b32 v{SQ}, v{SQ}, v{SQ+2}, s[28:29]
    v_cndmask_b32 v{SQ}, v{SQ}, v{SQ+3}, s[30:31]
    v_mov_b32 v{SQ+1}, v{SQ}
    v_permlane32_swap_b32 v{SM}, v{SM+1}
    v_permlane32_swap_b32 v{SQ}, v{SQ+1}
    v_add_f32 v{SM}, v{SM}, v{SM+1}
    v_add_f32 v{SQ}, v{SQ}, v{SQ+1}
    """)
    row_stats(a, SM, SQ, 20, 21, 22)
    a(f"""
    v_mul_f32 v20, -v20, v21            ; -m*rinv
    v_and_b32 v9, 31, v1
    v_lshlrev_b32 v9, 3, v9
    s_lshl_b32 s27, s3, 8
    s_add_u32 s27, s27, 131072
    v_add_u32 v9, s27, v9
    ds_write_b64 v9, v[20:21]
    v_xor_b32 v11, 256, v9
    v_xor_b32 v12, 512, v9
    v_xor_b32 v13, 768, v9
    s_waitcnt vmcnt(0)
    """)
    for g in range(4):
        for k in range(2):
            a(f"v_lshlrev_b32 v{144+4*g+2*k}, 16, v{160+2*g+k}")
            a(f"v_and_b32 v{144+4*g+2*k+1}, 0xffff0000, v{160+2*g+k}")
    a(f"""
    s_waitcnt lgkmcnt(0)
    s_barrier
    ds_read_b64 v[22:23], v11
    ds_read_b64 v[24:25], v12
    ds_read_b64 v[26:27], v13
    s_lshl_b32 s28, s20, 2
    s_lshl_b32 s29, s21, 11
    s_add_u32 s29, s29, {HF:#x}
    """)
    for q in range(4):
        a(f"""
        s_xor_b32 s30, s3, {q}
        s_add_u32 s30, s30, s28
        s_mul_i32 s30, s30, {112*1024}
        s_add_u32 s{32+q}, s30, s29
        """)
    for q in range(4):
        st = 20 + 2 * q
        if q == 1: a("s_waitcnt lgkmcnt(0)")
        A = ACC + 16 * q
        for k in range(0, 16, 2):
            a(f"v_pk_fma_f32 {vr(A+k,2)}, {vr(A+k,2)}, {vr(st,2)}, {vr(144+k,2)} op_sel:[0,1,0] op_sel_hi:[1,1,1]")
        for k in range(0, 16, 2):
            a(f"v_pk_fma_f32 {vr(A+k,2)}, {vr(128+k,2)}, {vr(st,2)}, {vr(A+k,2)} op_sel_hi:[1,0,1]")
        for k in range(16):
            a(f"v_max_f32 v{A+k}, 0, v{A+k}")
        for k in range(0, 16, 2):
            a(f"v_pk_mul_f32 {vr(A+k,2)}, {vr(A+k,2)}, {vr(A+k,2)}")
        o = 32 + 8 * q
        for k in range(8):
            a(f"v_cvt_pk_bf16_f32 v{o+k}, v{A+2*k}, v{A+2*k+1}")
        a(f"buffer_store_dwordx4 {vr(o,4)}, v3, s[8:11], s{32+q} offen")
        a(f"buffer_store_dwordx4 {vr(o+4,4)}, v3, s[8:11], s{32+q} offen offset:1024")
    stamp_end(a, 2, 8)
    a.label("K3_exit")
    a("s_endpgm")

K4_LDS = 49152
K4_R = 7
def k4(a):
    a.reset()
    a.raw(".p2align 8\nk4_kernel:")
    stamp_begin(a)
    a(f"""
    s_cmp_ge_u32 s2, 256
    s_cbranch_scc1 K4_exit
    s_load_dwordx2 s[4:5], s[0:1], 128
    s_load_dwordx4 s[12:15], s[0:1], 104   ; b2, out
    v_lshrrev_b32 v2, 6, v0
    v_and_b32 v1, 63, v0
    v_readfirstlane_b32 s3, v2
    v_lshlrev_b32 v3, 4, v1             ; lane*16
    s_mov_b32 s98, s2
    s_mov_b32 s94, s3
    s_mov_b32 s99, 0
    s_mov_b32 s95, 0
    s_and_b32 s16, s2, 7
    s_lshr_b32 s17, s2, 3               ; k 0..31
    s_lshr_b32 s18, s16, 1
    s_lshl_b32 s18, s18, 3
    s_lshr_b32 s19, s17, 2
    s_add_u32 s18, s18, s19             ; tt
    s_and_b32 s19, s16, 1
    s_lshl_b32 s19, s19, 2
    s_and_b32 s20, s17, 3
    s_add_u32 s19, s19, s20             ; dt
    s_lshr_b32 s20, s3, 1
    s_and_b32 s21, s3, 1
    s_lshl_b32 s22, s18, 1
    s_add_u32 s22, s22, s20
    s_lshl_b32 s23, s19, 1
    s_add_u32 s23, s23, s21
    s_mul_i32 s24, s3, {28*1024}
    s_mul_i32 s25, s22, {112*1024}
    s_add_u32 s25, s25, s24
    s_add_u32 s25, s25, {HF:#x}         ; H stream 0
    s_xor_b32 s26, s22, 1
    s_mul_i32 s26, s26, {112*1024}
    s_add_u32 s26, s26, s24
    s_add_u32 s26, s26, {HF:#x}         ; H stream 1
    s_mul_i32 s27, s23, {112*1024}
    s_add_u32 s27, s27, s24
    s_add_u32 s27, s27, {W2P:#x}        ; W stream 0
    s_xor_b32 s28, s23, 1
    s_mul_i32 s28, s28, {112*1024}
    s_add_u32 s28, s28, s24
    s_add_u32 s28, s28, {W2P:#x}        ; W stream 1
    s_waitcnt lgkmcnt(0)
    """)
    srd(a, 8, 4, WS_USED if not STAMP else 0x2000000)
    ACC = 32
    FB = 96
    def loads(s):
        b = FB + 16 * (s % K4_R)
        L = [f"buffer_load_dwordx4 {vr(b+4*k,4)}, v3, s[8:11], s{25+k} offen offset:{(s%4)*1024}" for k in (0, 2, 1, 3)]
        if s % 4 == 3: L += [f"s_add_u32 s{25+k}, s{25+k}, 4096" for k in range(4)]
        return L
    for s in range(K4_R - 1):
        for x in loads(s): a(x)
    issued = 4 * (K4_R - 1)
    srd(a, 36, 14, 2048 * 512 * 2)
    a(f"""
    v_and_b32 v4, 31, v1                ; d local
    v_lshrrev_b32 v5, 5, v1             ; hh
    s_lshl_b32 s29, s23, 5
    v_add_u32 v6, s29, v4               ; d
    v_mul_u32_u24 v7, {RS}, v6
    v_lshl_add_u32 v7, v5, 3, v7
    s_lshl_b32 s30, s22, 6
    s_add_u32 s30, s30, {HT:#x}
    v_lshlrev_b32 v6, 1, v6             ; d*2
    v_lshl_add_u32 v8, v5, 12, v6
    s_lshl_b32 s31, s22, 15
    s_mul_i32 s32, s3, 12288
    v_add_u32 v9, s32, v3
    """)
    for ql in (1, 2, 3):
        a(f"""
        s_xor_b32 s32, s3, {ql}
        s_mul_i32 s32, s32, 12288
        s_add_u32 s32, s32, {(ql-1)*4096}
        v_add_u32 v{9+ql}, s32, v3
        """)
    extra_at = 20
    for s in range(28):
        b = FB + 16 * (s % K4_R)
        nl = loads(s + K4_R - 1) if s + K4_R - 1 < 28 else []
        done_needed = 4 * s + 2 + (5 if (s > extra_at + K4_R - 1) else 0)
        z = s == 0
        def acc(q): return vr(ACC + 16 * q, 16)
        a(f"s_waitcnt vmcnt({issued - (4*s+2)})")
        a(f"v_mfma_f32_32x32x16_bf16 {acc(0)}, {vr(b,4)}, {vr(b+8,4)}, {'0' if z else acc(0)}")
        if nl: a(nl[0]); issued += 1
        a(f"s_waitcnt vmcnt({issued - (4*s+3)})")
        a(f"v_mfma_f32_32x32x16_bf16 {acc(2)}, {vr(b+4,4)}, {vr(b+8,4)}, {'0' if z else acc(2)}")
        if nl: a(nl[1]); issued += 1
        a(f"s_waitcnt vmcnt({issued - (4*s+4)})")
        a(f"v_mfma_f32_32x32x16_bf16 {acc(1)}, {vr(b,4)}, {vr(b+12,4)}, {'0' if z else acc(1)}")
        if nl: a(nl[2]); issued += 1
        a(f"v_mfma_f32_32x32x16_bf16 {acc(3)}, {vr(b+4,4)}, {vr(b+12,4)}, {'0' if z else acc(3)}")
        if nl:
            for x in nl[3:]: a(x)
            issued += 1
        if s == 28 - K4_R + 1:
            for g in range(4):
                a(f"buffer_load_dwordx2 {vr(16+2*g,2)}, v7, s[8:11], s30 offen offset:{16*g}")
            a("global_load_ushort v24, v6, s[12:13]")
            issued += 5
        if s == 0: stamp_mid(a, 99)
    stamp_mid(a, 95)
    for ql in (1, 2, 3):
        for k in range(4):
            a(f"ds_write_b128 v{9+ql}, {vr(ACC+16*ql+4*k,4)} offset:{1024*k}")
    a("s_waitcnt vmcnt(0)")
    a("v_lshlrev_b32 v24, 16, v24")
    for g in range(4):
        for k in range(2):
            a(f"v_lshlrev_b32 v{96+4*g+2*k}, 16, v{16+2*g+k}")
            a(f"v_and_b32 v{96+4*g+2*k+1}, 0xffff0000, v{16+2*g+k}")
    for k in range(16):
        a(f"v_add_f32 v{96+k}, v{96+k}, v24")
    for k in range(0, 16, 2):
        a(f"v_pk_add_f32 {vr(ACC+k,2)}, {vr(ACC+k,2)}, {vr(96+k,2)}")
    a("s_waitcnt lgkmcnt(0)\ns_barrier")
    for k in range(4):
        for sl in range(3):
            a(f"ds_read_b128 {vr(112+16*sl+4*k,4)}, v9 offset:{4096*sl+1024*k}")
    a("s_add_u32 s32, s31, 8192\ns_add_u32 s33, s31, 16384\ns_add_u32 s34, s31, 24576")
    for k in range(4):
        a(f"s_waitcnt lgkmcnt({9-3*k})")
        for j in (0, 2):
            r = 4 * k + j
            a(f"v_pk_add_f32 {vr(112+r,2)}, {vr(112+r,2)}, {vr(128+r,2)}")
            a(f"v_pk_add_f32 {vr(ACC+r,2)}, {vr(ACC+r,2)}, {vr(144+r,2)}")
            a(f"v_pk_add_f32 {vr(ACC+r,2)}, {vr(ACC+r,2)}, {vr(112+r,2)}")
            a(f"v_cvt_pk_bf16_f32 v{ACC+r}, v{ACC+r}, v{ACC+r+1}")
            a(f"buffer_store_short v{ACC+r}, v8, s[36:39], s{31+k} offen offset:{1024*j}")
            a(f"buffer_store_short_d16_hi v{ACC+r}, v8, s[36:39], s{31+k} offen offset:{1024*(j+1)}")
    stamp_end(a, 3, 8)
    a.label("K4_exit")
    a("s_endpgm")

def build(path, stamp=False):
    global STAMP
    STAMP = stamp
    hdr = open(f"cdna_kernels/{NAME}.s.ref").read().split("; Override launch")[0]
    a = Asm()
    k1(a); k2(a); k3(a); k4(a)
    s = hdr
    s += f"; @launch kernel=k1_kernel grid=({K1_GRID},1,1) block=(512,1,1) lds={K1_LDS}\n"
    s += f"; @launch kernel=k2_kernel grid=(256,1,1) block=(256,1,1) lds={K2_LDS}\n"
    s += f"; @launch kernel=k3_kernel grid=(224,1,1) block=(256,1,1) lds={K3_LDS}\n"
    s += f"; @launch kernel=k4_kernel grid=(256,1,1) block=(256,1,1) lds={K4_LDS}\n"
    s += '.amdgcn_target "amdgcn-amd-amdhsa--gfx950"\n.text\n'
    s += a.text()
    s += '.section .rodata,"a"\n'
    s += kd("k1_kernel", 128) + kd("k2_kernel", 192) + kd("k3_kernel", 168 + 128, 168) + kd("k4_kernel", 96 + 16 * K4_R)
    open(path, "w").write(s)
if __name__ == "__main__":
    build(f"cdna_kernels/{NAME}.s", False)
    build("dbg.s", True)
```

```python
import sys, math
from asmlib import *
NAME = "sequential_preLN__ssm_conv_s4__dense_activation_squared_relu__prompt"
RS = 4352
UT, XT, HT, KG = 0, 0x220000, 0x440000, 0x660000
W1P, W2P, CS, HF = 0xAA0000, 0xC60000, 0xE20000, 0xE30000
WS_USED = 0x1530000
TSB = 0x1600000
LOG2E = 1.4426950408889634
import numpy as np
LOG2E_HI = float(np.float32(LOG2E)); LOG2E_LO = LOG2E - LOG2E_HI
STAMP = False

def srd(a, s, base, nbytes):
    a(f"""
    s_mov_b32 s{s}, s{base}
    s_and_b32 s{s+1}, s{base+1}, 0xffff
    s_mov_b32 s{s+2}, {nbytes:#x}
    s_mov_b32 s{s+3}, 0x20000
    """)

def stamp_begin(a):
    if STAMP:
        a("s_memrealtime s[96:97]\ns_memtime s[92:93]")
        for r in (99, 95, 91, 90): a(f"s_mov_b32 s{r}, 0")
def stamp_end(a, k, wsrd):
    if not STAMP: return
    a(f"""
    s_waitcnt vmcnt(0) lgkmcnt(0)
    s_memrealtime s[100:101]
    s_memtime s[88:89]
    s_waitcnt lgkmcnt(0)
    s_mov_b64 exec, 1
    v_mov_b32 v0, s96
    v_mov_b32 v1, s100
    v_mov_b32 v2, s99
    v_mov_b32 v3, s95
    v_mov_b32 v4, s91
    v_mov_b32 v5, s90
    v_mov_b32 v6, s92
    v_mov_b32 v7, s88
    s_lshl_b32 s98, s98, 9
    s_lshl_b32 s94, s94, 5
    s_add_u32 s98, s98, s94
    s_add_u32 s98, s98, {TSB + k * 0x80000:#x}
    v_mov_b32 v8, s98
    buffer_store_dwordx4 v[0:3], v8, s[{wsrd}:{wsrd+3}], 0 offen
    buffer_store_dwordx4 v[4:7], v8, s[{wsrd}:{wsrd+3}], 0 offen offset:16
    """)
def stamp_mid(a, reg):
    if STAMP:
        a(f"s_memrealtime s[100:101]\ns_waitcnt lgkmcnt(0)\ns_mov_b32 s{reg}, s100")

def cmul(a, d, x, y):
    a(f"v_pk_mul_f32 {vr(d,2)}, {vr(x,2)}, {vr(y,2)} op_sel_hi:[0,1]")
    a(f"v_pk_fma_f32 {vr(d,2)}, {vr(x,2)}, {vr(y,2)}, {vr(d,2)} op_sel:[1,1,0] op_sel_hi:[1,0,1] neg_lo:[1,0,0]")

def row_stats(a, vs, vq, vm, vri, t0):
    a(f"""
    v_mul_f32 v{vs}, {fhex(1/512)}, v{vs}
    v_mul_f32 v{vq}, {fhex(1/512)}, v{vq}
    v_fma_f32 v{vq}, -v{vs}, v{vs}, v{vq}
    v_max_f32 v{vq}, 0, v{vq}
    v_cvt_pk_bf16_f32 v{t0}, v{vs}, v{vq}
    v_lshlrev_b32 v{vm}, 16, v{t0}
    v_and_b32 v{t0}, 0xffff0000, v{t0}
    v_add_f32 v{t0}, {fhex(1e-5)}, v{t0}
    v_cvt_pk_bf16_f32 v{t0}, v{t0}, v{t0}
    v_and_b32 v{t0}, 0xffff0000, v{t0}
    v_sqrt_f32 v{t0}, v{t0}
    v_cvt_pk_bf16_f32 v{t0}, v{t0}, v{t0}
    v_and_b32 v{t0}, 0xffff0000, v{t0}
    v_rcp_f32 v{vri}, v{t0}
    """)

N_KG, N_LN, N_W1, N_W2 = 256, 128, 56, 56
N_PF = 16
K1_GRID = N_KG + N_LN + N_W1 + N_W2 + N_PF
K1_ROLES = (("kg", 0, 256), ("ln", 256, 384), ("w1", 384, 440), ("w2", 440, 496), ("pf", 496, 512))
PQ_PITCH = 544
P_BYTES = 22 * PQ_PITCH
CH_BYTES = P_BYTES + 32 * PQ_PITCH + 5632
T_OFF = P_BYTES + 32 * PQ_PITCH + 16
K1_LDS = 2 * CH_BYTES

def k1(a):
    a.reset()
    a.raw(".p2align 8\nk1_kernel:")
    stamp_begin(a)
    a(f"""
    s_cmp_ge_u32 s2, {K1_GRID}
    s_cbranch_scc1 K1_exit
    s_load_dwordx16 s[16:31], s[0:1], 0
    s_load_dwordx2 s[32:33], s[0:1], 80
    s_load_dwordx2 s[34:35], s[0:1], 96
    s_load_dwordx2 s[4:5], s[0:1], 128
    v_lshrrev_b32 v2, 6, v0
    v_and_b32 v1, 63, v0
    v_readfirstlane_b32 s3, v2
    s_mov_b32 s98, s2
    s_mov_b32 s94, s3
    s_cmp_ge_u32 s2, {N_KG}
    s_cbranch_scc1 K1_notkg
    """)
    a(f"""
    s_lshr_b32 s36, s3, 2               ; ch_local
    s_lshl_b32 s37, s2, 1
    s_add_u32 s37, s37, s36             ; d
    s_and_b32 s38, s3, 1                ; mh
    s_lshl_b32 s39, s37, 8
    s_lshl_b32 s40, s38, 7
    s_add_u32 s39, s39, s40
    v_lshl_add_u32 v3, v1, 1, s39
    s_lshl_b32 s40, s37, 1
    v_mov_b32 v4, s40
    s_waitcnt lgkmcnt(0)
    global_load_ushort v9, v4, s[30:31]
    global_load_ushort v10, v3, s[18:19]
    global_load_ushort v11, v3, s[20:21]
    global_load_ushort v12, v3, s[22:23]
    global_load_ushort v13, v3, s[24:25]
    global_load_ushort v14, v3, s[26:27]
    global_load_ushort v15, v3, s[28:29]
    """)
    srd(a, 8, 4, WS_USED if not STAMP else 0x2000000)
    a(f"""
    s_mul_i32 s41, s36, {CH_BYTES}
    s_lshl_b32 s42, s38, 8
    s_add_u32 s42, s42, s41
    v_lshl_add_u32 v5, v1, 2, s42
    s_and_b32 s43, s3, 3                ; q quadrant
    s_lshr_b32 s44, s43, 1              ; ib
    s_and_b32 s45, s43, 1               ; jb
    v_and_b32 v6, 15, v1                ; i / j
    v_lshrrev_b32 v7, 4, v1             ; h
    v_mul_u32_u24 v100, {PQ_PITCH}, v6
    v_lshl_add_u32 v100, v7, 4, v100
    s_mul_i32 s46, s44, {16*PQ_PITCH}
    s_add_u32 s46, s46, s41
    s_mul_i32 s47, s45, {16*PQ_PITCH}
    s_add_u32 s47, s47, s41
    s_add_u32 s47, s47, {P_BYTES}
    v_add_u32 v101, s47, v100           ; B (Q) addr
    v_add_u32 v100, s46, v100           ; A (P) addr
    s_lshl_b32 s48, s44, 2
    v_add_u32 v8, s48, v7
    v_mov_b32 v102, 1026
    v_mov_b32 v103, 256
    """)
    for hq, (base, step) in enumerate([(0, 1), (4, 1), (256, 2), (512, 256), (1536, 256), (516, 256)]):
        a(f"v_cmp_ne_u32 vcc, {hq}, v8")
        if base > 64:
            a(f"v_mov_b32 v2, {base}")
            a(f"v_cndmask_b32 v102, v2, v102, vcc")
        else:
            a(f"v_cndmask_b32 v102, {base}, v102, vcc")
        if step != 256: a(f"v_cndmask_b32 v103, {step}, v103, vcc")
    a(f"""
    s_lshl_b32 s48, s45, 7
    v_lshl_add_u32 v8, v6, 3, s48       ; 8*(16jb+j)
    v_add_u32 v102, v102, v8
    s_add_u32 s49, s41, {T_OFF}
    """)
    def skew(dst, src, tmp):
        a(f"""
        v_ashrrev_i32 v{tmp}, 6, v{src}
        v_lshl_add_u32 v{tmp}, v{tmp}, 2, s49
        v_lshl_add_u32 v{dst}, v{src}, 1, v{tmp}
        """)
    for r in range(4):
        skew(104 + r, 102, 8)
        if r < 3: a("v_add_u32 v102, v102, v103")
    a(f"""
    s_lshl_b32 s48, s43, 9
    s_sub_u32 s48, 2047, s48
    v_lshlrev_b32 v8, 3, v1
    v_sub_u32 v8, s48, v8
    v_cvt_f32_i32 v8, v8
    """)
    for e in range(0, 10, 2):
        a(f"v_add_f32 v102, {fhex(-float(e))}, v8")
        a(f"v_add_f32 v103, {fhex(-float(e+1))}, v8")
        a(f"v_cvt_pk_bf16_f32 v102, v102, v103")
        a(f"v_and_b32 v103, 0xffff0000, v102")
        a(f"v_lshlrev_b32 v102, 16, v102")
        a(f"v_cvt_i32_f32 v102, v102")
        skew(108 + e, 102, 2)
        if e + 1 <= 8:
            a(f"v_cvt_i32_f32 v103, v103")
            skew(108 + e + 1, 103, 2)
    a(f"""
    v_mov_b32 v120, 0
    v_mov_b32 v121, 0
    v_mov_b32 v122, 0
    v_mov_b32 v123, 0
    s_add_u32 s48, s49, -16
    v_mov_b32 v2, s48
    ds_write_b128 v2, v[120:123]
    s_mul_i32 s50, s37, {2*RS}
    s_add_u32 s50, s50, {KG:#x}         ; G0 row
    s_lshl_b32 s48, s43, 10
    s_add_u32 s48, s48, s50
    v_lshl_add_u32 v118, v1, 4, s48
    s_mul_i32 s51, s37, {RS}
    s_add_u32 s51, s51, {UT + 240}
    s_add_u32 s50, s50, 4096
    v_mul_u32_u24 v2, {RS}, v1
    v_add_u32 v2, s50, v2
    v_mov_b32 v8, s51
    v_cmp_eq_u32 vcc, 2, v1
    v_cndmask_b32 v2, v2, v8, vcc
    s_mov_b64 exec, 7
    buffer_store_dwordx4 v[120:123], v2, s[8:11], 0 offen
    s_mov_b64 exec, -1
    s_mov_b32 s52, {fhex(LOG2E_HI)}
    s_waitcnt vmcnt(5)
    """)
    stamp_mid(a, 99)
    a(f"""
    v_lshlrev_b32 v9, 16, v9
    v_lshlrev_b32 v10, 16, v10
    v_lshlrev_b32 v11, 16, v11
    v_mul_f32 v16, s52, v9
    v_fma_f32 v17, v9, s52, -v16
    v_fmac_f32 v17, {fhex(LOG2E_LO)}, v9
    v_exp_f32 v16, v16
    v_mul_f32 v17, {fhex(math.log(2))}, v17
    v_fma_f32 v16, v16, v17, v16
    v_cvt_pk_bf16_f32 v16, v16, v16
    v_and_b32 v16, 0xffff0000, v16      ; dt
    v_mul_f32 v10, v16, v10
    v_mul_f32 v11, v16, v11
    v_mul_f32 v10, s52, v10             ; a2
    v_mul_f32 v11, 0.15915494, v11      ; b2
    """)
    def edirect(d, l):
        a(f"""
        v_mul_f32 v18, {fhex(float(l))}, v10
        v_mul_f32 v19, {fhex(float(l))}, v11
        v_exp_f32 v18, v18
        v_fract_f32 v19, v19
        v_cos_f32 v{d}, v19
        v_sin_f32 v{d+1}, v19
        v_pk_mul_f32 {vr(d,2)}, {vr(d,2)}, v[18:19] op_sel_hi:[1,0]
        """)
    cvt_t = [20, 21, 22, 23]
    cnt = [0]
    def put(src, row, isP):
        t = cvt_t[cnt[0] % 4]; cnt[0] += 1
        a(f"v_cvt_pk_bf16_f32 v{t}, v{src}, {'-' if isP else ''}v{src+1}")
        a(f"ds_write_b32 v5, v{t} offset:{row*PQ_PITCH + (0 if isP else P_BYTES)}")
    a(f"""
    s_bitcmp1_b32 s3, 1
    s_cbranch_scc1 K1_qpath
    """)
    E1, E256, E1024, E2, E4, E512 = 24, 26, 28, 30, 32, 34
    P = {k: 40 + 2 * k for k in range(8)}
    R = {256: 56, 260: 58, 512: 60, 768: 62, 1024: 64}
    TMP = [66, 68, 70, 72]
    edirect(E1, 1); edirect(E256, 256); edirect(E1024, 1024)
    a(f"""
    s_waitcnt vmcnt(1)
    v_lshlrev_b32 v12, 16, v12
    v_lshlrev_b32 v13, 16, v13
    v_lshlrev_b32 v14, 16, v14
    v_lshlrev_b32 v15, 16, v15
    v_mul_f32 v12, v16, v12
    v_mul_f32 v13, v16, v13
    """)
    cmul(a, E2, E1, E1); cmul(a, P[0], 14, 12); cmul(a, E512, E256, E256); cmul(a, E4, E2, E2)
    cmul(a, P[1], P[0], E1); put(P[0], 0, 1)
    cmul(a, P[2], P[0], E2); put(P[1], 1, 1)
    cmul(a, P[3], P[1], E2); put(P[2], 2, 1)
    cmul(a, P[4], P[0], E4); put(P[3], 3, 1)
    cmul(a, P[5], P[1], E4); put(P[4], 4, 1)
    cmul(a, P[6], P[2], E4); put(P[5], 5, 1)
    cmul(a, P[7], P[3], E4); put(P[6], 6, 1)
    cmul(a, R[256], P[0], E256); put(P[7], 7, 1)
    cmul(a, TMP[0], P[2], E256); put(R[256], 8, 1)
    cmul(a, R[260], P[4], E256); put(TMP[0], 9, 1)
    cmul(a, TMP[1], P[6], E256); put(R[260], 10, 1)
    cmul(a, R[512], P[0], E512); put(TMP[1], 11, 1)
    cmul(a, R[768], R[256], E512); put(R[512], 12, 1)
    cmul(a, R[1024], P[0], E1024); put(R[768], 13, 1)
    cmul(a, TMP[2], R[256], E1024); put(R[1024], 14, 1)
    cmul(a, TMP[3], R[512], E1024); put(TMP[2], 15, 1)
    cmul(a, TMP[0], R[768], E1024); put(TMP[3], 16, 1)
    cmul(a, TMP[1], R[1024], E1024); put(TMP[0], 17, 1)
    cmul(a, TMP[2], P[4], E512); put(TMP[1], 18, 1)
    cmul(a, TMP[3], R[260], E512); put(TMP[2], 20, 1)
    put(TMP[3], 21, 1)
    a("s_branch K1_pqdone")
    a.label("K1_qpath")
    Q = {j: 32 + 2 * j for j in range(1, 17)}
    edirect(Q[1], 8)
    a(f"v_mov_b32 v24, 0x00003f80")
    a(f"ds_write_b32 v5, v24 offset:{P_BYTES}")
    seq = []
    for j in range(2, 17):
        hb = 1 << (j.bit_length() - 1)
        if j == hb: seq.append((j, j // 2, j // 2))
        else: seq.append((j, hb, j - hb))
    prev = 1
    for (j, x, y) in seq:
        cmul(a, Q[j], Q[x], Q[y]); put(Q[prev], prev, 0); prev = j
    prevreg, prevrow = Q[16], 16
    for j in range(17, 32):
        t = TMP[j % 4]
        cmul(a, t, Q[16], Q[j - 16]); put(prevreg, prevrow, 0); prevreg, prevrow = t, j
    put(prevreg, prevrow, 0)
    a.label("K1_pqdone")
    stamp_mid(a, 95)
    a("s_waitcnt lgkmcnt(0)\ns_barrier")
    stamp_mid(a, 91)
    for s in range(8):
        a(f"ds_read_b128 {vr(24+8*s,4)}, v100 offset:{64*s}")
        a(f"ds_read_b128 {vr(28+8*s,4)}, v101 offset:{64*s}")
    for s in range(8):
        a(f"s_waitcnt lgkmcnt({14-2*s})")
        a(f"v_mfma_f32_16x16x32_bf16 v[20:23], {vr(24+8*s,4)}, {vr(28+8*s,4)}, {'0' if s==0 else 'v[20:23]'}")
    a(f"""
    v_cvt_pk_bf16_f32 v20, v20, v21
    v_cvt_pk_bf16_f32 v22, v22, v23
    ds_write_b16 v104, v20
    ds_write_b16_d16_hi v105, v20
    ds_write_b16 v106, v22
    ds_write_b16_d16_hi v107, v22
    s_waitcnt lgkmcnt(0)
    s_barrier
    """)
    stamp_mid(a, 90)
    for e in range(9):
        a(f"ds_read_u16 v{24+e}, v{108+e}")
    a("s_waitcnt lgkmcnt(0)")
    for k in range(4):
        a(f"v_lshl_or_b32 v{36+k}, v{24+2*k+1}, 16, v{24+2*k}")
        a(f"v_lshl_or_b32 v{40+k}, v{24+2*k+2}, 16, v{24+2*k+1}")
    a(f"""
    s_movk_i32 s48, {RS}
    buffer_store_dwordx4 v[40:43], v118, s[8:11], 0 offen
    buffer_store_dwordx4 v[36:39], v118, s[8:11], s48 offen
    s_branch K1_done
    """)
    a.label("K1_notkg")
    a(f"""
    s_cmp_ge_u32 s2, {N_KG + N_LN}
    s_cbranch_scc1 K1_prep
    s_sub_u32 s36, s2, {N_KG}
    s_and_b32 s37, s36, 7
    s_lshr_b32 s36, s36, 3
    s_and_b32 s38, s36, 1               ; hf
    s_lshr_b32 s36, s36, 1
    s_lshl_b32 s37, s37, 3
    s_add_u32 s36, s36, s37
    s_lshl_b32 s39, s36, 15
    ; S loads
    v_lshrrev_b32 v2, 4, v1
    v_and_b32 v3, 15, v1
    s_lshl_b32 s40, s3, 12
    s_add_u32 s40, s40, s39
    v_lshlrev_b32 v4, 10, v2
    v_lshl_add_u32 v4, v3, 4, v4
    v_add_u32 v4, s40, v4
    v_and_b32 v5, 3, v1
    v_lshrrev_b32 v6, 2, v1
    s_lshl_b32 s41, s38, 8
    s_lshl_b32 s42, s3, 5
    s_add_u32 s41, s41, s42
    s_lshl_b32 s42, s41, 1
    s_add_u32 s42, s42, s39
    v_lshlrev_b32 v7, 13, v5
    v_lshl_add_u32 v7, v6, 2, v7
    v_add_u32 v7, s42, v7
    v_add_u32 v8, 4096, v7
    s_waitcnt lgkmcnt(0)
    global_load_dwordx4 v[16:19], v4, s[16:17]
    global_load_dwordx4 v[20:23], v4, s[16:17] offset:256
    global_load_dwordx4 v[24:27], v4, s[16:17] offset:512
    global_load_dwordx4 v[28:31], v4, s[16:17] offset:768
    """)
    for e in range(8):
        a(f"global_load_dword v{32+e}, v{7 if e < 4 else 8}, s[16:17] offset:{(e%4)*1024}")
    srd(a, 8, 4, WS_USED if not STAMP else 0x2000000)
    a(f"""
    v_lshl_add_u32 v9, v6, 1, s41
    v_mul_u32_u24 v9, {RS}, v9
    v_lshl_add_u32 v9, v5, 4, v9
    s_lshl_b32 s43, s36, 6
    v_add_u32 v9, s43, v9
    s_lshl_b32 s44, s3, 5
    v_lshl_add_u32 v10, v2, 3, s44
    v_lshlrev_b32 v11, 6, v5
    v_mov_b32 v12, 0
    v_mov_b32 v13, 0
    v_mov_b32 v14, 0
    v_mov_b32 v15, 0
    s_mov_b32 s45, 0x3f803f80
    s_mov_b32 s46, 0x05040100
    s_mov_b32 s47, 0x07060302
    s_mov_b32 s48, {UT+256}
    s_mov_b32 s49, {UT+256+RS}
    s_mov_b32 s50, {XT}
    s_mov_b32 s51, {XT+RS}
    """)
    for k in range(4):
        a(f"s_waitcnt vmcnt({11-k})")
        for j in range(4):
            r = 16 + 4 * k + j
            a(f"v_dot2_f32_bf16 v{12+(j&1)}, v{r}, s45, v{12+(j&1)}")
            a(f"v_dot2_f32_bf16 v{14+(j&1)}, v{r}, v{r}, v{14+(j&1)}")
    stamp_mid(a, 99)
    a("v_add_f32 v12, v12, v13\nv_add_f32 v14, v14, v15")
    for sh in (8, 4, 2, 1):
        a(f"v_add_f32_dpp v12, v12, v12 row_ror:{sh} row_mask:0xf bank_mask:0xf")
        a(f"v_add_f32_dpp v14, v14, v14 row_ror:{sh} row_mask:0xf bank_mask:0xf")
    row_stats(a, 12, 14, 16, 17, 13)
    a(f"""
    ds_write_b64 v10, v[16:17]
    s_waitcnt vmcnt(0)
    """)
    stamp_mid(a, 95)
    for k in range(4):
        a(f"v_perm_b32 v{72+k}, v{32+2*k+1}, v{32+2*k}, s46")
        a(f"v_perm_b32 v{76+k}, v{32+2*k+1}, v{32+2*k}, s47")
    a(f"""
    buffer_store_dwordx4 v[72:75], v9, s[8:11], s50 offen
    buffer_store_dwordx4 v[76:79], v9, s[8:11], s51 offen
    """)
    for e in range(8):
        a(f"v_lshlrev_b32 v{40+e}, 16, v{32+e}")
        a(f"v_and_b32 v{48+e}, 0xffff0000, v{32+e}")
    a("s_waitcnt lgkmcnt(0)\ns_barrier")
    stamp_mid(a, 91)
    for k in range(4):
        a(f"ds_read_b128 {vr(16+4*k,4)}, v11 offset:{16*k}")
    for k in range(4):
        a(f"s_waitcnt lgkmcnt({3-k})")
        m0, r0, m1, r1 = 16 + 4 * k, 17 + 4 * k, 18 + 4 * k, 19 + 4 * k
        for c, base in enumerate((40, 48)):
            x0, x1 = base + 2 * k, base + 2 * k + 1
            o = 64 + 4 * c + k
            a(f"""
            v_sub_f32 v{x0}, v{x0}, v{m0}
            v_sub_f32 v{x1}, v{x1}, v{m1}
            v_cvt_pk_bf16_f32 v{x0}, v{x0}, v{x1}
            v_and_b32 v{x1}, 0xffff0000, v{x0}
            v_lshlrev_b32 v{x0}, 16, v{x0}
            v_mul_f32 v{x1}, v{x1}, v{r1}
            v_mul_f32 v{x0}, v{x0}, v{r0}
            v_cvt_pk_bf16_f32 v{o}, v{x0}, v{x1}
            """)
    a(f"""
    buffer_store_dwordx4 v[64:67], v9, s[8:11], s48 offen
    buffer_store_dwordx4 v[68:71], v9, s[8:11], s49 offen
    """)
    stamp_mid(a, 90)
    a("s_branch K1_done")
    a.label("K1_prep")
    a(f"""
    s_cmp_ge_u32 s2, {N_KG + N_LN + N_W1 + N_W2}
    s_cbranch_scc1 K1_pf
    v_and_b32 v2, 15, v1                ; p
    v_bfe_u32 v3, v1, 4, 1              ; h
    v_lshrrev_b32 v4, 5, v1             ; kk
    s_mov_b32 s46, 0x05040100
    s_mov_b32 s47, 0x07060302
    s_mov_b32 s45, 0x3f803f80
    v_lshlrev_b32 v6, 10, v4
    v_lshl_add_u32 v6, v3, 9, v6
    v_lshl_add_u32 v6, v2, 5, v6
    s_waitcnt lgkmcnt(0)
    """)
    srd(a, 8, 4, WS_USED if not STAMP else 0x2000000)
    a(f"""
    s_cmp_ge_u32 s2, {N_KG + N_LN + N_W1}
    s_cbranch_scc1 K1_w2
    s_sub_u32 s36, s2, {N_KG + N_LN}
    """)
    srd(a, 12, 32, 512 * 1792 * 2)
    a(f"""
    v_lshlrev_b32 v5, 1, v4
    v_add_u32 v5, v5, v3                ; 2kk+h
    v_mul_u32_u24 v5, {8*3584}, v5
    v_lshl_add_u32 v5, v2, 2, v5
    s_mul_i32 s37, s3, {64*3584}
    s_lshl_b32 s38, s36, 6
    s_add_u32 s37, s37, s38
    v_add_u32 v5, s37, v5
    v_add_u32 v7, {32*3584}, v5         ; pass1
    s_lshl_b32 s38, s36, 15
    s_lshl_b32 s39, s3, 12
    s_add_u32 s38, s38, s39
    s_add_u32 s38, s38, {W1P:#x}
    v_add_u32 v6, s38, v6
    """)
    for e in range(8): a(f"s_mov_b32 s{52+e}, {e*3584}")
    a("s_branch K1_prep_go")
    a.label("K1_w2")
    a(f"""
    s_sub_u32 s36, s2, {N_KG + N_LN + N_W1}
    """)
    srd(a, 12, 34, 512 * 1792 * 2)
    a(f"""
    s_lshl_b32 s37, s36, 3
    s_add_u32 s37, s37, s3              ; pair index 0..447 ; dblk = /28 ; jj = %28
    s_mul_i32 s38, s37, 2341
    s_lshr_b32 s38, s38, 16             ; /28
    s_mul_i32 s39, s38, 28
    s_sub_u32 s39, s37, s39
    v_lshlrev_b32 v5, 14, v4
    v_lshl_add_u32 v5, v3, 12, v5       ; h*4 rows
    v_lshl_add_u32 v5, v2, 2, v5
    s_lshl_b32 s40, s39, 16
    s_lshl_b32 s41, s38, 6
    s_add_u32 s40, s40, s41
    v_add_u32 v5, s40, v5
    v_add_u32 v7, {32*1024}, v5
    s_lshl_b32 s40, s37, 12
    s_add_u32 s40, s40, {W2P:#x}
    v_add_u32 v6, s40, v6
    """)
    for e in range(8): a(f"s_mov_b32 s{52+e}, {((e&3) + 8*(e>>2))*1024}")
    a.label("K1_prep_go")
    for ps in range(2):
        for e in range(8):
            a(f"buffer_load_dword v{16+8*ps+e}, v{5 if ps==0 else 7}, s[12:15], s{52+e} offen")
    a("v_mov_b32 v12, 0\nv_mov_b32 v13, 0")
    for ps in range(2):
        a(f"s_waitcnt vmcnt({8 if ps==0 else 2})")
        stamp_mid(a, 99 if ps == 0 else 95)
        o = 32 + 8 * ps
        for k in range(4):
            a(f"v_perm_b32 v{o+k}, v{16+8*ps+2*k+1}, v{16+8*ps+2*k}, s46")
            a(f"v_perm_b32 v{o+4+k}, v{16+8*ps+2*k+1}, v{16+8*ps+2*k}, s47")
        a(f"buffer_store_dwordx4 {vr(o,4)}, v6, s[8:11], 0 offen offset:{2048*ps}")
        a(f"buffer_store_dwordx4 {vr(o+4,4)}, v6, s[8:11], 0 offen offset:{2048*ps+16}")
    a(f"""
    s_cmp_ge_u32 s2, {N_KG + N_LN + N_W1}
    s_cbranch_scc1 K1_done
    """)
    for ps in range(2):
        o = 32 + 8 * ps
        for k in range(4):
            a(f"v_dot2_f32_bf16 v12, v{o+k}, s45, v12")
            a(f"v_dot2_f32_bf16 v13, v{o+4+k}, s45, v13")
    a(f"""
    v_lshlrev_b32 v8, 3, v0
    ds_write_b64 v8, v[12:13]
    s_waitcnt lgkmcnt(0)
    s_barrier
    s_cmp_lg_u32 s3, 0
    s_cbranch_scc1 K1_done
    v_and_b32 v8, 31, v1
    v_lshlrev_b32 v8, 2, v8
    v_lshl_add_u32 v9, v4, 11, v8
    """)
    for k in range(16):
        a(f"ds_read_b32 v{16+k}, v9 offset:{128*k}")
    a("s_waitcnt lgkmcnt(0)")
    for st in (8, 4, 2, 1):
        for k in range(st): a(f"v_add_f32 v{16+k}, v{16+k}, v{16+k+st}")
    a(f"""
    v_mov_b32 v17, v16
    v_permlane32_swap_b32 v16, v17
    v_add_f32 v16, v16, v17
    s_lshl_b32 s37, s36, 7
    s_add_u32 s37, s37, {CS:#x}
    v_add_u32 v8, s37, v8
    buffer_store_dword v16, v8, s[8:11], 0 offen
    """)
    a("s_branch K1_done")
    a.label("K1_pf")
    a(f"""
    s_load_dwordx2 s[36:37], s[0:1], 64
    s_load_dwordx2 s[38:39], s[0:1], 88
    s_load_dwordx4 s[40:43], s[0:1], 104
    s_getpc_b64 s[44:45]
    K1_pc:
    s_add_u32 s44, s44, k2_kernel-K1_pc
    s_addc_u32 s45, s45, 0
    v_lshlrev_b32 v2, 4, v0
    v_add_u32 v3, 8192, v2
    v_add_u32 v4, 16384, v2
    v_mov_b32 v5, K_END-k2_kernel-16
    v_min_u32 v2, v2, v5
    v_min_u32 v3, v3, v5
    v_min_u32 v4, v4, v5
    global_load_dwordx4 v[8:11], v2, s[44:45]
    global_load_dwordx4 v[12:15], v3, s[44:45]
    global_load_dwordx4 v[16:19], v4, s[44:45]
    s_waitcnt lgkmcnt(0)
    """)
    srd(a, 8, 4, WS_USED if not STAMP else 0x2000000)
    a(f"""
    v_lshlrev_b32 v6, 16, v0
    buffer_load_dword v20, v6, s[8:11], 0 offen
    v_lshlrev_b32 v7, 12, v0
    global_load_dword v21, v7, s[42:43]
    v_lshlrev_b32 v7, 1, v0
    global_load_ushort v22, v7, s[36:37]
    global_load_ushort v23, v7, s[40:41]
    v_lshlrev_b32 v7, 2, v0
    global_load_dword v24, v7, s[38:39]
    global_load_dword v25, v7, s[38:39] offset:1536
    s_waitcnt vmcnt(0)
    """)
    a.label("K1_done")
    stamp_end(a, 0, 8)
    a.label("K1_exit")
    a("s_endpgm")

def kd(name, vgpr, accum=None, sgpr=102):
    accum = accum or ((vgpr + 3) // 4 * 4)
    return f""".p2align 6
.amdhsa_kernel {name}
  .amdhsa_next_free_vgpr {vgpr}
  .amdhsa_next_free_sgpr {sgpr}
  .amdhsa_accum_offset {accum}
  .amdhsa_group_segment_fixed_size 0
  .amdhsa_kernarg_size 136
  .amdhsa_user_sgpr_count 2
  .amdhsa_user_sgpr_kernarg_segment_ptr 1
  .amdhsa_system_sgpr_workgroup_id_x 1
.end_amdhsa_kernel
"""

KC_STR = 4160
UC_STR = 4576
K2_CH = 4 * KC_STR + 2 * UC_STR + 64
K2_CH = (K2_CH + 255) // 256 * 256
K2_LDS = 2 * K2_CH
def k2(a):
    a.reset()
    a.raw(".p2align 8\nk2_kernel:")
    stamp_begin(a)
    a(f"""
    s_cmp_ge_u32 s2, 256
    s_cbranch_scc1 K2_exit
    s_load_dwordx2 s[4:5], s[0:1], 128
    s_load_dwordx2 s[6:7], s[0:1], 64
    v_lshrrev_b32 v2, 6, v0
    v_and_b32 v1, 63, v0
    v_readfirstlane_b32 s3, v2
    v_lshlrev_b32 v3, 4, v1             ; lane*16
    s_mov_b32 s98, s2
    s_mov_b32 s94, s3
    s_lshr_b32 s16, s3, 1               ; ch_local
    s_and_b32 s17, s3, 1                ; par
    s_lshl_b32 s18, s2, 1
    s_add_u32 s18, s18, s16             ; d
    s_mul_i32 s19, s16, {K2_CH}
    s_mul_i32 s20, s18, {2*RS}
    s_add_u32 s20, s20, {KG+4:#x}
    s_lshl_b32 s21, s17, 2
    s_sub_u32 s20, s20, s21
    s_add_u32 s21, s20, {RS}
    s_mul_i32 s22, s18, {RS}
    s_lshl_b32 s23, s17, 3
    s_add_u32 s23, s23, s22
    s_add_u32 s23, s23, {UT+256-8}
    s_mul_i32 s24, s17, {2*KC_STR}
    s_add_u32 s24, s24, s19
    s_add_u32 s25, s24, {KC_STR}
    s_mul_i32 s26, s17, {UC_STR}
    s_add_u32 s26, s26, s19
    s_add_u32 s26, s26, {4*KC_STR}
    s_add_u32 s27, s26, 448
    s_waitcnt lgkmcnt(0)
    """)
    srd(a, 8, 4, WS_USED if not STAMP else 0x2000000)
    for (dst, src) in ((27, 23), (24, 20), (25, 21)):
        a(f"s_mov_b32 m0, s{dst}")
        for k in range(4):
            a(f"buffer_load_dwordx4 v3, s[8:11], s{src} offen offset:{1024*k} lds")
    a(f"""
    v_and_b32 v4, 15, v1                ; i / j
    v_lshrrev_b32 v5, 4, v1             ; h
    v_lshrrev_b32 v6, 1, v4
    v_lshlrev_b32 v6, 6, v6
    v_lshl_add_u32 v6, v5, 4, v6        ; 64*(j>>1)+16h
    v_and_b32 v7, 1, v4
    v_lshl_add_u32 v8, v7, 3, v6
    s_lshl_b32 s28, s18, 1
    v_mov_b32 v9, s28
    global_load_ushort v10, v9, s[6:7]
    s_lshl_b32 s28, s17, 10
    s_sub_u32 s29, {6*512}, s28
    s_add_u32 s30, s22, {XT:#x}
    s_add_u32 s31, s30, s29
    s_add_u32 s30, s30, s28
    buffer_load_dwordx2 v[12:13], v8, s[8:11], s31 offen offset:512
    buffer_load_dwordx2 v[14:15], v8, s[8:11], s31 offen
    buffer_load_dwordx2 v[16:17], v8, s[8:11], s30 offen offset:512
    buffer_load_dwordx2 v[18:19], v8, s[8:11], s30 offen
    v_mov_b32 v20, 0
    v_mov_b32 v21, 0
    v_mov_b32 v22, 0
    v_mov_b32 v23, 0
    v_add_u32 v9, s26, v3
    s_add_u32 s32, s24, {4096-28*16}
    v_add_u32 v11, s32, v3
    v_cmp_lt_u32 vcc, 27, v1
    v_cndmask_b32 v9, v9, v11, vcc
    s_add_u32 s32, s25, {4096-31*16}
    v_add_u32 v11, s32, v3
    v_cmp_lt_u32 vcc, 30, v1
    v_cndmask_b32 v9, v9, v11, vcc
    s_mov_b32 exec_hi, 3
    ds_write_b128 v9, v[20:23]
    s_mov_b32 exec_hi, -1
    v_and_b32 v9, 3, v4
    v_mul_u32_u24 v9, {KC_STR}, v9
    v_lshrrev_b32 v11, 2, v4
    v_sub_u32 v11, v5, v11
    v_lshlrev_b32 v11, 4, v11
    v_add3_u32 v24, v9, v11, s19
    v_add_u32 v24, 48, v24              ; A base
    v_mul_u32_u24 v9, {UC_STR}, v7
    v_add3_u32 v25, v9, v6, s19
    v_add_u32 v25, {4*KC_STR}, v25      ; B base
    s_add_u32 s32, s19, {4*KC_STR+UC_STR+448}
    s_add_u32 s33, s32, s29
    s_add_u32 s32, s32, s28
    v_add_u32 v26, s33, v8
    v_add_u32 v27, s32, v8
    s_add_u32 s34, s22, {HT:#x}
    s_add_u32 s35, s34, s29
    s_add_u32 s34, s34, s28
    s_waitcnt vmcnt(5) lgkmcnt(0)
    s_barrier
    """)
    stamp_mid(a, 99)
    a(f"""
    ds_read_b64 v[28:29], v26 offset:512
    ds_read_b64 v[30:31], v26
    ds_read_b64 v[32:33], v27 offset:512
    ds_read_b64 v[34:35], v27
    s_cmp_eq_u32 s17, 1
    s_cbranch_scc1 K2_par1
    """)
    ACC = 40
    FA = [64, 128]; FB = [96, 160]
    def body(tiles):
        n = tiles[0] + 1
        def loads(r):
            bf = r & 1
            L = []
            for k in range(n):
                L.append(f"ds_read_b128 {vr(FA[bf]+4*k,4)}, v24 offset:{(7-k)*512+(7-r)*64}")
                L.append(f"ds_read_b128 {vr(FB[bf]+4*k,4)}, v25 offset:{k*512+(7-r)*64}")
            return L
        def mfmas(r):
            bf = r & 1
            M = []
            prs = [(ti, b, aa, b - aa) for ti, b in enumerate(tiles) for aa in range(b + 1)]
            prs.sort(key=lambda p: (max(p[2], p[3]), p[0]))
            first = set()
            for ti, b, aa, c in prs:
                cin = vr(ACC + 4 * ti, 4)
                if r == 0 and ti not in first: cin = "0"; first.add(ti)
                M.append((max(aa, c), f"v_mfma_f32_16x16x32_bf16 {vr(ACC+4*ti,4)}, {vr(FA[bf]+4*aa,4)}, {vr(FB[bf]+4*c,4)}, {cin}"))
            return M
        for l in loads(0): a(l)
        for r in range(8):
            nxt = loads(r + 1) if r < 7 else []
            M = mfmas(r)
            issued = 0
            cur_need = -1
            for idx, (k, m) in enumerate(M):
                if k > cur_need:
                    cur_need = k
                    outstanding_allowed = 2 * (n - 1 - k) + issued
                    a(f"s_waitcnt lgkmcnt({min(outstanding_allowed, 15)})")
                a(m)
                while issued < len(nxt) and 2 * (n - 1 - cur_need) + issued + 1 <= 15 and issued < (idx + 1) * len(nxt) // len(M) + 1:
                    a(nxt[issued]); issued += 1
            while issued < len(nxt):
                a(nxt[issued]); issued += 1
    body([7, 6, 1, 0])
    a("s_branch K2_epi")
    a.label("K2_par1")
    body([5, 4, 3, 2])
    a.label("K2_epi")
    stamp_mid(a, 95)
    a(f"""
    s_waitcnt vmcnt(0) lgkmcnt(0)
    v_lshlrev_b32 v10, 16, v10
    s_nop 4
    """)
    for ti in range(4):
        y, u, x, t = ACC + 4 * ti, 28 + 2 * ti, 12 + 2 * ti, 64 + 16 * ti
        for hf in range(2):
            q = t + 8 * hf
            a(f"""
            v_lshlrev_b32 v{q}, 16, v{u+hf}
            v_and_b32 v{q+1}, 0xffff0000, v{u+hf}
            v_cvt_pk_bf16_f32 v{q+2}, v{y+2*hf}, v{y+2*hf+1}
            v_mul_f32 v{q}, v{q}, v10
            v_mul_f32 v{q+1}, v{q+1}, v10
            v_and_b32 v{q+3}, 0xffff0000, v{q+2}
            v_cvt_pk_bf16_f32 v{q}, v{q}, v{q+1}
            v_lshlrev_b32 v{q+2}, 16, v{q+2}
            v_and_b32 v{q+1}, 0xffff0000, v{q}
            v_lshlrev_b32 v{q}, 16, v{q}
            v_add_f32 v{q+1}, v{q+1}, v{q+3}
            v_add_f32 v{q}, v{q}, v{q+2}
            v_lshlrev_b32 v{q+2}, 16, v{x+hf}
            v_cvt_pk_bf16_f32 v{q}, v{q}, v{q+1}
            v_and_b32 v{q+3}, 0xffff0000, v{x+hf}
            v_and_b32 v{q+1}, 0xffff0000, v{q}
            v_lshlrev_b32 v{q}, 16, v{q}
            v_add_f32 v{q+1}, v{q+1}, v{q+3}
            v_add_f32 v{q}, v{q}, v{q+2}
            v_cvt_pk_bf16_f32 v{56+2*ti+hf}, v{q}, v{q+1}
            """)
        a(f"buffer_store_dwordx2 {vr(56+2*ti,2)}, v8, s[8:11], s{35 if ti < 2 else 34} offen offset:{512 if ti%2==0 else 0}")
    stamp_end(a, 1, 8)
    a.label("K2_exit")
    a("s_endpgm")

K3_LDS = 131072 + 1024
K3_PRE = 3
def k3(a):
    a.reset()
    a.raw(".p2align 8\nk3_kernel:")
    stamp_begin(a)
    a(f"""
    s_cmp_ge_u32 s2, 224
    s_cbranch_scc1 K3_exit
    s_load_dwordx2 s[4:5], s[0:1], 128
    s_load_dwordx2 s[6:7], s[0:1], 88
    v_lshrrev_b32 v2, 6, v0
    v_and_b32 v1, 63, v0
    v_readfirstlane_b32 s3, v2
    v_lshlrev_b32 v3, 4, v1             ; lane*16
    s_mov_b32 s98, s2
    s_mov_b32 s94, s3
    s_and_b32 s16, s2, 7
    s_lshr_b32 s17, s2, 3               ; k 0..27
    s_mul_i32 s18, s17, 37
    s_lshr_b32 s18, s18, 8              ; k/7
    s_mul_i32 s19, s18, 7
    s_sub_u32 s19, s17, s19             ; k%7
    s_lshr_b32 s20, s16, 1
    s_lshl_b32 s20, s20, 2
    s_add_u32 s20, s20, s18             ; rb
    s_and_b32 s21, s16, 1
    s_mul_i32 s21, s21, 7
    s_add_u32 s21, s21, s19             ; ft
    s_lshl_b32 s21, s21, 2
    s_add_u32 s21, s21, s3              ; fb
    v_lshrrev_b32 v4, 4, v1             ; r4 / g
    v_and_b32 v5, 15, v1
    v_lshlrev_b32 v6, 2, v4
    v_xor_b32 v5, v5, v6
    v_mul_u32_u24 v6, {RS}, v4
    v_lshl_add_u32 v5, v5, 4, v6
    s_mul_i32 s22, s3, {16*RS}
    s_lshl_b32 s23, s20, 8
    s_add_u32 s22, s22, s23
    s_add_u32 s22, s22, {HT:#x}
    s_lshl_b32 s23, s3, 12              ; m0 value
    s_lshl_b32 s24, s21, 15
    s_add_u32 s24, s24, {W1P:#x}        ; W1P soffset
    s_waitcnt lgkmcnt(0)
    """)
    srd(a, 8, 4, WS_USED if not STAMP else 0x2000000)
    WF = 0
    def chunk_loads(c):
        L = []
        for k in range(4):
            adv_s = 4 * RS if k < 3 else 52 * RS
            adv_m = 1024 if k < 3 else 16384 - 3072
            L.append([f"s_mov_b32 m0, s23", f"s_add_u32 s23, s23, {adv_m}",
                      f"buffer_load_dwordx4 v5, s[8:11], s22 offen lds", f"s_add_u32 s22, s22, {adv_s}"])
        for k in range(4):
            x = [f"buffer_load_dwordx4 {ar(WF+16*c+4*k,4)}, v3, s[8:11], s24 offen offset:{1024*k}"]
            if k == 3: x.append("s_add_u32 s24, s24, 4096")
            L.append(x)
        return L
    for c in range(K3_PRE):
        for x in chunk_loads(c): a("\n".join(x))
    a(f"""
    v_lshrrev_b32 v6, 5, v1             ; hh
    s_lshl_b32 s25, s21, 7
    s_add_u32 s25, s25, {CS:#x}
    v_lshlrev_b32 v7, 4, v6
    s_lshl_b32 s26, s21, 6
    v_lshl_add_u32 v8, v6, 3, s26
    v_bfe_u32 v9, v1, 2, 2              ; r
    v_and_b32 v10, 3, v1                ; c4
    v_and_b32 v11, 1, v4                ; th
    v_lshl_add_u32 v12, v6, 3, v9       ; 8h + r
    v_lshlrev_b32 v12, 8, v12
    v_lshl_add_u32 v12, v11, 5, v12
    v_lshl_add_u32 v12, v10, 3, v12
    v_xor_b32 v9, s3, v9                ; w ^ r
    v_lshl_add_u32 v16, v9, 6, v12      ; base(qq=0)
    v_xor_b32 v17, 64, v16
    v_xor_b32 v18, 128, v16
    v_xor_b32 v19, 192, v16
    v_mov_b32 v14, 0x3f803f80
    v_mov_b32 v15, 0x3f803f80
    """)
    ACC = 64
    SQ, SM = 24, 28
    FR = [32, 48]
    def reads(s):
        bf = s & 1
        return [f"ds_read_b64_tr_b16 {vr(FR[bf]+4*q+2*hf,2)}, v{16+q} offset:{(s%16)*4096+hf*1024}" for q in range(4) for hf in range(2)]
    vm_issued = 8 * K3_PRE
    def wait_chunk(c, issued):
        return f"s_waitcnt vmcnt({issued - 8*(c+1)})"
    a(wait_chunk(0, vm_issued)); a("s_barrier")
    stamp_mid(a, 99)
    for x in reads(0): a(x)
    extra = []
    for s in range(32):
        c, ks = s // 4, s % 4
        bf = s & 1
        nl = chunk_loads(c + K3_PRE)[2*ks:2*ks+2] if c + K3_PRE < 8 else []
        pre = []
        if s + 1 < 32:
            if (s + 1) % 4 == 0:
                pre = [wait_chunk(c + 1, vm_issued), "s_barrier"]
            if s + 1 == 16:
                pre = pre + [f"v_add_u32 v{16+q}, 0x10000, v{16+q}" for q in range(4)]
            rd = reads(s + 1)
        else: rd = []
        wf = ar(WF + 4 * s, 4)
        z = s == 0
        f0 = FR[bf]
        a("s_waitcnt lgkmcnt(6)")
        a(f"v_mfma_f32_32x32x16_bf16 {vr(ACC,16)}, {wf}, {vr(f0,4)}, {'0' if z else vr(ACC,16)}")
        a("s_waitcnt lgkmcnt(0)")
        for x in pre: a(x)
        a(f"v_mfma_f32_4x4x4_16b_bf16 {vr(SQ,4)}, {vr(f0,2)}, {vr(f0,2)}, {'0' if z else vr(SQ,4)}")
        a(f"v_mfma_f32_4x4x4_16b_bf16 {vr(SM,4)}, v[14:15], {vr(f0,2)}, {'0' if z else vr(SM,4)}")
        for x in rd[0:3]: a(x)
        a(f"v_mfma_f32_32x32x16_bf16 {vr(ACC+16,16)}, {wf}, {vr(f0+4,4)}, {'0' if z else vr(ACC+16,16)}")
        for x in rd[3:6]: a(x)
        a(f"v_mfma_f32_4x4x4_16b_bf16 {vr(SQ,4)}, {vr(f0+2,2)}, {vr(f0+2,2)}, {vr(SQ,4)}")
        a(f"v_mfma_f32_4x4x4_16b_bf16 {vr(SM,4)}, v[14:15], {vr(f0+2,2)}, {vr(SM,4)}")
        a(f"v_mfma_f32_32x32x16_bf16 {vr(ACC+32,16)}, {wf}, {vr(f0+8,4)}, {'0' if z else vr(ACC+32,16)}")
        for x in rd[6:8]: a(x)
        if nl: a("\n".join(nl[0])); vm_issued += 1
        a(f"v_mfma_f32_32x32x16_bf16 {vr(ACC+48,16)}, {wf}, {vr(f0+12,4)}, {'0' if z else vr(ACC+48,16)}")
        if nl: a("\n".join(nl[1])); vm_issued += 1
        if s == 24:
            for g in range(4):
                a(f"buffer_load_dwordx4 {vr(128+4*g,4)}, v7, s[8:11], s25 offen offset:{32*g}")
                a(f"global_load_dwordx2 {vr(160+2*g,2)}, v8, s[6:7] offset:{16*g}")
            vm_issued += 8
    stamp_mid(a, 95)
    a(f"""
    v_cmp_eq_u32 vcc, 1, v10
    v_cmp_eq_u32 s[28:29], 2, v10
    v_cmp_eq_u32 s[30:31], 3, v10
    v_cndmask_b32 v{SQ}, v{SQ}, v{SQ+1}, vcc
    v_cndmask_b32 v{SQ}, v{SQ}, v{SQ+2}, s[28:29]
    v_cndmask_b32 v{SQ}, v{SQ}, v{SQ+3}, s[30:31]
    v_mov_b32 v{SQ+1}, v{SQ}
    v_permlane32_swap_b32 v{SM}, v{SM+1}
    v_permlane32_swap_b32 v{SQ}, v{SQ+1}
    v_add_f32 v{SM}, v{SM}, v{SM+1}
    v_add_f32 v{SQ}, v{SQ}, v{SQ+1}
    """)
    row_stats(a, SM, SQ, 20, 21, 22)
    a(f"""
    v_mul_f32 v20, -v20, v21            ; -m*rinv
    v_and_b32 v9, 31, v1
    v_lshlrev_b32 v9, 3, v9
    s_lshl_b32 s27, s3, 8
    s_add_u32 s27, s27, 131072
    v_add_u32 v9, s27, v9
    ds_write_b64 v9, v[20:21]
    v_xor_b32 v11, 256, v9
    v_xor_b32 v12, 512, v9
    v_xor_b32 v13, 768, v9
    s_waitcnt vmcnt(0)
    """)
    for g in range(4):
        for k in range(2):
            a(f"v_lshlrev_b32 v{144+4*g+2*k}, 16, v{160+2*g+k}")
            a(f"v_and_b32 v{144+4*g+2*k+1}, 0xffff0000, v{160+2*g+k}")
    a(f"""
    s_waitcnt lgkmcnt(0)
    s_barrier
    ds_read_b64 v[22:23], v11
    ds_read_b64 v[24:25], v12
    ds_read_b64 v[26:27], v13
    s_lshl_b32 s28, s20, 2
    s_lshl_b32 s29, s21, 11
    s_add_u32 s29, s29, {HF:#x}
    """)
    for q in range(4):
        a(f"""
        s_xor_b32 s30, s3, {q}
        s_add_u32 s30, s30, s28
        s_mul_i32 s30, s30, {112*1024}
        s_add_u32 s{32+q}, s30, s29
        """)
    for q in range(4):
        st = 20 + 2 * q
        if q == 1: a("s_waitcnt lgkmcnt(0)")
        A = ACC + 16 * q
        for k in range(0, 16, 2):
            a(f"v_pk_fma_f32 {vr(A+k,2)}, {vr(A+k,2)}, {vr(st,2)}, {vr(144+k,2)} op_sel:[0,1,0] op_sel_hi:[1,1,1]")
        for k in range(0, 16, 2):
            a(f"v_pk_fma_f32 {vr(A+k,2)}, {vr(128+k,2)}, {vr(st,2)}, {vr(A+k,2)} op_sel_hi:[1,0,1]")
        for k in range(16):
            a(f"v_max_f32 v{A+k}, 0, v{A+k}")
        for k in range(0, 16, 2):
            a(f"v_pk_mul_f32 {vr(A+k,2)}, {vr(A+k,2)}, {vr(A+k,2)}")
        o = 32 + 8 * q
        for k in range(8):
            a(f"v_cvt_pk_bf16_f32 v{o+k}, v{A+2*k}, v{A+2*k+1}")
        a(f"buffer_store_dwordx4 {vr(o,4)}, v3, s[8:11], s{32+q} offen")
        a(f"buffer_store_dwordx4 {vr(o+4,4)}, v3, s[8:11], s{32+q} offen offset:1024")
    stamp_end(a, 2, 8)
    a.label("K3_exit")
    a("s_endpgm")

K4_LDS = 49152
K4_R = 7
def k4(a):
    a.reset()
    a.raw(".p2align 8\nk4_kernel:")
    stamp_begin(a)
    a(f"""
    s_cmp_ge_u32 s2, 256
    s_cbranch_scc1 K4_exit
    s_load_dwordx2 s[4:5], s[0:1], 128
    s_load_dwordx4 s[12:15], s[0:1], 104   ; b2, out
    v_lshrrev_b32 v2, 6, v0
    v_and_b32 v1, 63, v0
    v_readfirstlane_b32 s3, v2
    v_lshlrev_b32 v3, 4, v1             ; lane*16
    s_mov_b32 s98, s2
    s_mov_b32 s94, s3
    s_and_b32 s16, s2, 7
    s_lshr_b32 s17, s2, 3               ; k 0..31
    s_lshr_b32 s18, s16, 1
    s_lshl_b32 s18, s18, 3
    s_lshr_b32 s19, s17, 2
    s_add_u32 s18, s18, s19             ; tt
    s_and_b32 s19, s16, 1
    s_lshl_b32 s19, s19, 2
    s_and_b32 s20, s17, 3
    s_add_u32 s19, s19, s20             ; dt
    s_lshr_b32 s20, s3, 1
    s_and_b32 s21, s3, 1
    s_lshl_b32 s22, s18, 1
    s_add_u32 s22, s22, s20
    s_lshl_b32 s23, s19, 1
    s_add_u32 s23, s23, s21
    s_mul_i32 s24, s3, {28*1024}
    s_mul_i32 s25, s22, {112*1024}
    s_add_u32 s25, s25, s24
    s_add_u32 s25, s25, {HF:#x}         ; H stream 0
    s_xor_b32 s26, s22, 1
    s_mul_i32 s26, s26, {112*1024}
    s_add_u32 s26, s26, s24
    s_add_u32 s26, s26, {HF:#x}         ; H stream 1
    s_mul_i32 s27, s23, {112*1024}
    s_add_u32 s27, s27, s24
    s_add_u32 s27, s27, {W2P:#x}        ; W stream 0
    s_xor_b32 s28, s23, 1
    s_mul_i32 s28, s28, {112*1024}
    s_add_u32 s28, s28, s24
    s_add_u32 s28, s28, {W2P:#x}        ; W stream 1
    s_waitcnt lgkmcnt(0)
    """)
    srd(a, 8, 4, WS_USED if not STAMP else 0x2000000)
    ACC = 32
    FB = 96
    def loads(s):
        b = FB + 16 * (s % K4_R)
        L = [f"buffer_load_dwordx4 {vr(b+4*k,4)}, v3, s[8:11], s{25+k} offen offset:{(s%4)*1024}" for k in (0, 2, 1, 3)]
        if s % 4 == 3: L += [f"s_add_u32 s{25+k}, s{25+k}, 4096" for k in range(4)]
        return L
    for s in range(K4_R - 1):
        for x in loads(s): a(x)
    issued = 4 * (K4_R - 1)
    srd(a, 36, 14, 2048 * 512 * 2)
    a(f"""
    v_and_b32 v4, 31, v1                ; d local
    v_lshrrev_b32 v5, 5, v1             ; hh
    s_lshl_b32 s29, s23, 5
    v_add_u32 v6, s29, v4               ; d
    v_mul_u32_u24 v7, {RS}, v6
    v_lshl_add_u32 v7, v5, 3, v7
    s_lshl_b32 s30, s22, 6
    s_add_u32 s30, s30, {HT:#x}
    v_lshlrev_b32 v6, 1, v6             ; d*2
    v_lshl_add_u32 v8, v5, 12, v6
    s_lshl_b32 s31, s22, 15
    s_mul_i32 s32, s3, 12288
    v_add_u32 v9, s32, v3
    """)
    for ql in (1, 2, 3):
        a(f"""
        s_xor_b32 s32, s3, {ql}
        s_mul_i32 s32, s32, 12288
        s_add_u32 s32, s32, {(ql-1)*4096}
        v_add_u32 v{9+ql}, s32, v3
        """)
    extra_at = 20
    for s in range(28):
        b = FB + 16 * (s % K4_R)
        nl = loads(s + K4_R - 1) if s + K4_R - 1 < 28 else []
        done_needed = 4 * s + 2 + (5 if (s > extra_at + K4_R - 1) else 0)
        z = s == 0
        def acc(q): return vr(ACC + 16 * q, 16)
        a(f"s_waitcnt vmcnt({issued - (4*s+2)})")
        a(f"v_mfma_f32_32x32x16_bf16 {acc(0)}, {vr(b,4)}, {vr(b+8,4)}, {'0' if z else acc(0)}")
        if nl: a(nl[0]); issued += 1
        a(f"s_waitcnt vmcnt({issued - (4*s+3)})")
        a(f"v_mfma_f32_32x32x16_bf16 {acc(2)}, {vr(b+4,4)}, {vr(b+8,4)}, {'0' if z else acc(2)}")
        if nl: a(nl[1]); issued += 1
        a(f"s_waitcnt vmcnt({issued - (4*s+4)})")
        a(f"v_mfma_f32_32x32x16_bf16 {acc(1)}, {vr(b,4)}, {vr(b+12,4)}, {'0' if z else acc(1)}")
        if nl: a(nl[2]); issued += 1
        a(f"v_mfma_f32_32x32x16_bf16 {acc(3)}, {vr(b+4,4)}, {vr(b+12,4)}, {'0' if z else acc(3)}")
        if nl:
            for x in nl[3:]: a(x)
            issued += 1
        if s == 28 - K4_R + 1:
            for g in range(4):
                a(f"buffer_load_dwordx2 {vr(16+2*g,2)}, v7, s[8:11], s30 offen offset:{16*g}")
            a("global_load_ushort v24, v6, s[12:13]")
            issued += 5
        if s == 0: stamp_mid(a, 99)
    stamp_mid(a, 95)
    for ql in (1, 2, 3):
        for k in range(4):
            a(f"ds_write_b128 v{9+ql}, {vr(ACC+16*ql+4*k,4)} offset:{1024*k}")
    a("s_waitcnt vmcnt(0)")
    a("v_lshlrev_b32 v24, 16, v24")
    for g in range(4):
        for k in range(2):
            a(f"v_lshlrev_b32 v{96+4*g+2*k}, 16, v{16+2*g+k}")
            a(f"v_and_b32 v{96+4*g+2*k+1}, 0xffff0000, v{16+2*g+k}")
    for k in range(16):
        a(f"v_add_f32 v{96+k}, v{96+k}, v24")
    for k in range(0, 16, 2):
        a(f"v_pk_add_f32 {vr(ACC+k,2)}, {vr(ACC+k,2)}, {vr(96+k,2)}")
    a("s_waitcnt lgkmcnt(0)\ns_barrier")
    for k in range(4):
        for sl in range(3):
            a(f"ds_read_b128 {vr(112+16*sl+4*k,4)}, v9 offset:{4096*sl+1024*k}")
    a("s_add_u32 s32, s31, 8192\ns_add_u32 s33, s31, 16384\ns_add_u32 s34, s31, 24576")
    for k in range(4):
        a(f"s_waitcnt lgkmcnt({9-3*k})")
        for j in (0, 2):
            r = 4 * k + j
            a(f"v_pk_add_f32 {vr(112+r,2)}, {vr(112+r,2)}, {vr(128+r,2)}")
            a(f"v_pk_add_f32 {vr(ACC+r,2)}, {vr(ACC+r,2)}, {vr(144+r,2)}")
            a(f"v_pk_add_f32 {vr(ACC+r,2)}, {vr(ACC+r,2)}, {vr(112+r,2)}")
            a(f"v_cvt_pk_bf16_f32 v{ACC+r}, v{ACC+r}, v{ACC+r+1}")
            a(f"buffer_store_short v{ACC+r}, v8, s[36:39], s{31+k} offen offset:{1024*j}")
            a(f"buffer_store_short_d16_hi v{ACC+r}, v8, s[36:39], s{31+k} offen offset:{1024*(j+1)}")
    stamp_end(a, 3, 8)
    a.label("K4_exit")
    a("s_endpgm")

def build(path, stamp=False):
    global STAMP
    STAMP = stamp
    hdr = open(f"cdna_kernels/{NAME}.s.ref").read().split("; Override launch")[0]
    a = Asm()
    k1(a); k2(a); k3(a); k4(a)
    s = hdr
    s += f"; @launch kernel=k1_kernel grid=({K1_GRID},1,1) block=(512,1,1) lds={K1_LDS}\n"
    s += f"; @launch kernel=k2_kernel grid=(256,1,1) block=(256,1,1) lds={K2_LDS}\n"
    s += f"; @launch kernel=k3_kernel grid=(224,1,1) block=(256,1,1) lds={K3_LDS}\n"
    s += f"; @launch kernel=k4_kernel grid=(256,1,1) block=(256,1,1) lds={K4_LDS}\n"
    s += '.amdgcn_target "amdgcn-amd-amdhsa--gfx950"\n.text\n'
    s += a.text() + "K_END:\n"
    s += '.section .rodata,"a"\n'
    s += kd("k1_kernel", 128) + kd("k2_kernel", 192) + kd("k3_kernel", 168 + 128, 168) + kd("k4_kernel", 96 + 16 * K4_R)
    open(path, "w").write(s)
if __name__ == "__main__":
    build(f"cdna_kernels/{NAME}.s", False)
    build("dbg.s", True)
```

```python
import gen, sys
def probe(src, dst, ka, kb, mult=4):
    s = open(src).read()
    body = f"""
.p2align 8
k5_kernel:
    s_memrealtime s[20:21]
    s_cmp_ge_u32 s2, 1
    s_cbranch_scc1 K5_exit
    s_load_dwordx2 s[4:5], s[0:1], 128
    s_waitcnt lgkmcnt(0)
    s_add_u32 s4, s4, {gen.TSB:#x}
    s_addc_u32 s5, s5, 0
    s_add_u32 s6, s4, {ka*0x80000:#x}
    s_addc_u32 s7, s5, 0
    s_load_dword s8, s[6:7], 0
    s_add_u32 s4, s4, {(kb if kb is not None else 0)*0x80000:#x}
    s_addc_u32 s5, s5, 0
    s_load_dword s9, s[4:5], 0
    s_waitcnt lgkmcnt(0)
    {'s_mov_b32 s9, s20' if kb is None else ''}
    s_sub_u32 s10, s9, s8
    s_min_u32 s10, s10, 5000
    s_mul_i32 s10, s10, {mult}
K5_loop:
    s_memrealtime s[22:23]
    s_waitcnt lgkmcnt(0)
    s_sub_u32 s11, s22, s20
    s_cmp_lt_u32 s11, s10
    s_cbranch_scc1 K5_loop
K5_exit:
    s_endpgm
"""
    s = s.replace('.amdgcn_target', '; @launch kernel=k5_kernel grid=(1,1,1) block=(64,1,1) lds=0\n.amdgcn_target')
    s = s.replace('.section .rodata,"a"\n', body + '.section .rodata,"a"\n' + gen.kd("k5_kernel", 8, sgpr=32))
    open(dst, "w").write(s)
if __name__ == "__main__":
    probe("dbg.s", "p_0.s", 0, 0)
    probe("dbg.s", "p_12.s", 0, 1)
    probe("dbg.s", "p_23.s", 1, 2)
    probe("dbg.s", "p_34.s", 2, 3)
    probe("dbg.s", "p_45.s", 3, None)
```

```python
import re
TRANS = ("v_exp_f32", "v_log_f32", "v_rcp_f32", "v_rsq_f32", "v_sqrt_f32", "v_sin_f32", "v_cos_f32", "v_rcp_iflag_f32")
REG_RE = re.compile(r"\b([vas])(\d+)\b|\b([vas])\[(\d+):(\d+)\]|\b(vcc|exec|m0|scc)\b")
def regs_of(txt):
    out = set()
    for m in REG_RE.finditer(txt):
        if m.group(1): out.add(m.group(1) + m.group(2))
        elif m.group(3):
            for k in range(int(m.group(4)), int(m.group(5)) + 1): out.add(m.group(3) + str(k))
        else: out.add(m.group(6))
    return out
def split_ops(s):
    ops, depth, cur = [], 0, ""
    for ch in s:
        if ch in "[(": depth += 1
        if ch in "])": depth -= 1
        if ch == "," and depth == 0:
            ops.append(cur.strip()); cur = ""
        else: cur += ch
    if cur.strip(): ops.append(cur.strip())
    return ops
def mfma_passes(op):
    if "4x4x4" in op: return 2
    if "16x16x32" in op or "16x16x16" in op: return 4
    if "32x32x16" in op or "32x32x8" in op: return 8
    raise ValueError(op)
class Ins:
    def __init__(self, text):
        self.text = text
        t = text.split(";")[0].strip()
        parts = t.split(None, 1)
        self.op = parts[0]
        rest = parts[1] if len(parts) > 1 else ""
        ops = split_ops(rest)
        self.ops = ops
        op = self.op
        self.w, self.r = set(), set()
        self.cls = "other"
        self.states = 1
        R = lambda k: regs_of(ops[k]) if k < len(ops) else set()
        allr = lambda a: set().union(*[regs_of(o) for o in ops[a:]]) if len(ops) > a else set()
        if op == "s_nop":
            self.states = int(ops[0], 0) + 1; self.cls = "nop"
        elif op.startswith("v_mfma"):
            self.cls = "mfma"; self.p = mfma_passes(op)
            self.w = R(0); self.A = R(1); self.B = R(2); self.C = R(3); self.r = self.A | self.B | self.C
        elif op.startswith("v_"):
            self.cls = "valu"
            if "permlane" in op and "swap" in op or op.startswith("v_swap"):
                self.w = R(0) | R(1); self.r = set(self.w)
            elif op.startswith(("v_add_co", "v_sub_co", "v_addc_co", "v_subb_co", "v_subrev_co")):
                self.w = R(0) | R(1); self.r = allr(2)
            else:
                self.w = R(0); self.r = allr(1)
                if op.startswith(("v_fmac", "v_dot2c", "v_pk_fmac", "v_writelane")) or "dpp" in text or "row_" in text or "quad_perm" in text:
                    self.r |= self.w
            self.dpp = ("row_" in text or "quad_perm" in text or "wave_" in text)
            self.trans = op.replace("_e32", "").replace("_e64", "") in TRANS
            self.dot = op.startswith("v_dot")
        elif op.startswith("ds_"):
            self.cls = "ds"
            if op.startswith(("ds_read", "ds_bpermute", "ds_permute", "ds_swizzle")): self.w = R(0); self.r = allr(1)
            else: self.r = allr(0)
        elif op.startswith(("buffer_", "global_")):
            self.cls = "vmem"
            self.lds = " lds" in (" " + t) and op.startswith("buffer_load") or "load_lds" in op
            if "load" in op and not self.lds: self.w = R(0); self.r = allr(1)
            else: self.r = allr(0)
            if self.lds: self.r.add("m0")
            self.wide_store = "store" in op and ("x3" in op or "x4" in op)
            if self.wide_store:
                self.data = R(0) if op.startswith("buffer") else R(1)
        elif op.startswith("s_"):
            self.cls = "salu"
            if op.startswith(("s_cmp", "s_waitcnt", "s_branch", "s_cbranch", "s_barrier", "s_setprio", "s_endpgm", "s_sleep", "s_bitcmp")):
                self.r = allr(0)
            else:
                self.w = R(0); self.r = allr(1)
                if "saveexec" in op: self.w.add("exec")
T2 = {2: 5, 4: 8, 8: 12, 16: 20}
T3 = {2: 4, 4: 6, 8: 10, 16: 18}
T4 = {2: 1, 4: 3, 8: 7, 16: 15}
def need(p, c):
    n = 0
    vw = lambda s: {x for x in s if x[0] in "va" and x not in ("vcc",)}
    sw = lambda s: {x for x in s if x[0] == "s" or x in ("vcc", "exec")}
    if p.cls == "valu":
        pv, ps = vw(p.w), sw(p.w)
        if c.cls == "mfma" and pv & c.r: n = max(n, 2)
        if c.cls == "valu":
            if p.trans and pv & c.r: n = max(n, 1)
            if ps & c.r: n = max(n, 4 if c.op.startswith(("v_readlane", "v_writelane")) else 2)
            if c.op.startswith(("v_readlane", "v_readfirstlane")) and pv & c.r: n = max(n, 1)
            if c.dpp and pv & c.r: n = max(n, 2)
            if "permlane" in c.op and pv & c.r: n = max(n, 2)
            if p.dot and pv & (c.r | c.w):
                same_c = c.op == p.op and not (pv & (regs_of(c.ops[1]) | regs_of(c.ops[2])))
                if not same_c: n = max(n, 3)
            if ("sdwa" in p.text or "op_sel" in p.text) and not p.op.startswith("v_pk") and pv & (c.r | c.w): n = max(n, 1)
        if p.dot and c.cls in ("ds", "vmem", "mfma") and pv & (c.r | c.w): n = max(n, 3)
        if p.trans and c.cls in ("ds", "vmem") and pv & c.r: n = max(n, 1)
        if c.cls == "vmem" and ps & c.r: n = max(n, 5)
    if p.cls == "mfma":
        if c.cls in ("valu", "ds", "vmem") and p.w & (c.r | c.w): n = max(n, T2[p.p])
        if c.cls == "mfma":
            if p.w & (c.A | c.B): n = max(n, T2[p.p])
            if p.w & c.C:
                if p.w == c.C and p.p == c.p: n = max(n, 2 if p.p == 2 else 0)
                else: n = max(n, T3[p.p])
            elif p.w & c.w: n = max(n, T3[p.p])
        if c.cls == "valu" and p.C & c.w: n = max(n, T4[p.p])
        if c.cls in ("ds", "vmem") and p.C & c.w: n = max(n, T4[p.p])
    if p.cls == "salu" and "m0" in p.w and c.cls == "vmem" and getattr(c, "lds", False): n = max(n, 1)
    if p.cls == "vmem" and getattr(p, "wide_store", False):
        if p.data & c.w: n = max(n, 2 if c.cls == "valu" else 1)
    return n
class Asm:
    def __init__(self):
        self.lines = []
        self.hist = []
        self.nlabel = 0
        self.vm = 0
        self.bg = []
        self.bg_every = 0
        self._bgc = 0
        self._in_bg = False
    def raw(self, s):
        self.lines.append(s)
    def label(self, name):
        self.lines.append(name + ":")
    def fence(self, n=0):
        if n: self.__call__("s_nop %d" % (n - 1))
    def reset(self):
        self.hist = []
    def __call__(self, text):
        for t in text.strip().split("\n"):
            t = t.strip()
            if not t or t.startswith(";"):
                if t: self.lines.append("    " + t)
                continue
            if t.endswith(":"):
                self.label(t[:-1]); continue
            ins = Ins(t)
            dist, req = 0, 0
            for p in reversed(self.hist):
                k = need(p, ins) - dist
                if k > req: req = k
                dist += p.states
                if dist > 24: break
            while req > 0:
                k = min(req, 16)
                nop = Ins("s_nop %d" % (k - 1))
                self.lines.append("    s_nop %d" % (k - 1)); self.hist.append(nop); req -= k
            self.lines.append("    " + t)
            self.hist.append(ins)
            if ins.cls == "vmem": self.vm += 1
            if len(self.hist) > 64: self.hist = self.hist[-40:]
            if self.bg and self.bg_every and not self._in_bg and ins.cls in ("valu", "mfma", "ds"):
                self._bgc += 1
                if self._bgc >= self.bg_every:
                    self._bgc = 0
                    self.emit_bg()
    def emit_bg(self, n=1):
        self._in_bg = True
        for _ in range(n):
            if self.bg: self.__call__(self.bg.pop(0))
        self._in_bg = False
    def flush_bg(self):
        self.emit_bg(len(self.bg)); self.bg_every = 0
    def set_bg(self, groups, every):
        self.bg = list(groups); self.bg_every = every; self._bgc = 0
    def wait_vm(self, tok, extra=""):
        n = self.vm - tok
        assert n >= 0
        self.__call__("s_waitcnt vmcnt(%d)%s" % (min(n, 63), extra))
    def text(self):
        return "\n".join(self.lines) + "\n"
def vr(a, n=1): return "v%d" % a if n == 1 else "v[%d:%d]" % (a, a + n - 1)
def ar(a, n=1): return "a%d" % a if n == 1 else "a[%d:%d]" % (a, a + n - 1)
def sr(a, n=1): return "s%d" % a if n == 1 else "s[%d:%d]" % (a, a + n - 1)
import struct
def fhex(x): return "0x%08x" % struct.unpack("<I", struct.pack("<f", x))[0]
```

```python
import sys, math
import numpy as np
from asmlib import *
NAME = "sequential_preLN__ssm_conv_s4__dense_activation_squared_relu__prompt"
KN = NAME + "_kernel"
RS = 4352
XT, HT, HF = 0x0, 0x220000, 0x440000
ST, FB, FC, EPOCH = 0xB40000, 0xB48000, 0xB50000, 0xB58000
WS_USED = 0xB60000
TSB = 0xC00000
LOG2E = 1.4426950408889634
LOG2E_HI = float(np.float32(LOG2E)); LOG2E_LO = LOG2E - LOG2E_HI
STAMP = False
SPIN_MAX = 1 << 18
PQ_PITCH = 544
P_BYTES = 22 * PQ_PITCH
PQ_CH = P_BYTES + 32 * PQ_PITCH
KC_STR, KC_CH = 4160, 16640
TAB, TAB_CH = 58752, 5632
UC, UC_STR, UC_CH = 70144, 4576, 9216
STX = 88576
STG = 98304
XCH = 161792
LDS_BYTES = 163840
STAMPS = {}

def srd(a, s, base, nbytes):
    a(f"""
    s_mov_b32 s{s}, s{base}
    s_and_b32 s{s+1}, s{base+1}, 0xffff
    s_mov_b32 s{s+2}, {nbytes:#x}
    s_mov_b32 s{s+3}, 0x20000
    """)
def stamp(a, name):
    if not STAMP: return
    k = STAMPS.setdefault(name, len(STAMPS))
    a(f"s_memrealtime s[100:101]\ns_waitcnt lgkmcnt(0)\nv_writelane_b32 v255, s100, {k}")
def cmul(a, d, x, y):
    a(f"v_pk_mul_f32 {vr(d,2)}, {vr(x,2)}, {vr(y,2)} op_sel_hi:[0,1]")
    a(f"v_pk_fma_f32 {vr(d,2)}, {vr(x,2)}, {vr(y,2)}, {vr(d,2)} op_sel:[1,1,0] op_sel_hi:[1,0,1] neg_lo:[1,0,0]")
def row_stats(a, vs, vq, vm, vri, t0):
    a(f"""
    v_mul_f32 v{vs}, {fhex(1/512)}, v{vs}
    v_mul_f32 v{vq}, {fhex(1/512)}, v{vq}
    v_fma_f32 v{vq}, -v{vs}, v{vs}, v{vq}
    v_max_f32 v{vq}, 0, v{vq}
    v_cvt_pk_bf16_f32 v{t0}, v{vs}, v{vq}
    v_lshlrev_b32 v{vm}, 16, v{t0}
    v_and_b32 v{t0}, 0xffff0000, v{t0}
    v_add_f32 v{t0}, {fhex(1e-5)}, v{t0}
    v_cvt_pk_bf16_f32 v{t0}, v{t0}, v{t0}
    v_and_b32 v{t0}, 0xffff0000, v{t0}
    v_sqrt_f32 v{t0}, v{t0}
    v_cvt_pk_bf16_f32 v{t0}, v{t0}, v{t0}
    v_and_b32 v{t0}, 0xffff0000, v{t0}
    v_rcp_f32 v{vri}, v{t0}
    """)
def dma_groups(n, vaddr, srd_, m0step, sstep, flags=""):
    return [f"s_mov_b32 m0, s70\ns_add_u32 s70, s70, {m0step}\nbuffer_load_dwordx4 v{vaddr}, s[{srd_}:{srd_+3}], s71 offen {flags} lds\ns_add_u32 s71, s71, {sstep}" for _ in range(n)]

def poll(a, label, vaddr, soff, mask=None):
    if mask is not None: a(f"s_mov_b64 exec, {mask:#x}")
    a(f"""
    s_mov_b32 s72, 0
    {label}:
    buffer_load_dword v2, v{vaddr}, s[8:11], s{soff} offen sc1
    s_add_u32 s72, s72, 1
    s_waitcnt vmcnt(0)
    v_cmp_ne_u32 vcc, s28, v2
    s_cmp_gt_u32 s72, {SPIN_MAX}
    s_cbranch_scc1 {label}_x
    s_and_b64 exec, exec, vcc
    s_cbranch_execnz {label}
    {label}_x:
    s_mov_b64 exec, -1
    """)

def mega(a):
    a.raw(f".globl {KN}\n.p2align 8\n.type {KN},@function\n{KN}:")
    if STAMP: a("v_mov_b32 v255, 0")
    stamp(a, "start")
    a(f"""
    s_cmp_ge_u32 s2, 256
    s_cbranch_scc1 L_exit
    s_load_dwordx2 s[64:65], s[0:1], 128
    s_load_dwordx16 s[32:47], s[0:1], 0
    s_load_dwordx16 s[48:63], s[0:1], 64
    v_lshrrev_b32 v2, 6, v0
    v_and_b32 v1, 63, v0
    v_readfirstlane_b32 s3, v2
    v_lshlrev_b32 v3, 4, v1             ; lane*16
    v_lshrrev_b32 v4, 4, v1             ; l>>4
    v_and_b32 v5, 15, v1                ; l&15
    v_lshrrev_b32 v6, 5, v1             ; hh
    v_and_b32 v7, 3, v1                 ; l&3
    v_bfe_u32 v8, v1, 2, 2              ; (l>>2)&3
    s_and_b32 s30, s2, 7                ; xcd
    s_lshr_b32 s31, s2, 3               ; k
    s_lshl_b32 s29, s30, 5
    s_add_u32 s29, s29, s31             ; p
    ; T loads
    v_lshrrev_b32 v9, 2, v1             ; cp
    v_lshlrev_b32 v10, 13, v7
    v_lshl_add_u32 v10, v9, 2, v10
    s_lshr_b32 s73, s29, 2              ; rg
    s_and_b32 s74, s29, 3               ; cq
    s_lshl_b32 s74, s74, 7
    s_lshl_b32 s75, s3, 5
    s_add_u32 s74, s74, s75
    s_lshl_b32 s75, s73, 15
    s_lshl_b32 s76, s74, 1
    s_add_u32 s75, s75, s76
    s_add_u32 s76, s75, 4096
    ; S loads
    v_and_b32 v11, 31, v1
    v_lshlrev_b32 v11, 4, v11
    v_lshl_add_u32 v11, v6, 10, v11
    s_lshl_b32 s77, s29, 13
    s_lshl_b32 s78, s3, 11
    s_add_u32 s77, s77, s78
    ; params
    s_lshr_b32 s79, s3, 1               ; ch_local
    s_and_b32 s80, s3, 1
    s_lshl_b32 s81, s29, 1
    s_add_u32 s81, s81, s79             ; d
    s_lshl_b32 s82, s81, 8
    s_lshl_b32 s83, s80, 7
    s_add_u32 s82, s82, s83
    v_lshl_add_u32 v12, v1, 1, s82
    s_lshl_b32 s83, s81, 1
    v_mov_b32 v13, s83
    s_waitcnt lgkmcnt(0)
    """)
    srd(a, 12, 32, 2048 * 1024)
    for e in range(8):
        a(f"buffer_load_dword v{32+e}, v10, s[12:15], s{75 if e < 4 else 76} offen offset:{(e%4)*1024}")
    tokT = a.vm
    a(f"""
    buffer_load_dwordx4 v[16:19], v11, s[12:15], s77 offen
    buffer_load_dwordx4 v[20:23], v11, s[12:15], s77 offen offset:512
    """)
    tokS = a.vm
    a(f"""
    s_add_u32 s4, s64, {EPOCH:#x}
    s_addc_u32 s5, s65, 0
    s_load_dword s6, s[4:5], 0
    global_load_ushort v24, v13, s[46:47]
    global_load_ushort v25, v12, s[34:35]
    global_load_ushort v26, v12, s[36:37]
    """)
    tokA = a.vm
    a(f"""
    global_load_ushort v28, v12, s[38:39]
    global_load_ushort v29, v12, s[40:41]
    global_load_ushort v30, v12, s[42:43]
    global_load_ushort v31, v12, s[44:45]
    global_load_ushort v251, v13, s[48:49]
    """)
    tokBC = a.vm
    srd(a, 8, 64, WS_USED if not STAMP else 0x1000000)
    srd(a, 16, 52, 512 * 3584)
    srd(a, 20, 56, 1792 * 1024)
    srd(a, 24, 60, 2048 * 1024)
    a(f"""
    s_min_u32 s84, s31, 27
    s_mul_i32 s85, s84, 37
    s_lshr_b32 s85, s85, 8              ; k/7
    s_mul_i32 s86, s85, 7
    s_sub_u32 s86, s84, s86             ; k%7
    s_lshr_b32 s87, s30, 1
    s_lshl_b32 s66, s87, 2
    s_add_u32 s66, s66, s85             ; rb
    s_and_b32 s84, s30, 1
    s_mul_i32 s7, s84, 7
    s_add_u32 s7, s7, s86               ; ft
    s_lshl_b32 s67, s7, 2
    s_add_u32 s67, s67, s3              ; fb
    s_lshl_b32 s87, s87, 3
    s_lshr_b32 s85, s31, 2
    s_add_u32 s87, s87, s85             ; tt
    s_lshl_b32 s68, s87, 1
    s_add_u32 s68, s68, s79
    s_lshl_b32 s84, s84, 2
    s_and_b32 s85, s31, 3
    s_add_u32 s84, s84, s85             ; dt
    s_lshl_b32 s69, s84, 1
    s_add_u32 s69, s69, s80
    v_mul_u32_u24 v14, {2*RS}, v9
    v_lshl_add_u32 v14, v7, 4, v14
    s_mul_i32 s85, s74, {RS}
    s_lshl_b32 s86, s73, 6
    s_add_u32 s85, s85, s86
    s_add_u32 s85, s85, {XT:#x}
    s_add_u32 s86, s85, {RS}
    s_mov_b32 s73, 0x05040100
    s_mov_b32 s74, 0x07060302
    s_mov_b32 s75, 0x3f803f80
    v_lshlrev_b32 v15, 2, v4
    v_xor_b32 v15, v5, v15
    v_lshlrev_b32 v15, 4, v15
    v_mul_u32_u24 v240, 3584, v4
    v_add_u32 v240, v240, v15
    v_mul_u32_u24 v241, {RS}, v4
    v_add_u32 v241, v241, v15
    v_and_b32 v15, 1, v4                ; th
    v_lshlrev_b32 v15, 5, v15
    v_lshl_add_u32 v15, v7, 3, v15      ; th*32 + c4*8
    v_lshl_add_u32 v242, v6, 3, v8
    v_lshl_add_u32 v242, v242, 8, v15
    v_xor_b32 v2, s3, v8
    v_lshl_add_u32 v242, v2, 6, v242
    v_add_u32 v243, {STG}, v242
    v_bfe_u32 v2, v1, 2, 3
    v_lshlrev_b32 v244, 10, v2
    v_lshl_add_u32 v244, v6, 6, v244
    v_lshl_add_u32 v244, v7, 4, v244
    v_lshl_add_u32 v245, v6, 2, v8
    v_lshl_add_u32 v245, v245, 6, v15
    s_lshl_b32 s76, s80, 9
    v_add_u32 v245, s76, v245
    v_lshrrev_b32 v2, 1, v5
    v_lshlrev_b32 v2, 6, v2
    v_lshl_add_u32 v2, v4, 4, v2        ; 64(j>>1)+16h
    v_and_b32 v15, 1, v5
    v_lshl_add_u32 v248, v15, 3, v2
    v_mul_u32_u24 v247, {UC_STR}, v15
    s_mul_i32 s76, s79, {UC_CH}
    s_add_u32 s76, s76, {UC}            ; UC(ch)
    v_add3_u32 v247, v247, v2, s76      ; B base
    v_mul_u32_u24 v246, {KC_STR}, v7
    v_sub_u32 v2, v4, v8
    v_lshlrev_b32 v2, 4, v2
    s_mul_i32 s77, s79, {KC_CH}
    s_add_u32 s78, s77, 48
    v_add3_u32 v246, v246, v2, s78      ; A base
    s_lshl_b32 s82, s80, 10
    s_sub_u32 s83, {6*512}, s82
    s_add_u32 s78, s76, {UC_STR+448}
    v_add_u32 v2, s78, v248
    v_add_u32 v249, s83, v2
    v_add_u32 v250, s82, v2
    v_mov_b32 v40, 0
    v_mov_b32 v41, 0
    v_mov_b32 v42, 0
    v_mov_b32 v43, 0
    s_mul_i32 s78, s80, {UC_STR}
    s_add_u32 s78, s78, s76
    v_add_u32 v2, s78, v3
    s_mul_i32 s78, s79, {TAB_CH}
    s_add_u32 s78, s78, {TAB}
    v_mov_b32 v15, s78
    v_cmp_lt_u32 vcc, 28, v1
    v_cndmask_b32 v2, v2, v15, vcc
    ds_write_b128 v2, v[40:43]
    s_add_u32 s78, s78, 16
    s_mul_i32 s4, s79, {PQ_CH}
    s_lshl_b32 s5, s80, 8
    s_add_u32 s5, s5, s4
    v_lshl_add_u32 v200, v1, 2, s5
    v_mul_u32_u24 v201, {PQ_PITCH}, v5
    v_lshl_add_u32 v201, v4, 4, v201
    s_mul_i32 s5, s80, {16*PQ_PITCH}
    s_add_u32 s5, s5, s4
    s_add_u32 s5, s5, {P_BYTES}
    v_add_u32 v202, s5, v201
    v_add_u32 v201, s4, v201
    s_lshl_b32 s5, s80, 11
    s_add_u32 s5, s5, s77
    v_lshl_add_u32 v231, v1, 5, s5
    v_mul_u32_u24 v232, {KC_STR}, v8
    v_lshl_add_u32 v232, v7, 4, v232
    s_add_u32 s5, s77, 4096
    v_add_u32 v232, s5, v232
    s_lshl_b32 s5, s3, 10
    s_add_u32 s5, s5, {UC}
    v_lshlrev_b32 v233, 2, v1
    v_add_u32 v234, s5, v233
    """)
    def skew(dst, src, tmp):
        a(f"""
        v_ashrrev_i32 v{tmp}, 6, v{src}
        v_lshl_add_u32 v{tmp}, v{tmp}, 2, s78
        v_lshl_add_u32 v{dst}, v{src}, 1, v{tmp}
        """)
    def xt_part():
        a.wait_vm(tokT)
        stamp(a, "T")
        for k in range(4):
            a(f"v_perm_b32 v{44+k}, v{32+2*k+1}, v{32+2*k}, s73")
        a(f"buffer_store_dwordx4 v[44:47], v14, s[8:11], s85 offen sc1")
        for k in range(4):
            a(f"v_perm_b32 v{48+k}, v{32+2*k+1}, v{32+2*k}, s74")
        a(f"buffer_store_dwordx4 v[48:51], v14, s[8:11], s86 offen sc1")
    a(f"""
    s_lshl_b32 s5, s80, 7
    v_lshl_add_u32 v15, v5, 3, s5       ; 8*(16jb+j)
    """)
    for ib, tbl in enumerate([[(0, 1), (4, 1), (256, 2), (512, 256)], [(1536, 256), (516, 256), (1026, 256), (1026, 256)]]):
        a(f"v_mov_b32 v52, {tbl[3][0]}\nv_mov_b32 v53, {tbl[3][1]}")
        for h in range(3):
            if tbl[h] == tbl[3]: continue
            a(f"v_cmp_ne_u32 vcc, {h}, v4")
            a(f"v_mov_b32 v2, {tbl[h][0]}")
            a(f"v_cndmask_b32 v52, v2, v52, vcc")
            if tbl[h][1] != tbl[3][1]: a(f"v_cndmask_b32 v53, {tbl[h][1]}, v53, vcc")
        a("v_add_u32 v52, v52, v15")
        for r in range(4):
            skew(204 + 4 * ib + r, 52, 2)
            if r < 3: a("v_add_u32 v52, v52, v53")
    a(f"""
    s_lshl_b32 s5, s80, 10
    s_sub_u32 s5, 2047, s5
    v_sub_u32 v15, s5, v3
    v_cvt_f32_i32 v15, v15
    """)
    for e in range(0, 20, 2):
        a(f"v_add_f32 v52, {fhex(-float(e))}, v15")
        a(f"v_add_f32 v53, {fhex(-float(e+1))}, v15")
        a(f"v_cvt_pk_bf16_f32 v52, v52, v53")
        a(f"v_and_b32 v53, 0xffff0000, v52")
        a(f"v_lshlrev_b32 v52, 16, v52")
        a(f"v_cvt_i32_f32 v52, v52")
        skew(212 + e, 52, 2)
        if e + 1 <= 18:
            a(f"v_cvt_i32_f32 v53, v53")
            skew(212 + e + 1, 53, 2)
    xt_part()
    tokXT = a.vm
    a("v_mov_b32 v52, 0\nv_mov_b32 v53, 0\nv_mov_b32 v54, 0\nv_mov_b32 v55, 0")
    a.wait_vm(tokS)
    for j in range(8):
        a(f"v_dot2_f32_bf16 v{52+(j&1)}, v{16+j}, s75, v{52+(j&1)}")
        a(f"v_dot2_f32_bf16 v{54+(j&1)}, v{16+j}, v{16+j}, v{54+(j&1)}")
    a("v_add_f32 v52, v52, v53\nv_add_f32 v54, v54, v55")
    for sh in (8, 4, 2, 1):
        a(f"v_add_f32_dpp v52, v52, v52 row_ror:{sh} row_mask:0xf bank_mask:0xf")
        a(f"v_add_f32_dpp v54, v54, v54 row_ror:{sh} row_mask:0xf bank_mask:0xf")
    a(f"""
    v_mov_b32 v53, v52
    v_mov_b32 v55, v54
    s_lshl_b32 s5, s3, 4
    s_add_u32 s5, s5, {STX}
    v_permlane16_swap_b32 v52, v53
    v_permlane16_swap_b32 v54, v55
    v_add_f32 v52, v52, v53
    v_add_f32 v54, v54, v55
    """)
    row_stats(a, 52, 54, 56, 57, 53)
    a(f"""
    v_lshl_add_u32 v2, v6, 1, s5
    v_lshl_add_u32 v15, v6, 2, s5
    ds_write_b16_d16_hi v2, v56
    ds_write_b32 v15, v57 offset:4
    s_mov_b32 s4, {fhex(LOG2E_HI)}
    s_lshl_b32 s70, s3, 14
    s_add_u32 s70, s70, {STG}
    s_mul_i32 s71, s3, {64*3584}
    s_lshl_b32 s5, s7, 8
    s_add_u32 s71, s71, s5
    """)
    a.wait_vm(tokA)
    stamp(a, "A")
    a.set_bg(dma_groups(16, 240, 16, 1024, 4 * 3584), 14)
    a(f"""
    v_lshlrev_b32 v24, 16, v24
    v_lshlrev_b32 v25, 16, v25
    v_lshlrev_b32 v26, 16, v26
    v_mul_f32 v16, s4, v24
    v_fma_f32 v17, v24, s4, -v16
    v_fmac_f32 v17, {fhex(LOG2E_LO)}, v24
    v_exp_f32 v16, v16
    v_mul_f32 v17, {fhex(math.log(2))}, v17
    v_fma_f32 v16, v16, v17, v16
    v_cvt_pk_bf16_f32 v16, v16, v16
    v_and_b32 v16, 0xffff0000, v16      ; dt
    v_mul_f32 v25, v16, v25
    v_mul_f32 v26, v16, v26
    v_mul_f32 v25, s4, v25              ; a2
    v_mul_f32 v26, 0.15915494, v26      ; b2
    """)
    def edirect(d, l):
        a(f"""
        v_mul_f32 v18, {fhex(float(l))}, v25
        v_mul_f32 v19, {fhex(float(l))}, v26
        v_exp_f32 v18, v18
        v_fract_f32 v19, v19
        v_cos_f32 v{d}, v19
        v_sin_f32 v{d+1}, v19
        v_pk_mul_f32 {vr(d,2)}, {vr(d,2)}, v[18:19] op_sel_hi:[1,0]
        """)
    cnt = [0]
    def put(src, row, isP):
        t = 20 + cnt[0] % 4; cnt[0] += 1
        a(f"v_cvt_pk_bf16_f32 v{t}, v{src}, {'-' if isP else ''}v{src+1}")
        a(f"ds_write_b32 v200, v{t} offset:{row*PQ_PITCH + (0 if isP else P_BYTES)}")
    TMP = [56, 58, 60, 62]
    Q = {j: 64 + 2 * j for j in range(1, 17)}
    edirect(Q[1], 8)
    a(f"v_mov_b32 v17, 0x00003f80\nds_write_b32 v200, v17 offset:{P_BYTES}")
    prev = 1
    for j in range(2, 17):
        hb = 1 << (j.bit_length() - 1)
        x, y = (j // 2, j // 2) if j == hb else (hb, j - hb)
        cmul(a, Q[j], Q[x], Q[y]); put(Q[prev], prev, 0); prev = j
    pr, prow = Q[16], 16
    for j in range(17, 32):
        t = TMP[j % 4]
        cmul(a, t, Q[16], Q[j - 16]); put(pr, prow, 0); pr, prow = t, j
    put(pr, prow, 0)
    ev = a.bg_every; a.bg_every = 0
    a.wait_vm(tokXT, " lgkmcnt(0)")
    a(f"""
    s_barrier
    s_add_u32 s28, s6, 1
    s_mul_i32 s28, s28, 0x9E3779B1      ; tag
    s_cmp_lg_u32 s3, 0
    s_cbranch_scc1 L_nopub
    s_mov_b64 exec, 15
    v_add_u32 v2, {STX}, v3
    ds_read_b128 v[44:47], v2
    s_lshl_b32 s5, s29, 6
    s_add_u32 s5, s5, {ST:#x}
    s_waitcnt lgkmcnt(0)
    v_mov_b32 v47, s28
    buffer_store_dwordx4 v[44:47], v3, s[8:11], s5 offen sc1
    s_mov_b64 exec, -1
    L_nopub:
    """)
    a.vm -= 1
    stamp(a, "pub")
    a.bg_every = ev
    E1, E256, E1024, E2, E4, E512 = 64, 66, 68, 70, 72, 74
    P = {k: 76 + 2 * k for k in range(8)}
    R = {256: 92, 260: 94, 512: 96, 768: 98, 1024: 100}
    edirect(E1, 1); edirect(E256, 256); edirect(E1024, 1024)
    a(f"""
    v_lshlrev_b32 v28, 16, v28
    v_lshlrev_b32 v29, 16, v29
    v_lshlrev_b32 v30, 16, v30
    v_lshlrev_b32 v31, 16, v31
    v_mul_f32 v28, v16, v28
    v_mul_f32 v29, v16, v29
    """)
    cmul(a, E2, E1, E1); cmul(a, P[0], 30, 28); cmul(a, E512, E256, E256); cmul(a, E4, E2, E2)
    seq = [(P[1], P[0], E1, 1), (P[2], P[0], E2, 2), (P[3], P[1], E2, 3), (P[4], P[0], E4, 4), (P[5], P[1], E4, 5), (P[6], P[2], E4, 6),
           (P[7], P[3], E4, 7), (R[256], P[0], E256, 8), (TMP[0], P[2], E256, 9), (R[260], P[4], E256, 10), (TMP[1], P[6], E256, 11),
           (R[512], P[0], E512, 12), (R[768], R[256], E512, 13), (R[1024], P[0], E1024, 14), (TMP[2], R[256], E1024, 15),
           (TMP[3], R[512], E1024, 16), (TMP[0], R[768], E1024, 17), (TMP[1], R[1024], E1024, 18), (TMP[2], P[4], E512, 20), (TMP[3], R[260], E512, 21)]
    pr, prow = P[0], 0
    for d, x, y, row in seq:
        cmul(a, d, x, y); put(pr, prow, 1); pr, prow = d, row
    put(pr, prow, 1)
    a.flush_bg()
    a("s_waitcnt lgkmcnt(0)\ns_barrier")
    stamp(a, "pq")
    for s in range(8):
        a(f"ds_read_b128 {vr(64+12*s,4)}, v202 offset:{64*s}")
        a(f"ds_read_b128 {vr(68+12*s,4)}, v201 offset:{64*s}")
        a(f"ds_read_b128 {vr(72+12*s,4)}, v201 offset:{64*s+16*PQ_PITCH}")
    for s in range(8):
        a(f"s_waitcnt lgkmcnt({min(15, 22-3*s)})")
        a(f"v_mfma_f32_16x16x32_bf16 v[16:19], {vr(68+12*s,4)}, {vr(64+12*s,4)}, {'0' if s==0 else 'v[16:19]'}")
        a(f"s_waitcnt lgkmcnt({min(15, 21-3*s)})")
        a(f"v_mfma_f32_16x16x32_bf16 v[20:23], {vr(72+12*s,4)}, {vr(64+12*s,4)}, {'0' if s==0 else 'v[20:23]'}")
    for q in range(2):
        b = 16 + 4 * q
        a(f"""
        v_cvt_pk_bf16_f32 v{b}, v{b}, v{b+1}
        v_cvt_pk_bf16_f32 v{b+2}, v{b+2}, v{b+3}
        ds_write_b16 v{204+4*q}, v{b}
        ds_write_b16_d16_hi v{205+4*q}, v{b}
        ds_write_b16 v{206+4*q}, v{b+2}
        ds_write_b16_d16_hi v{207+4*q}, v{b+2}
        """)
    a(f"""
    s_lshl_b32 s4, s3, 12
    s_add_u32 s4, s4, {ST:#x}
    s_waitcnt vmcnt(0) lgkmcnt(0)
    s_barrier
    """)
    stamp(a, "tab")
    for e in range(19):
        a(f"ds_read_u16 v{64+e}, v{212+e}")
    for i in range(4):
        a(f"buffer_load_dwordx4 {vr(160+4*i,4)}, v3, s[8:11], s4 offen offset:{1024*i} sc1")
    a("s_waitcnt lgkmcnt(0)")
    for c in range(4):
        st = 3 - c
        o = 96 + 8 * c
        for k in range(8):
            a(f"v_lshl_or_b32 v{o+k}, v{64+st+2*k+1}, 16, v{64+st+2*k}")
        a(f"ds_write_b128 v231, {vr(o,4)} offset:{c*KC_STR}")
        a(f"ds_write_b128 v231, {vr(o+4,4)} offset:{c*KC_STR+16}")
    a(f"""
    s_mov_b64 exec, 0xffff
    ds_write_b128 v232, v[40:43]
    s_mov_b64 exec, -1
    s_mov_b32 s72, 0
    s_branch L_pa_chk
    L_pa:
    """)
    for i in range(4):
        a(f"buffer_load_dwordx4 {vr(160+4*i,4)}, v3, s[8:11], s4 offen offset:{1024*i} sc1")
    a(f"""
    L_pa_chk:
    s_add_u32 s72, s72, 1
    s_waitcnt vmcnt(0)
    v_xor_b32 v2, s28, v163
    v_xor_b32 v15, s28, v167
    v_xor_b32 v16, s28, v171
    v_xor_b32 v17, s28, v175
    v_or3_b32 v2, v2, v15, v16
    v_or_b32 v2, v2, v17
    v_cmp_ne_u32 vcc, 0, v2
    s_cmp_gt_u32 s72, {SPIN_MAX}
    s_cbranch_scc1 L_pa_x
    s_cbranch_vccnz L_pa
    L_pa_x:
    s_mul_i32 s4, s29, {2*RS}
    s_lshl_b32 s5, s3, 10
    s_add_u32 s4, s4, s5
    s_add_u32 s4, s4, {XT:#x}
    s_add_u32 s5, s4, {RS}
    """)
    stamp(a, "syncA")
    for i in range(4):
        a(f"buffer_load_dword v{176+2*i}, v233, s[8:11], s4 offen offset:{256*i} sc1")
        a(f"buffer_load_dword v{177+2*i}, v233, s[8:11], s5 offen offset:{256*i} sc1")
    tokX = a.vm
    def w1_tr(rho):
        for s in range(16):
            for hf in range(2):
                a(f"ds_read_b64_tr_b16 {ar(64*rho+4*s+2*hf,2)}, v243 offset:{s*4096+hf*1024}")
    w1_tr(0)
    for i in range(4):
        g = 160 + 4 * i
        a(f"v_and_b32 v{65+2*i}, 0xffff0000, v{g}")
        a(f"v_lshlrev_b32 v{64+2*i}, 16, v{g}")
        a(f"v_mov_b32 v{72+2*i}, v{g+1}")
        a(f"v_mov_b32 v{73+2*i}, v{g+2}")
    for i in range(4):
        a.wait_vm(tokX - 6 + 2 * i)
        for c in range(2):
            x, t = 176 + 2 * i + c, 80 + 4 * i + 2 * c
            a(f"""
            v_lshlrev_b32 v{t}, 16, v{x}
            v_and_b32 v{t+1}, 0xffff0000, v{x}
            v_pk_add_f32 {vr(t,2)}, {vr(t,2)}, {vr(64+2*i,2)} neg_lo:[0,1] neg_hi:[0,1]
            v_cvt_pk_bf16_f32 v{x}, v{t}, v{t+1}
            v_lshlrev_b32 v{t}, 16, v{x}
            v_and_b32 v{t+1}, 0xffff0000, v{x}
            v_pk_mul_f32 {vr(t,2)}, {vr(t,2)}, {vr(72+2*i,2)}
            v_cvt_pk_bf16_f32 v{x}, v{t}, v{t+1}
            ds_write_b32 v234, v{x} offset:{c*UC_CH+256*i+456}
            ds_write_b32 v234, v{x} offset:{c*UC_CH+256*i+UC_STR+448}
            """)
    a(f"""
    s_mul_i32 s76, s81, {RS}
    s_add_u32 s4, s76, s83
    s_add_u32 s5, s76, s82
    s_lshl_b32 s70, s3, 14
    s_add_u32 s70, s70, {STG}
    s_add_u32 s71, s71, {192*3584}
    s_waitcnt lgkmcnt(0)
    s_barrier
    """)
    stamp(a, "conv0")
    a(f"""
    ds_read_b64 v[28:29], v249 offset:512
    ds_read_b64 v[30:31], v249
    ds_read_b64 v[32:33], v250 offset:512
    ds_read_b64 v[34:35], v250
    buffer_load_dwordx2 v[12:13], v248, s[8:11], s4 offen offset:512 sc1
    buffer_load_dwordx2 v[14:15], v248, s[8:11], s4 offen sc1
    buffer_load_dwordx2 v[16:17], v248, s[8:11], s5 offen offset:512 sc1
    buffer_load_dwordx2 v[18:19], v248, s[8:11], s5 offen sc1
    """)
    tokXE = a.vm
    a(f"""
    s_or_b32 s4, s2, s3
    s_cmp_lg_u32 s4, 0
    s_cbranch_scc1 L_noep
    s_add_u32 s4, s6, 1
    v_mov_b32 v2, s4
    v_mov_b32 v20, {EPOCH:#x}
    s_mov_b64 exec, 1
    buffer_store_dword v2, v20, s[8:11], 0 offen sc1
    s_mov_b64 exec, -1
    L_noep:
    s_cmp_eq_u32 s80, 1
    s_cbranch_scc1 L_par1
    """)
    a.vm -= 1
    ACC = 40
    def conv(tiles):
        ops = []
        for r in range(8):
            if tiles == [7, 6, 1, 0]:
                prs = []
                for aa in range(8):
                    prs.append((0, aa, 7 - aa))
                    if aa <= 6: prs.append((1, aa, 6 - aa))
                prs.insert(13, (2, 0, 1)); prs.insert(15, (2, 1, 0)); prs.append((3, 0, 0))
            else:
                prs = [(ti, aa, b - aa) for aa in range(6) for ti, b in enumerate(tiles) if b - aa >= 0]
            for ti, aa, c in prs: ops.append((ti, ("A", aa, r), ("B", c, r)))
        order, last = [], {}
        for n, (ti, A, B) in enumerate(ops):
            for f in (A, B):
                if f not in last: order.append(f)
                last[f] = n
        pos = {f: i for i, f in enumerate(order)}
        free = list(range(64, 64 + 4 * 24, 4))
        reg = {}
        issued = 0; done = -1
        D = 13
        def issue():
            nonlocal issued
            f = order[issued]; reg[f] = free.pop(0)
            k, idx, r = f
            off = (7 - idx) * 512 + (7 - r) * 64 if k == "A" else idx * 512 + (7 - r) * 64
            a(f"ds_read_b128 {vr(reg[f],4)}, v{246 if k == 'A' else 247} offset:{off}")
            issued += 1
        first = set()
        while issued < 11: issue()
        for n, (ti, A, B) in enumerate(ops):
            needi = max(pos[A], pos[B])
            while issued <= needi: issue()
            if needi > done:
                a(f"s_waitcnt lgkmcnt({issued - 1 - needi})"); done = needi
            cin = vr(ACC + 4 * ti, 4) if ti in first else "0"
            first.add(ti)
            a(f"v_mfma_f32_16x16x32_bf16 {vr(ACC+4*ti,4)}, {vr(reg[A],4)}, {vr(reg[B],4)}, {cin}")
            rel = [f for f in (A, B) if last[f] == n]
            k = 0
            while issued < len(order) and issued - 1 - done < D and free and k < 2:
                issue(); k += 1
            for f in rel: free.append(reg[f])
            if n % 9 == 4: a.emit_bg()
        a.flush_bg()
    vm0 = a.vm
    a.set_bg(dma_groups(16, 240, 16, 1024, 4 * 3584), 0)
    conv([7, 6, 1, 0])
    a("s_branch L_cepi")
    a.label("L_par1")
    a.vm = vm0
    a.set_bg(dma_groups(16, 240, 16, 1024, 4 * 3584), 0)
    conv([5, 4, 3, 2])
    a.label("L_cepi")
    stamp(a, "conv1")
    a(f"""
    s_waitcnt vmcnt(16)
    v_lshlrev_b32 v251, 16, v251
    s_add_u32 s76, s76, {HT:#x}
    s_add_u32 s4, s76, s83
    s_add_u32 s5, s76, s82
    s_nop 2
    """)
    for ti in range(4):
        y, u, x, t = ACC + 4 * ti, 28 + 2 * ti, 12 + 2 * ti, 64 + 16 * ti
        for hf in range(2):
            q = t + 8 * hf
            a(f"""
            v_lshlrev_b32 v{q}, 16, v{u+hf}
            v_and_b32 v{q+1}, 0xffff0000, v{u+hf}
            v_cvt_pk_bf16_f32 v{q+2}, v{y+2*hf}, v{y+2*hf+1}
            v_mul_f32 v{q}, v{q}, v251
            v_mul_f32 v{q+1}, v{q+1}, v251
            v_and_b32 v{q+3}, 0xffff0000, v{q+2}
            v_cvt_pk_bf16_f32 v{q}, v{q}, v{q+1}
            v_lshlrev_b32 v{q+2}, 16, v{q+2}
            v_and_b32 v{q+1}, 0xffff0000, v{q}
            v_lshlrev_b32 v{q}, 16, v{q}
            v_pk_add_f32 {vr(q,2)}, {vr(q,2)}, {vr(q+2,2)}
            v_lshlrev_b32 v{q+2}, 16, v{x+hf}
            v_cvt_pk_bf16_f32 v{q}, v{q}, v{q+1}
            v_and_b32 v{q+3}, 0xffff0000, v{x+hf}
            v_and_b32 v{q+1}, 0xffff0000, v{q}
            v_lshlrev_b32 v{q}, 16, v{q}
            v_pk_add_f32 {vr(q,2)}, {vr(q,2)}, {vr(q+2,2)}
            v_cvt_pk_bf16_f32 v{56+2*ti+hf}, v{q}, v{q+1}
            """)
        a(f"buffer_store_dwordx2 {vr(56+2*ti,2)}, v248, s[8:11], s{4 if ti < 2 else 5} offen offset:{512 if ti%2==0 else 0} sc1")
    a("v_mov_b32 v20, 0x3f803f80\nv_mov_b32 v21, 0x3f803f80\nv_mov_b32 v22, 0x3f803f80\nv_mov_b32 v23, 0x3f803f80")
    for s in range(16):
        a(f"v_mfma_f32_32x32x16_bf16 v[128:143], {ar(4*s,4)}, v[20:23], {'0' if s == 0 else 'v[128:143]'}")
    a(f"""
    s_lshl_b32 s70, s3, 14
    s_mul_i32 s71, s3, {448*1024}
    s_lshl_b32 s4, s84, 7
    s_add_u32 s71, s71, s4
    s_lshl_b32 s4, s2, 7
    s_add_u32 s4, s4, {FB:#x}
    v_mov_b32 v2, s28
    v_mov_b32 v24, 0
    s_waitcnt vmcnt(0)
    s_barrier
    s_cmp_lg_u32 s3, 0
    s_cbranch_scc1 L_nofb
    s_mov_b64 exec, 1
    buffer_store_dword v2, v24, s[8:11], s4 offen sc1
    s_mov_b64 exec, -1
    L_nofb:
    """)
    stamp(a, "flagB")
    a.set_bg(dma_groups(16, 244, 20, 1024, 8192), 2)
    w1_tr(1)
    a.flush_bg()
    a(f"""
    s_lshl_b32 s4, s67, 6
    v_lshl_add_u32 v24, v6, 3, s4
    """)
    for g in range(4):
        a(f"global_load_dwordx2 {vr(160+2*g,2)}, v24, s[54:55] offset:{16*g}")
    a("s_waitcnt lgkmcnt(0)")
    for s in range(16, 32):
        a(f"v_mfma_f32_32x32x16_bf16 v[128:143], {ar(4*s,4)}, v[20:23], v[128:143]")
    a(f"""
    s_lshl_b32 s4, s3, 14
    v_add_u32 v24, s4, v245
    v_xor_b32 v25, 512, v24
    s_waitcnt vmcnt(0)
    """)
    def w2_tr(s0, n, areg, va, vb):
        for s in range(n):
            for dl, v in enumerate((va, vb)):
                for hf in range(2):
                    a(f"ds_read_b64_tr_b16 {ar(areg(s0+s)+4*dl+2*hf,2)}, v{v} offset:{s*2048+hf*1024}")
    W2A = lambda s: 128 + 8 * s if s < 16 else 8 * (s - 16)
    w2_tr(0, 8, W2A, 24, 25)
    for g in range(4):
        for k in range(2):
            a(f"v_lshlrev_b32 v{144+4*g+2*k}, 16, v{160+2*g+k}")
            a(f"v_and_b32 v{144+4*g+2*k+1}, 0xffff0000, v{160+2*g+k}")
    a(f"""
    s_mov_b32 s85, s71
    s_cmp_ge_u32 s31, 28
    s_cbranch_scc1 L_skip1
    v_lshlrev_b32 v24, 7, v0
    s_mov_b32 s4, {FB:#x}
    """)
    stamp(a, "prepB")
    poll(a, "L_pb", 24, 4)
    a(f"""
    s_lshl_b32 s70, s3, 12
    s_mul_i32 s71, s3, {16*RS}
    s_lshl_b32 s4, s66, 8
    s_add_u32 s71, s71, s4
    s_add_u32 s71, s71, {HT:#x}
    v_mov_b32 v16, v242
    v_xor_b32 v17, 64, v242
    v_xor_b32 v18, 128, v242
    v_xor_b32 v19, 192, v242
    s_waitcnt lgkmcnt(0)
    s_barrier
    """)
    stamp(a, "syncB")
    def hchunk(c):
        L = []
        for k in range(4):
            adv_s = 4 * RS if k < 3 else 52 * RS
            adv_m = 1024 if k < 3 else 16384 - 3072
            L.append(f"s_mov_b32 m0, s70\ns_add_u32 s70, s70, {adv_m}\nbuffer_load_dwordx4 v241, s[8:11], s71 offen sc1 lds\ns_add_u32 s71, s71, {adv_s}")
        return L
    PRE = 4
    base_vm = a.vm
    for c in range(PRE):
        for x in hchunk(c): a(x)
    G = 64; SQ, SM = 24, 28; FR = [32, 48]
    def rd(s, q):
        bf = s & 1
        return [f"ds_read_b64_tr_b16 {vr(FR[bf]+4*q+2*hf,2)}, v{16+q} offset:{(s%16)*4096+hf*1024}" for hf in range(2)]
    a.wait_vm(base_vm + 4); a("s_barrier")
    stamp(a, "g1a")
    for q in range(4):
        for x in rd(0, q): a(x)
    for s in range(32):
        c, ks = s // 4, s % 4
        f0 = FR[s & 1]; z = s == 0; wf = ar(4 * s, 4)
        nxt = s + 1 < 32
        if nxt and ks == 3:
            a.wait_vm(base_vm + 4 * (c + 2)); a("s_barrier")
        for q in range(4):
            a(f"s_waitcnt lgkmcnt({6 if nxt else 6 - 2*q})")
            a(f"v_mfma_f32_32x32x16_bf16 {vr(G+16*q,16)}, {wf}, {vr(f0+4*q,4)}, {'0' if z else vr(G+16*q,16)}")
            if nxt:
                if s + 1 == 16: a(f"v_add_u32 v{16+q}, 0x10000, v{16+q}")
                for x in rd(s + 1, q): a(x)
            if q < 2:
                a(f"v_mfma_f32_4x4x4_16b_bf16 {vr(SQ,4)}, {vr(f0+2*q,2)}, {vr(f0+2*q,2)}, {'0' if z and q == 0 else vr(SQ,4)}")
                a(f"v_mfma_f32_4x4x4_16b_bf16 {vr(SM,4)}, v[20:21], {vr(f0+2*q,2)}, {'0' if z and q == 0 else vr(SM,4)}")
            if q == 2 and c + PRE < 8: a(hchunk(c + PRE)[ks])
    stamp(a, "g1b")
    a(f"""
    v_cmp_eq_u32 vcc, 1, v7
    v_cmp_eq_u32 s[4:5], 2, v7
    v_cmp_eq_u32 s[72:73], 3, v7
    v_cndmask_b32 v{SQ}, v{SQ}, v{SQ+1}, vcc
    v_cndmask_b32 v{SQ}, v{SQ}, v{SQ+2}, s[4:5]
    v_cndmask_b32 v{SQ}, v{SQ}, v{SQ+3}, s[72:73]
    v_mov_b32 v{SQ+1}, v{SQ}
    v_permlane32_swap_b32 v{SM}, v{SM+1}
    v_permlane32_swap_b32 v{SQ}, v{SQ+1}
    v_add_f32 v{SM}, v{SM}, v{SM+1}
    v_add_f32 v{SQ}, v{SQ}, v{SQ+1}
    """)
    row_stats(a, SM, SQ, 20, 21, 22)
    a(f"""
    v_mul_f32 v20, -v20, v21
    v_and_b32 v9, 31, v1
    v_lshlrev_b32 v9, 3, v9
    s_lshl_b32 s4, s3, 8
    s_add_u32 s4, s4, {XCH}
    v_add_u32 v9, s4, v9
    ds_write_b64 v9, v[20:21]
    v_xor_b32 v11, 256, v9
    v_xor_b32 v12, 512, v9
    v_xor_b32 v13, 768, v9
    s_lshl_b32 s4, s66, 2
    s_lshl_b32 s5, s67, 11
    s_add_u32 s5, s5, {HF:#x}
    """)
    for q in range(4):
        a(f"""
        s_xor_b32 s72, s3, {q}
        s_add_u32 s72, s72, s4
        s_mul_i32 s72, s72, {112*1024}
        s_add_u32 s{74+q}, s72, s5
        """)
    a(f"""
    s_mul_i32 s70, s3, 40960
    s_mov_b32 s71, s85
    s_waitcnt lgkmcnt(0)
    s_barrier
    ds_read_b64 v[22:23], v11
    ds_read_b64 v[24:25], v12
    ds_read_b64 v[26:27], v13
    """)
    NB1 = 12
    a.set_bg(dma_groups(NB1, 244, 20, 1024, 8192), 14)
    for q in range(4):
        st = 20 + 2 * q
        if q == 1: a("s_waitcnt lgkmcnt(0)")
        A = G + 16 * q
        for k in range(0, 16, 2):
            a(f"v_pk_fma_f32 {vr(A+k,2)}, {vr(A+k,2)}, {vr(st,2)}, {vr(144+k,2)} op_sel:[0,1,0] op_sel_hi:[1,1,1]")
        for k in range(0, 16, 2):
            a(f"v_pk_fma_f32 {vr(A+k,2)}, {vr(128+k,2)}, {vr(st,2)}, {vr(A+k,2)} op_sel_hi:[1,0,1]")
        for k in range(16):
            a(f"v_max_f32 v{A+k}, 0, v{A+k}")
        for k in range(0, 16, 2):
            a(f"v_pk_mul_f32 {vr(A+k,2)}, {vr(A+k,2)}, {vr(A+k,2)}")
        o = 32 + 8 * q
        for k in range(8):
            a(f"v_cvt_pk_bf16_f32 v{o+k}, v{A+2*k}, v{A+2*k+1}")
        a(f"buffer_store_dwordx4 {vr(o,4)}, v3, s[8:11], s{74+q} offen sc1")
        a(f"buffer_store_dwordx4 {vr(o+4,4)}, v3, s[8:11], s{74+q} offen offset:1024 sc1")
    tokH = a.vm
    a.flush_bg()
    stamp(a, "epi1")
    NB2 = 14
    for x in dma_groups(NB2, 244, 20, 1024, 8192): a(x)
    a(f"""
    s_lshl_b32 s4, s66, 4
    s_add_u32 s4, s4, s7
    s_lshl_b32 s4, s4, 7
    s_add_u32 s4, s4, {FC:#x}
    v_mov_b32 v2, s28
    v_mov_b32 v24, 0
    """)
    a.wait_vm(tokH)
    a(f"""
    s_barrier
    s_cmp_lg_u32 s3, 0
    s_cbranch_scc1 L_nofc
    s_mov_b64 exec, 1
    buffer_store_dword v2, v24, s[8:11], s4 offen sc1
    s_mov_b64 exec, -1
    L_nofc:
    s_branch L_join
    L_skip1:
    s_mul_i32 s70, s3, 40960
    s_mov_b32 s71, s85
    s_waitcnt lgkmcnt(0)
    s_barrier
    """)
    for x in dma_groups(NB1 + NB2, 244, 20, 1024, 8192): a(x)
    a.label("L_join")
    stamp(a, "flagC")
    NB3 = 40 - NB1 - NB2
    for x in dma_groups(NB3, 244, 20, 1024, 8192): a(x)
    a(f"""
    s_mul_i32 s4, s3, 40960
    v_add_u32 v24, s4, v245
    v_xor_b32 v25, 512, v24
    s_waitcnt vmcnt({NB3})
    """)
    n1 = (NB1 + NB2) // 2
    w2_tr(8, n1, W2A, 24, 25)
    a(f"""
    v_add_u32 v24, {n1*2048}, v24
    v_add_u32 v25, {n1*2048}, v25
    s_mul_i32 s4, s3, {28*1024}
    s_mul_i32 s74, s68, {112*1024}
    s_add_u32 s74, s74, s4
    s_add_u32 s74, s74, {HF:#x}
    s_xor_b32 s75, s68, 1
    s_mul_i32 s75, s75, {112*1024}
    s_add_u32 s75, s75, s4
    s_add_u32 s75, s75, {HF:#x}
    v_and_b32 v4, 31, v1
    s_lshl_b32 s4, s69, 5
    v_add_u32 v26, s4, v4               ; d
    v_mul_u32_u24 v27, {RS}, v26
    v_lshl_add_u32 v27, v6, 3, v27
    s_lshl_b32 s76, s68, 6
    s_add_u32 s76, s76, {HT:#x}
    v_lshlrev_b32 v26, 1, v26
    v_lshl_add_u32 v8, v6, 12, v26
    s_lshl_b32 s77, s68, 15
    s_add_u32 s78, s77, 8192
    s_add_u32 s79, s77, 16384
    s_add_u32 s80, s77, 24576
    s_mul_i32 s4, s3, 12288
    v_add_u32 v9, s4, v3
    """)
    for ql in (1, 2, 3):
        a(f"""
        s_xor_b32 s4, s3, {ql}
        s_mul_i32 s4, s4, 12288
        s_add_u32 s4, s4, {(ql-1)*4096}
        v_add_u32 v{9+ql}, s4, v3
        """)
    a("s_waitcnt vmcnt(0)")
    w2_tr(8 + n1, 20 - n1, W2A, 24, 25)
    a(f"""
    s_lshr_b32 s4, s87, 1
    s_lshl_b32 s4, s4, 11
    s_add_u32 s4, s4, {FC:#x}
    v_lshlrev_b32 v28, 7, v1
    """)
    stamp(a, "prepC")
    poll(a, "L_pc", 28, 4, mask=0x3fff)
    stamp(a, "syncC")
    ACC2, RB, R = 32, 96, 16
    def loads(s):
        b = RB + 8 * (s % R)
        L = [f"buffer_load_dwordx4 {vr(b+4*k,4)}, v3, s[8:11], s{74+k} offen offset:{(s%4)*1024} sc1" for k in range(2)]
        if s % 4 == 3: L[1] += "\ns_add_u32 s74, s74, 4096\ns_add_u32 s75, s75, 4096"
        return L
    base_vm = a.vm
    PREL = 12
    for s in range(PREL):
        for x in loads(s): a(x)
    a("s_waitcnt lgkmcnt(0)\ns_barrier")
    for s in range(28):
        b = RB + 8 * (s % R)
        nl = loads(s + PREL) if s + PREL < 28 else []
        z = s == 0
        acc = lambda q: vr(ACC2 + 16 * q, 16)
        w0, w1 = ar(W2A(s), 4), ar(W2A(s) + 4, 4)
        a.wait_vm(base_vm + 2 * s + 1)
        a(f"v_mfma_f32_32x32x16_bf16 {acc(0)}, {vr(b,4)}, {w0}, {'0' if z else acc(0)}")
        if nl: a(nl[0])
        a(f"v_mfma_f32_32x32x16_bf16 {acc(1)}, {vr(b,4)}, {w1}, {'0' if z else acc(1)}")
        a.wait_vm(base_vm + 2 * s + 2)
        a(f"v_mfma_f32_32x32x16_bf16 {acc(2)}, {vr(b+4,4)}, {w0}, {'0' if z else acc(2)}")
        if nl: a(nl[1])
        a(f"v_mfma_f32_32x32x16_bf16 {acc(3)}, {vr(b+4,4)}, {w1}, {'0' if z else acc(3)}")
        if s == 28 - PREL:
            for g in range(4):
                a(f"buffer_load_dwordx2 {vr(16+2*g,2)}, v27, s[8:11], s76 offen offset:{16*g} sc1")
            a("global_load_ushort v24, v26, s[58:59]")
        if s == 0: stamp(a, "g2a")
    stamp(a, "g2b")
    for ql in (1, 2, 3):
        for k in range(4):
            a(f"ds_write_b128 v{9+ql}, {vr(ACC2+16*ql+4*k,4)} offset:{1024*k}")
    a("s_waitcnt vmcnt(0)\nv_lshlrev_b32 v24, 16, v24")
    for g in range(4):
        for k in range(2):
            a(f"v_lshlrev_b32 v{96+4*g+2*k}, 16, v{16+2*g+k}")
            a(f"v_and_b32 v{96+4*g+2*k+1}, 0xffff0000, v{16+2*g+k}")
    for k in range(16):
        a(f"v_add_f32 v{96+k}, v{96+k}, v24")
    for k in range(0, 16, 2):
        a(f"v_pk_add_f32 {vr(ACC2+k,2)}, {vr(ACC2+k,2)}, {vr(96+k,2)}")
    a("s_waitcnt lgkmcnt(0)\ns_barrier")
    for k in range(4):
        for sl in range(3):
            a(f"ds_read_b128 {vr(112+16*sl+4*k,4)}, v9 offset:{4096*sl+1024*k}")
    for k in range(4):
        a(f"s_waitcnt lgkmcnt({9-3*k})")
        for j in (0, 2):
            r = 4 * k + j
            a(f"v_pk_add_f32 {vr(112+r,2)}, {vr(112+r,2)}, {vr(128+r,2)}")
            a(f"v_pk_add_f32 {vr(ACC2+r,2)}, {vr(ACC2+r,2)}, {vr(144+r,2)}")
            a(f"v_pk_add_f32 {vr(ACC2+r,2)}, {vr(ACC2+r,2)}, {vr(112+r,2)}")
            a(f"v_cvt_pk_bf16_f32 v{ACC2+r}, v{ACC2+r}, v{ACC2+r+1}")
            a(f"buffer_store_short v{ACC2+r}, v8, s[24:27], s{77+k} offen offset:{1024*j}")
            a(f"buffer_store_short_d16_hi v{ACC2+r}, v8, s[24:27], s{77+k} offen offset:{1024*(j+1)}")
    if STAMP:
        a("s_waitcnt vmcnt(0)")
        stamp(a, "end")
        a(f"""
        s_lshl_b32 s4, s2, 10
        s_add_u32 s4, s4, {TSB:#x}
        v_lshlrev_b32 v2, 2, v0
        buffer_store_dword v255, v2, s[8:11], s4 offen
        """)
    a.label("L_exit")
    a("s_endpgm")

def build(path, stamp_=False, as_list=False):
    global STAMP
    STAMP = stamp_
    STAMPS.clear()
    hdr = open(f"cdna_kernels/{NAME}.s.ref").read().split("; Override launch")[0]
    a = Asm()
    mega(a)
    s = hdr
    if as_list: s += f"; @launch kernel={KN} grid=(256,1,1) block=(256,1,1) lds={LDS_BYTES}\n"
    else: s += f"; @launch grid=(256,1,1) block=(256,1,1) lds={LDS_BYTES}\n"
    s += '.amdgcn_target "amdgcn-amd-amdhsa--gfx950"\n.text\n'
    s += a.text()
    s += f""".section .rodata,"a"
.p2align 6
.amdhsa_kernel {KN}
  .amdhsa_next_free_vgpr 512
  .amdhsa_next_free_sgpr 102
  .amdhsa_accum_offset 256
  .amdhsa_group_segment_fixed_size 0
  .amdhsa_kernarg_size 136
  .amdhsa_user_sgpr_count 2
  .amdhsa_user_sgpr_kernarg_segment_ptr 1
  .amdhsa_system_sgpr_workgroup_id_x 1
.end_amdhsa_kernel
"""
    open(path, "w").write(s)
if __name__ == "__main__":
    build("mega.s", False)
    build("mega_l.s", False, True)
    build("mega_dbg.s", True, True)
    import json; json.dump(STAMPS, open("stamps.json", "w"))
```

```python
import gen7 as gen, sys, json
def probe(src, dst, ka, kb, mult=4, wg=0):
    s = open(src).read()
    body = f"""
.p2align 8
k5_kernel:
    s_memrealtime s[20:21]
    s_cmp_ge_u32 s2, 1
    s_cbranch_scc1 K5_exit
    s_load_dwordx2 s[4:5], s[0:1], 128
    s_waitcnt lgkmcnt(0)
    s_add_u32 s4, s4, {gen.TSB + wg*1024:#x}
    s_addc_u32 s5, s5, 0
    s_load_dword s8, s[4:5], {ka*4}
    s_load_dword s9, s[4:5], {(kb or 0)*4}
    s_waitcnt lgkmcnt(0)
    {'s_mov_b32 s9, s20' if kb is None else ''}
    s_sub_u32 s10, s9, s8
    s_min_u32 s10, s10, 5000
    s_mul_i32 s10, s10, {mult}
K5_loop:
    s_memrealtime s[22:23]
    s_waitcnt lgkmcnt(0)
    s_sub_u32 s11, s22, s20
    s_cmp_lt_u32 s11, s10
    s_cbranch_scc1 K5_loop
K5_exit:
    s_endpgm
"""
    kd = """.p2align 6
.amdhsa_kernel k5_kernel
  .amdhsa_next_free_vgpr 8
  .amdhsa_next_free_sgpr 32
  .amdhsa_accum_offset 8
  .amdhsa_group_segment_fixed_size 0
  .amdhsa_kernarg_size 136
  .amdhsa_user_sgpr_count 2
  .amdhsa_user_sgpr_kernarg_segment_ptr 1
  .amdhsa_system_sgpr_workgroup_id_x 1
.end_amdhsa_kernel
"""
    s = s.replace('.amdgcn_target', '; @launch kernel=k5_kernel grid=(1,1,1) block=(64,1,1) lds=0\n.amdgcn_target')
    s = s.replace('.section .rodata,"a"\n', body + '.section .rodata,"a"\n' + kd)
    open(dst, "w").write(s)
if __name__ == "__main__":
    st = json.load(open("stamps.json"))
    for nm in sys.argv[1:]:
        probe("r0_dbg.s", f"q_{nm}.s", 0, st.get(nm))
```

```python
import re
TRANS = ("v_exp_f32", "v_log_f32", "v_rcp_f32", "v_rsq_f32", "v_sqrt_f32", "v_sin_f32", "v_cos_f32", "v_rcp_iflag_f32")
REG_RE = re.compile(r"\b([vas])(\d+)\b|\b([vas])\[(\d+):(\d+)\]|\b(vcc|exec|m0|scc)\b")
def regs_of(txt):
    out = set()
    for m in REG_RE.finditer(txt):
        if m.group(1): out.add(m.group(1) + m.group(2))
        elif m.group(3):
            for k in range(int(m.group(4)), int(m.group(5)) + 1): out.add(m.group(3) + str(k))
        else: out.add(m.group(6))
    return out
def split_ops(s):
    ops, depth, cur = [], 0, ""
    for ch in s:
        if ch in "[(": depth += 1
        if ch in "])": depth -= 1
        if ch == "," and depth == 0:
            ops.append(cur.strip()); cur = ""
        else: cur += ch
    if cur.strip(): ops.append(cur.strip())
    return ops
def mfma_passes(op):
    if "4x4x4" in op: return 2
    if "16x16x32" in op or "16x16x16" in op: return 4
    if "32x32x16" in op or "32x32x8" in op: return 8
    raise ValueError(op)
class Ins:
    def __init__(self, text):
        self.text = text
        t = text.split(";")[0].strip()
        parts = t.split(None, 1)
        self.op = parts[0]
        rest = parts[1] if len(parts) > 1 else ""
        ops = split_ops(rest)
        self.ops = ops
        op = self.op
        self.w, self.r = set(), set()
        self.cls = "other"
        self.states = 1
        R = lambda k: regs_of(ops[k]) if k < len(ops) else set()
        allr = lambda a: set().union(*[regs_of(o) for o in ops[a:]]) if len(ops) > a else set()
        if op == "s_nop":
            self.states = int(ops[0], 0) + 1; self.cls = "nop"
        elif op.startswith("v_mfma"):
            self.cls = "mfma"; self.p = mfma_passes(op)
            self.w = R(0); self.A = R(1); self.B = R(2); self.C = R(3); self.r = self.A | self.B | self.C
        elif op.startswith("v_"):
            self.cls = "valu"
            if "permlane" in op and "swap" in op or op.startswith("v_swap"):
                self.w = R(0) | R(1); self.r = set(self.w)
            elif op.startswith(("v_add_co", "v_sub_co", "v_addc_co", "v_subb_co", "v_subrev_co")):
                self.w = R(0) | R(1); self.r = allr(2)
            else:
                self.w = R(0); self.r = allr(1)
                if op.startswith(("v_fmac", "v_dot2c", "v_pk_fmac", "v_writelane")) or "dpp" in text or "row_" in text or "quad_perm" in text:
                    self.r |= self.w
            self.dpp = ("row_" in text or "quad_perm" in text or "wave_" in text)
            self.trans = op.replace("_e32", "").replace("_e64", "") in TRANS
            self.dot = op.startswith("v_dot")
        elif op.startswith("ds_"):
            self.cls = "ds"
            if op.startswith(("ds_read", "ds_bpermute", "ds_permute", "ds_swizzle")): self.w = R(0); self.r = allr(1)
            else: self.r = allr(0)
        elif op.startswith(("buffer_", "global_")):
            self.cls = "vmem"
            self.lds = " lds" in (" " + t) and op.startswith("buffer_load") or "load_lds" in op
            if "load" in op and not self.lds: self.w = R(0); self.r = allr(1)
            else: self.r = allr(0)
            if self.lds: self.r.add("m0")
            self.wide_store = "store" in op and ("x3" in op or "x4" in op)
            if self.wide_store:
                self.data = R(0) if op.startswith("buffer") else R(1)
        elif op.startswith("s_"):
            self.cls = "salu"
            if op.startswith(("s_cmp", "s_waitcnt", "s_branch", "s_cbranch", "s_barrier", "s_setprio", "s_endpgm", "s_sleep", "s_bitcmp")):
                self.r = allr(0)
            else:
                self.w = R(0); self.r = allr(1)
                if "saveexec" in op: self.w.add("exec")
T2 = {2: 5, 4: 8, 8: 12, 16: 20}
T3 = {2: 4, 4: 6, 8: 10, 16: 18}
T4 = {2: 1, 4: 3, 8: 7, 16: 15}
def need(p, c):
    n = 0
    vw = lambda s: {x for x in s if x[0] in "va" and x not in ("vcc",)}
    sw = lambda s: {x for x in s if x[0] == "s" or x in ("vcc", "exec")}
    if p.cls == "valu":
        pv, ps = vw(p.w), sw(p.w)
        if c.cls == "mfma" and pv & c.r: n = max(n, 2)
        if c.cls == "valu":
            if p.trans and pv & c.r: n = max(n, 1)
            if ps & c.r: n = max(n, 4 if c.op.startswith(("v_readlane", "v_writelane")) else 2)
            if c.op.startswith(("v_readlane", "v_readfirstlane")) and pv & c.r: n = max(n, 1)
            if c.dpp and pv & c.r: n = max(n, 2)
            if "permlane" in c.op and pv & c.r: n = max(n, 2)
            if p.dot and pv & (c.r | c.w):
                same_c = c.op == p.op and not (pv & (regs_of(c.ops[1]) | regs_of(c.ops[2])))
                if not same_c: n = max(n, 3)
            if ("sdwa" in p.text or "op_sel" in p.text) and not p.op.startswith("v_pk") and pv & (c.r | c.w): n = max(n, 1)
        if p.dot and c.cls in ("ds", "vmem", "mfma") and pv & (c.r | c.w): n = max(n, 3)
        if p.trans and c.cls in ("ds", "vmem") and pv & c.r: n = max(n, 1)
        if c.cls == "vmem" and ps & c.r: n = max(n, 5)
    if p.cls == "mfma":
        if c.cls in ("valu", "ds", "vmem") and p.w & (c.r | c.w): n = max(n, T2[p.p])
        if c.cls == "mfma":
            if p.w & (c.A | c.B): n = max(n, T2[p.p])
            if p.w & c.C:
                if p.w == c.C and p.p == c.p: n = max(n, 2 if p.p == 2 else 0)
                else: n = max(n, T3[p.p])
            elif p.w & c.w: n = max(n, T3[p.p])
        if c.cls == "valu" and p.C & c.w: n = max(n, T4[p.p])
        if c.cls in ("ds", "vmem") and p.C & c.w: n = max(n, T4[p.p])
    if p.cls == "salu" and "m0" in p.w and ((c.cls == "vmem" and getattr(c, "lds", False)) or "addtid" in c.op): n = max(n, 1)
    if p.cls == "vmem" and getattr(p, "wide_store", False):
        if p.data & c.w: n = max(n, 2 if c.cls == "valu" else 1)
    return n
class Asm:
    def __init__(self):
        self.lines = []
        self.hist = []
        self.nlabel = 0
        self.vm = 0
        self.lg = 0
        self.lg_done = 0
        self.bg = []
        self.bg_every = 0
        self._bgc = 0
        self._in_bg = False
    def raw(self, s):
        self.lines.append(s)
    def label(self, name):
        self.lines.append(name + ":")
    def fence(self, n=0):
        if n: self.__call__("s_nop %d" % (n - 1))
    def reset(self):
        self.hist = []
    def __call__(self, text):
        for t in text.strip().split("\n"):
            t = t.strip()
            if not t or t.startswith(";"):
                if t: self.lines.append("    " + t)
                continue
            if t.endswith(":"):
                self.label(t[:-1]); continue
            ins = Ins(t)
            dist, req = 0, 0
            for p in reversed(self.hist):
                k = need(p, ins) - dist
                if k > req: req = k
                dist += p.states
                if dist > 24: break
            while req > 0:
                k = min(req, 16)
                nop = Ins("s_nop %d" % (k - 1))
                self.lines.append("    s_nop %d" % (k - 1)); self.hist.append(nop); req -= k
            self.lines.append("    " + t)
            self.hist.append(ins)
            if ins.cls == "vmem": self.vm += 1
            if ins.cls == "ds": self.lg += 1
            if ins.op == "s_waitcnt":
                m = re.search(r"lgkmcnt\((\d+)\)", t)
                if m: self.lg_done = max(self.lg_done, self.lg - int(m.group(1)))
            if len(self.hist) > 64: self.hist = self.hist[-40:]
            if self.bg and self.bg_every and not self._in_bg and ins.cls in ("valu", "mfma", "ds"):
                self._bgc += 1
                if self._bgc >= self.bg_every:
                    self._bgc = 0
                    self.emit_bg()
    def emit_bg(self, n=1):
        self._in_bg = True
        for _ in range(n):
            while self.bg and callable(self.bg[0]): self.bg.pop(0)()
            if self.bg: self.__call__(self.bg.pop(0))
            while self.bg and callable(self.bg[0]): self.bg.pop(0)()
        self._in_bg = False
    def flush_bg(self):
        self.emit_bg(len(self.bg)); self.bg_every = 0
    def set_bg(self, groups, every):
        self.bg = list(groups); self.bg_every = every; self._bgc = 0
    def wait_lg(self, tok):
        if tok <= self.lg_done: return
        self.__call__("s_waitcnt lgkmcnt(%d)" % min(self.lg - tok, 15))
    def wait_vm(self, tok, extra=""):
        n = self.vm - tok
        assert n >= 0
        self.__call__("s_waitcnt vmcnt(%d)%s" % (min(n, 63), extra))
    def text(self):
        return "\n".join(self.lines) + "\n"
def vr(a, n=1): return "v%d" % a if n == 1 else "v[%d:%d]" % (a, a + n - 1)
def ar(a, n=1): return "a%d" % a if n == 1 else "a[%d:%d]" % (a, a + n - 1)
def sr(a, n=1): return "s%d" % a if n == 1 else "s[%d:%d]" % (a, a + n - 1)
import struct
def fhex(x): return "0x%08x" % struct.unpack("<I", struct.pack("<f", x))[0]

import subprocess, os
def align_pass(lines, minrun=4):
    src = '.amdgcn_target "amdgcn-amd-amdhsa--gfx950"\n.text\n' + "\n".join(lines) + "\n"
    open("_al.s", "w").write(src)
    r = subprocess.run(["clang", "-x", "assembler", "-target", "amdgcn-amd-amdhsa", "-mcpu=gfx950", "-c", "_al.s", "-o", "_al.o"], capture_output=True, text=True)
    assert r.returncode == 0, r.stderr[:2000]
    d = subprocess.run(["llvm-objdump", "-d", "--mcpu=gfx950", "_al.o"], capture_output=True, text=True).stdout
    sizes = [len(l.split("//")[1].split(":")[1].split()) * 4 for l in d.splitlines() if "//" in l and l.startswith("\t")]
    idx = [i for i, l in enumerate(lines) if l.startswith("    ") and not l.strip().startswith(";")]
    assert len(sizes) == len(idx), (len(sizes), len(idx))
    out = list(lines)
    off = 0; n = len(idx); fixes = 0; nops = 0
    ins_before = {}
    k = 0
    while k < n:
        if sizes[k] == 8 and off % 8 == 4:
            run = 0
            while k + run < n and sizes[k + run] == 8: run += 1
            if run >= minrun and k > 0:
                prev = out[idx[k - 1]].strip()
                op = prev.split()[0]
                ok = sizes[k - 1] == 4 and op.startswith("v_") and not op.endswith(("_e64", "_e32")) and not op.startswith(("v_readfirstlane", "v_permlane", "v_swap", "v_nop", "v_accvgpr")) and idx[k] == idx[k - 1] + 1
                if ok:
                    out[idx[k - 1]] = "    " + op + "_e64" + prev[len(op):]
                    off += 4; fixes += 1
                elif run >= 8 and not any("mfma" in out[idx[k + j]] for j in range(run)):
                    ins_before[idx[k]] = "    s_nop 0"; off += 4; nops += 1
            off += 8 * run; k += run
            continue
        off += sizes[k]; k += 1
    res = []
    for i, l in enumerate(out):
        if i in ins_before: res.append(ins_before[i])
        res.append(l)
    return res, off, fixes, nops
```

```python
import sys, math
import numpy as np
from asmlib import *
NAME = "sequential_preLN__ssm_conv_s4__dense_activation_squared_relu__prompt"
KN = NAME + "_kernel"
RS = 4352
XT, HT, HF = 0x0, 0x220000, 0x440000
ST, EPOCH, ST2 = 0xB40000, 0xB58000, 0xB60000
FBX = [0xB70000, 0xB78000]
FCX = [0xB80000, 0xB88000]
WS_USED = 0xB90000
TSB = 0xC00000
LOG2E = 1.4426950408889634
LOG2E_HI = float(np.float32(LOG2E)); LOG2E_LO = LOG2E - LOG2E_HI
STAMP = False
SPIN_MAX = 1 << 18
PQ_PITCH = 544
P_BYTES = 22 * PQ_PITCH
PQ_CH = P_BYTES + 32 * PQ_PITCH
KC_STR, KC_CH = 4160, 131072
RA = 32768
HB = 32768
PQ = 32768
TAB, TAB_CH = 25856, 131072
UC, UC_STR, UC_CH = 16640, 4576, 131072
LDS_BYTES = 163840
STAMPS = {}
OPT = dict(predelayB=0)

def srd(a, s, base, nbytes):
    a(f"""
    s_mov_b32 s{s}, s{base}
    s_and_b32 s{s+1}, s{base+1}, 0xffff
    s_mov_b32 s{s+2}, {nbytes:#x}
    s_mov_b32 s{s+3}, 0x20000
    """)
def stamp(a, name):
    if not STAMP: return
    k = STAMPS.setdefault(name, len(STAMPS))
    ld = a.lg_done
    a(f"s_memrealtime s[100:101]\ns_waitcnt lgkmcnt(0)\nv_writelane_b32 v255, s100, {k}")
    a.lg_done = ld
def cmul(a, d, x, y):
    a(f"v_pk_mul_f32 {vr(d,2)}, {vr(x,2)}, {vr(y,2)} op_sel_hi:[0,1]")
    a(f"v_pk_fma_f32 {vr(d,2)}, {vr(x,2)}, {vr(y,2)}, {vr(d,2)} op_sel:[1,1,0] op_sel_hi:[1,0,1] neg_lo:[1,0,0]")
def row_stats(a, vs, vq, vm, vri, t0):
    a(f"""
    v_mul_f32 v{vs}, {fhex(1/512)}, v{vs}
    v_mul_f32 v{vq}, {fhex(1/512)}, v{vq}
    v_fma_f32 v{vq}, -v{vs}, v{vs}, v{vq}
    v_max_f32 v{vq}, 0, v{vq}
    v_cvt_pk_bf16_f32 v{t0}, v{vs}, v{vq}
    v_lshlrev_b32 v{vm}, 16, v{t0}
    v_and_b32 v{t0}, 0xffff0000, v{t0}
    v_add_f32 v{t0}, {fhex(1e-5)}, v{t0}
    v_cvt_pk_bf16_f32 v{t0}, v{t0}, v{t0}
    v_and_b32 v{t0}, 0xffff0000, v{t0}
    v_sqrt_f32 v{t0}, v{t0}
    v_cvt_pk_bf16_f32 v{t0}, v{t0}, v{t0}
    v_and_b32 v{t0}, 0xffff0000, v{t0}
    v_rcp_f32 v{vri}, v{t0}
    """)
def dma_seq(n, v4, srd_, sreg, gstep, mgroup=4096, ggroup=None, flags=""):
    L = []
    j = 0
    while j < n:
        c = min(4, n - j)
        for q in range(c):
            L.append(f"buffer_load_dwordx4 v{v4+q}, s[{srd_}:{srd_+3}], s{sreg} offen offset:{1024*q} {flags} lds")
        L.append(f"s_add_u32 m0, m0, {mgroup if c == 4 else 1024*c}")
        L.append(f"s_add_u32 s{sreg}, s{sreg}, {(ggroup or 4*gstep) if c == 4 else gstep*c}")
        j += c
    return L
def poll(a, label, vaddr, soff, mask=None):
    if mask is not None: a(f"s_mov_b64 exec, {mask:#x}")
    a(f"""
    s_mov_b32 s72, 0
    {label}:
    buffer_load_dword v2, v{vaddr}, s[8:11], s{soff} offen sc1
    s_add_u32 s72, s72, 1
    s_waitcnt vmcnt(0)
    v_cmp_ne_u32 vcc, s28, v2
    s_cmp_gt_u32 s72, {SPIN_MAX}
    s_cbranch_scc1 {label}_x
    s_and_b64 exec, exec, vcc
    s_cbranch_execnz {label}
    {label}_x:
    s_mov_b64 exec, -1
    """)
def poll4(a, label, loads, regs):
    a(f"s_mov_b32 s72, 0\ns_branch {label}_c\n{label}:")
    for x in loads: a(x)
    a(f"""
    {label}_c:
    s_add_u32 s72, s72, 1
    s_waitcnt vmcnt(0)
    v_xor_b32 v2, s28, v{regs[0]}
    v_xor_b32 v{regs[1]}, s28, v{regs[1]}
    v_xor_b32 v{regs[2]}, s28, v{regs[2]}
    v_xor_b32 v{regs[3]}, s28, v{regs[3]}
    v_or3_b32 v2, v2, v{regs[1]}, v{regs[2]}
    v_or_b32 v2, v2, v{regs[3]}
    v_cmp_ne_u32 vcc, 0, v2
    s_cmp_gt_u32 s72, {SPIN_MAX}
    s_cbranch_scc1 {label}_x
    s_cbranch_vccnz {label}
    {label}_x:
    """)

W1V, HV, W2V = 184, 188, 192
W2A = lambda s: 128 + 8 * s if s < 16 else 8 * (s - 16)

def mega(a):
    EARLY = 0
    BUF = [2, 3, 1, 2, 3, 1, 2]
    def w2_tr(i):
        b = BUF[i]
        va = 238 if b == 3 else 236
        return [f"ds_read_b64_tr_b16 {ar(W2A(4*i+s)+4*dl+2*hf,2)}, v{va+dl} offset:{(32768 if b == 2 else 0)+s*2048+hf*1024}"
                for s in range(4) for dl in range(2) for hf in range(2)]
    def adv(r, step, end, total):
        return f"s_add_u32 s{r}, s{r}, {step}\ns_cmp_ge_u32 s{r}, s{end}\ns_cselect_b32 s47, {total}, 0\ns_sub_u32 s{r}, s{r}, s47"
    def w2_dma(i):
        return [f"s_add_u32 m0, s89, {BUF[i]*32768}"] + dma_seq(8, W2V, 20, 95, 8192)[:-2] + [adv(95, 32768, 32, 448*1024)]
    def w1_dma(j):
        return [f"s_add_u32 m0, s89, {(1 + j % 3)*32768}"] + dma_seq(8, W1V, 16, 71, 4 * 3584)[:-2] + [adv(71, 16*3584, 33, 128*3584)]
    def w1_tr(sg):
        b = 1 + (sg >> 3) % 3
        return [f"ds_read_b64_tr_b16 {ar(4*sg+2*hf,2)}, v{244 if b == 3 else 243} offset:{(32768 if b == 2 else 0)+(sg&7)*4096+hf*1024}" for hf in range(2)]
    def h_dma(g):
        return [f"s_add_u32 m0, s70, {[0, 131072, 16384, 147456][g]}"] + dma_seq(4, HV, 8, 90, 8 * RS, flags="sc1")[:4] + [adv(90, 32*RS, 34, 128*RS)]
    def emit(L):
        for x in L:
            if callable(x): x()
            else: a(x)
    T = {}; TS_ = {}; cur = [0]
    class Dep:
        def __init__(self, name, delay=0): self.name = name; self.delay = delay
    class FQ:
        def __init__(self, items, start=0, rate=1.0):
            self.items = list(items); self.start = start; self.rate = rate; self.credit = 0.999
        def step(self, n, force=False):
            if n < self.start and not force: return
            self.credit += self.rate
            while self.items and (self.credit >= 1 or callable(self.items[0])):
                x = self.items[0]
                if isinstance(x, int):
                    if n < x and not force: self.credit = min(self.credit, 1); return
                    self.items.pop(0); continue
                if isinstance(x, Dep):
                    if x.name not in T or (cur[0] < TS_[x.name] + x.delay and not force):
                        self.credit = min(self.credit, 1); return
                    self.items.pop(0); continue
                self.items.pop(0)
                if callable(x): x()
                else:
                    a(x); self.credit -= 1
        def flush(self):
            k = 0
            while self.items:
                self.step(0, True); k += 1
                assert k < 10000
    def flush_all(qs):
        k = 0
        while any(q.items for q in qs):
            for q in qs: q.step(0, True)
            k += 1; assert k < 10000
    def settok(name, v):
        T[name] = v; TS_[name] = cur[0]
    def tokv(name): return lambda: settok(name, a.vm)
    def tokl(name): return lambda: settok(name, a.lg)
    def waitv(name): return lambda: a.wait_vm(T[name])
    def waitl(name): return lambda: a.wait_lg(T[name])
    nfl = [0]
    def flag_store(sreg, extra="", creg=3):
        n = nfl[0]; nfl[0] += 1
        def f():
            vm = a.vm
            a(f"""
            s_cmp_lg_u32 s{creg}, 0
            s_cbranch_scc1 L_nf{n}
            s_mov_b64 exec, 1
            buffer_store_dword v252, v253, s[8:11], s{sreg} offen sc1
            {extra}
            s_mov_b64 exec, -1
            L_nf{n}:
            """)
            a.vm = vm
        return f
    def check1(label, tok, reg, load, mask=None):
        a.wait_vm(T[tok])
        vm = a.vm
        if mask is not None: a(f"s_mov_b64 exec, {mask:#x}")
        a(f"""
        s_mov_b32 s72, 0
        s_branch {label}_c
        {label}:
        {load}
        s_waitcnt vmcnt(0)
        {label}_c:
        s_add_u32 s72, s72, 1
        v_cmp_ne_u32 vcc, s28, v{reg}
        s_cmp_gt_u32 s72, {SPIN_MAX}
        s_cbranch_scc1 {label}_x
        s_and_b64 exec, exec, vcc
        s_cbranch_execnz {label}
        {label}_x:
        s_mov_b64 exec, -1
        """)
        a.vm = vm
    def check2(label, tok, r0, r1, loads):
        a.wait_vm(T[tok])
        vm = a.vm
        a(f"s_mov_b32 s72, 0\ns_branch {label}_c\n{label}:")
        emit(loads)
        a(f"""
        s_waitcnt vmcnt(0)
        {label}_c:
        s_add_u32 s72, s72, 1
        v_xor_b32 v2, s28, v{r0}
        v_xor_b32 v9, s28, v{r1}
        v_or_b32 v2, v2, v9
        v_cmp_ne_u32 vcc, 0, v2
        s_cmp_gt_u32 s72, {SPIN_MAX}
        s_cbranch_scc1 {label}_x
        s_cbranch_vccnz {label}
        {label}_x:
        """)
        a.vm = vm
    a.raw(f".globl {KN}\n.p2align 8\n.type {KN},@function\n{KN}:")
    if STAMP: a("v_mov_b32 v255, 0")
    stamp(a, "start")
    a(f"""
    s_cmp_ge_u32 s2, 256
    s_cbranch_scc1 L_exit
    s_load_dwordx16 s[32:47], s[0:1], 0
    s_load_dwordx2 s[64:65], s[0:1], 128
    s_load_dwordx16 s[48:63], s[0:1], 64
    s_getpc_b64 s[4:5]
    L_pc:
    s_lshr_b32 s31, s2, 3               ; k
    v_xor_b32 v2, s31, v0
    v_and_b32 v2, 3, v2
    v_cmp_eq_u32 vcc, 0, v2
    v_lshlrev_b32 v2, 7, v0
    v_min_u32 v2, L_end-L_pc-4, v2
    s_mov_b64 exec, vcc
    global_load_dword v254, v2, s[4:5]
    s_mov_b64 exec, -1
    v_lshrrev_b32 v2, 6, v0
    v_and_b32 v1, 63, v0
    v_readfirstlane_b32 s3, v2
    v_and_b32 v7, 3, v1                 ; l&3
    v_lshrrev_b32 v9, 2, v1             ; cp
    v_lshlrev_b32 v10, 13, v7
    v_lshl_add_u32 v10, v9, 2, v10
    s_and_b32 s30, s2, 7                ; xcd
    s_lshl_b32 s29, s30, 5
    s_add_u32 s29, s29, s31             ; p
    s_lshr_b32 s73, s29, 2              ; rg
    s_and_b32 s74, s29, 3               ; cq
    s_lshl_b32 s74, s74, 7
    s_lshl_b32 s75, s3, 5
    s_add_u32 s74, s74, s75
    s_lshl_b32 s75, s73, 15
    s_lshl_b32 s76, s74, 1
    s_add_u32 s75, s75, s76
    s_add_u32 s76, s75, 4096
    v_lshrrev_b32 v6, 5, v1             ; hh
    v_and_b32 v11, 31, v1
    v_lshlrev_b32 v11, 4, v11
    v_lshl_add_u32 v11, v6, 10, v11
    s_lshl_b32 s77, s29, 13
    s_lshl_b32 s78, s3, 11
    s_add_u32 s77, s77, s78
    s_lshr_b32 s79, s3, 1               ; ch_local
    s_and_b32 s80, s3, 1
    s_lshl_b32 s81, s29, 1
    s_add_u32 s81, s81, s79             ; d
    s_lshl_b32 s82, s81, 8
    s_lshl_b32 s83, s80, 7
    s_add_u32 s82, s82, s83
    v_lshl_add_u32 v12, v1, 1, s82
    s_lshl_b32 s83, s81, 1
    v_mov_b32 v13, s83
    s_mov_b32 s14, {2048*1024:#x}
    s_mov_b32 s15, 0x20000
    s_waitcnt lgkmcnt(0)
    s_mov_b32 s12, s32
    s_and_b32 s13, s33, 0xffff
    """)
    for e in range(8):
        a(f"buffer_load_dword v{32+e}, v10, s[12:15], s{75 if e < 4 else 76} offen offset:{(e%4)*1024}")
    tokT = a.vm
    a(f"""
    buffer_load_dwordx4 v[16:19], v11, s[12:15], s77 offen
    buffer_load_dwordx4 v[20:23], v11, s[12:15], s77 offen offset:512
    """)
    tokS = a.vm
    a(f"""
    global_load_ushort v24, v13, s[46:47]
    global_load_ushort v25, v12, s[34:35]
    global_load_ushort v26, v12, s[36:37]
    """)
    tokA = a.vm
    a(f"""
    global_load_ushort v28, v12, s[38:39]
    global_load_ushort v29, v12, s[40:41]
    global_load_ushort v30, v12, s[42:43]
    global_load_ushort v31, v12, s[44:45]
    global_load_ushort v251, v13, s[48:49]
    s_add_u32 s4, s64, {EPOCH:#x}
    s_addc_u32 s5, s65, 0
    s_load_dword s6, s[4:5], 0
    """)
    srd(a, 16, 52, 512 * 3584)
    a(f"""
    v_lshlrev_b32 v3, 4, v1             ; lane*16
    v_lshrrev_b32 v4, 4, v1             ; l>>4
    v_and_b32 v5, 15, v1                ; l&15
    v_bfe_u32 v8, v1, 2, 2              ; (l>>2)&3
    s_min_u32 s84, s31, 27
    """)
    if OPT.get("g1map", 1) == 0:
        a(f"""
        s_cmp_ge_u32 s84, 14
        s_cselect_b32 s85, 1, 0
        s_mul_i32 s86, s85, 14
        s_sub_u32 s7, s84, s86              ; ft
        s_lshl_b32 s66, s30, 1
        s_add_u32 s66, s66, s85             ; rb
        """)
    else:
        a(f"""
        s_mul_i32 s85, s84, 37
        s_lshr_b32 s85, s85, 8
        s_mul_i32 s86, s85, 7
        s_sub_u32 s86, s84, s86
        s_lshr_b32 s66, s30, 1
        s_lshl_b32 s66, s66, 2
        s_add_u32 s66, s66, s85             ; rb
        s_and_b32 s7, s30, 1
        s_mul_i32 s7, s7, 7
        s_add_u32 s7, s7, s86               ; ft
        """)
    a(f"""
    v_lshlrev_b32 v15, 2, v4
    v_xor_b32 v15, v5, v15
    v_lshlrev_b32 v15, 4, v15
    v_mul_u32_u24 v{W1V}, 3584, v4
    v_add_u32 v{W1V}, v{W1V}, v15
    v_add_u32 v{W1V+1}, {4*3584-1024}, v{W1V}
    v_add_u32 v{W1V+2}, {2*(4*3584-1024)}, v{W1V}
    v_add_u32 v{W1V+3}, {3*(4*3584-1024)}, v{W1V}
    s_lshl_b32 s70, s3, 12
    s_mul_i32 s71, s3, {128*3584}
    s_lshl_b32 s5, s7, 8
    s_add_u32 s71, s71, s5
    """)
    srd(a, 8, 64, WS_USED if not STAMP else 0x1000000)
    srd(a, 20, 56, 1792 * 1024)
    srd(a, 24, 60, 2048 * 1024)
    a(f"""
    v_lshrrev_b32 v2, 3, v1
    v_mul_u32_u24 v{HV}, {RS}, v2
    v_lshlrev_b32 v2, 2, v4
    v_xor_b32 v2, v1, v2
    v_and_b32 v2, 7, v2
    v_lshl_add_u32 v{HV}, v2, 4, v{HV}
    v_add_u32 v{HV+1}, {8*RS-1024}, v{HV}
    v_add_u32 v{HV+2}, {2*(8*RS-1024)}, v{HV}
    v_add_u32 v{HV+3}, {3*(8*RS-1024)}, v{HV}
    s_lshl_b32 s67, s7, 2
    s_add_u32 s67, s67, s3              ; fb
    """)
    if OPT.get("g2map", 1) == 0:
        a(f"""
        s_lshl_b32 s87, s30, 2
        s_lshr_b32 s85, s31, 3
        s_add_u32 s87, s87, s85             ; tt
        s_and_b32 s84, s31, 7               ; dt
        """)
    else:
        a(f"""
        s_lshr_b32 s87, s30, 1
        s_lshl_b32 s87, s87, 3
        s_lshr_b32 s85, s31, 2
        s_add_u32 s87, s87, s85             ; tt
        s_and_b32 s84, s30, 1
        s_lshl_b32 s84, s84, 2
        s_and_b32 s85, s31, 3
        s_add_u32 s84, s84, s85             ; dt
        """)
    a(f"""
    s_lshl_b32 s69, s84, 1
    s_add_u32 s69, s69, s80
    v_mul_u32_u24 v14, {2*RS}, v9
    v_lshl_add_u32 v14, v7, 4, v14
    s_mul_i32 s85, s74, {RS}
    s_lshl_b32 s86, s73, 6
    s_add_u32 s85, s85, s86
    s_add_u32 s85, s85, {XT:#x}
    s_add_u32 s86, s85, {RS}
    s_mov_b32 s73, 0x05040100
    s_mov_b32 s74, 0x07060302
    s_mov_b32 s75, 0x3f803f80
    v_and_b32 v15, 1, v4                ; th
    v_lshlrev_b32 v15, 5, v15
    v_lshl_add_u32 v15, v7, 3, v15      ; th*32 + c4*8
    v_lshl_add_u32 v242, v6, 3, v8
    v_lshl_add_u32 v242, v242, 8, v15
    v_xor_b32 v2, s3, v8
    v_lshl_add_u32 v242, v2, 6, v242
    v_add_u32 v243, 32768, v242
    v_add_u32 v244, 98304, v242
    v_lshl_add_u32 v242, v6, 3, v8
    v_lshl_add_u32 v242, v242, 7, v15
    v_lshrrev_b32 v2, 1, v8
    v_lshl_add_u32 v242, v2, 6, v242
    v_bfe_u32 v2, v1, 2, 3
    v_lshlrev_b32 v{W2V}, 10, v2
    v_lshl_add_u32 v{W2V}, v6, 6, v{W2V}
    v_lshl_add_u32 v{W2V}, v7, 4, v{W2V}
    v_add_u32 v{W2V+1}, {8192-1024}, v{W2V}
    v_add_u32 v{W2V+2}, {2*(8192-1024)}, v{W2V}
    v_add_u32 v{W2V+3}, {3*(8192-1024)}, v{W2V}
    s_mul_i32 s95, s3, {448*1024}
    s_lshl_b32 s76, s84, 7
    s_add_u32 s95, s95, s76
    s_lshl_b32 s89, s3, 13
    """)
    a(f"""
    v_lshl_add_u32 v245, v6, 2, v8
    v_lshl_add_u32 v245, v245, 6, v15
    s_lshl_b32 s76, s80, 9
    v_add_u32 v245, s76, v245
    v_add_u32 v236, s89, v245
    v_add_u32 v236, 32768, v236
    v_xor_b32 v237, 512, v236
    v_add_u32 v238, 0x10000, v236
    v_add_u32 v239, 0x10000, v237
    v_lshrrev_b32 v2, 1, v5
    v_lshlrev_b32 v2, 6, v2
    v_lshl_add_u32 v2, v4, 4, v2        ; 64(j>>1)+16h
    v_and_b32 v15, 1, v5
    v_lshl_add_u32 v248, v15, 3, v2
    v_mul_u32_u24 v247, {UC_STR}, v15
    s_mul_i32 s76, s79, {UC_CH}
    s_add_u32 s76, s76, {UC}            ; UC(ch)
    s_lshl_b32 s83, s80, 8
    s_sub_u32 s83, 256, s83             ; (1-par)*256
    s_add_u32 s82, s76, s83
    v_add3_u32 v247, v247, v2, s82      ; B base
    v_mul_u32_u24 v246, {KC_STR}, v7
    v_sub_u32 v2, v4, v8
    v_lshlrev_b32 v2, 4, v2
    s_mul_i32 s77, s79, {KC_CH}
    s_add_u32 s78, s77, 48
    s_add_u32 s78, s78, s83
    v_add3_u32 v246, v246, v2, s78      ; A base
    s_lshl_b32 s82, s80, 10
    s_add_u32 s78, s76, {UC_STR+448}
    s_add_u32 s78, s78, s82
    v_add_u32 v249, s78, v248
    s_add_u32 s78, s77, {TAB}
    s_lshl_b32 s83, s80, 11
    s_add_u32 s83, s83, s78
    v_add_u32 v240, s83, v3
    s_lshl_b32 s83, s80, 11
    s_sub_u32 s83, s78, s83
    s_add_u32 s83, s83, 2048
    v_add_u32 v241, s83, v3
    s_sub_u32 s96, 0, s80
    s_mov_b32 s97, s96
    v_mov_b32 v40, 0
    v_mov_b32 v41, 0
    v_mov_b32 v42, 0
    v_mov_b32 v43, 0
    s_mul_i32 s78, s80, {UC_STR}
    s_add_u32 s78, s78, s76
    v_add_u32 v2, s78, v3
    s_mul_i32 s78, s79, {TAB_CH}
    s_add_u32 s78, s78, {TAB}
    s_sub_u32 s4, s78, {29*16}
    v_add_u32 v15, s4, v3
    v_cmp_lt_u32 vcc, 28, v1
    v_cndmask_b32 v2, v2, v15, vcc
    ds_write_b128 v2, v[40:43]
    s_sub_u32 s78, s78, {4*0x3EC0}
    s_mul_i32 s4, s79, {PQ_CH}
    s_add_u32 s4, s4, {PQ}
    s_lshl_b32 s88, s80, 8
    s_add_u32 s88, s88, s4
    v_mul_u32_u24 v201, {PQ_PITCH}, v5
    v_lshl_add_u32 v201, v4, 4, v201
    s_mul_i32 s5, s80, {16*PQ_PITCH}
    s_add_u32 s5, s5, s4
    s_add_u32 s5, s5, {P_BYTES}
    v_add_u32 v202, s5, v201
    v_add_u32 v201, s4, v201
    s_lshl_b32 s5, s80, 11
    s_add_u32 s5, s5, s77
    v_lshl_add_u32 v231, v1, 5, s5
    v_mul_u32_u24 v232, {KC_STR}, v8
    v_lshl_add_u32 v232, v7, 4, v232
    s_add_u32 s5, s77, 4096
    v_add_u32 v232, s5, v232
    ds_write_b128 v232, v[40:43]
    s_lshl_b32 s5, s3, 10
    s_add_u32 s5, s5, {UC}
    v_lshlrev_b32 v233, 2, v1
    v_add_u32 v234, s5, v233
    v_add_u32 v235, {UC_CH}, v234
    s_lshl_b32 s5, s80, 7
    v_lshl_add_u32 v15, v5, 3, s5       ; 8*(16jb+j)
    """)
    a("v_cvt_f32_u32 v15, v15")
    for ib, tbl in enumerate([[(0, 1), (4, 1), (256, 2), (512, 256)], [(1536, 256), (516, 256), (1028, 256), (1028, 256)]]):
        a(f"v_mov_b32 v52, {fhex(tbl[3][0])}\nv_mov_b32 v53, {fhex(tbl[3][1])}")
        for h in range(3):
            if tbl[h] == tbl[3]: continue
            a(f"v_cmp_ne_u32 vcc, {h}, v4")
            a(f"v_mov_b32 v2, {fhex(tbl[h][0])}")
            a(f"v_cndmask_b32 v52, v2, v52, vcc")
            if tbl[h][1] != tbl[3][1]: a(f"v_cndmask_b32 v53, {float(tbl[h][1])}, v53, vcc")
        a("v_add_f32 v52, v52, v15")
        for r in range(4):
            if ib == 0 and r == 0:
                a(f"v_max_f32 v2, {fhex(0.75)}, v52\nv_lshrrev_b32 v2, 14, v2")
            else:
                a("v_lshrrev_b32 v2, 14, v52")
            a(f"v_add_u32 v{204+4*ib+r}, s78, v2")
            if r < 3: a("v_add_f32 v52, v52, v53")
    a(f"""
    s_lshl_b32 s5, s80, 10
    s_sub_u32 s5, 2047, s5
    v_sub_u32 v52, s5, v3
    v_cvt_f32_i32 v52, v52
    v_add_f32 v53, -1.0, v52
    v_mov_b32 v15, {fhex(0.75)}
    """)
    for e in range(0, 20, 2):
        if e >= 14:
            a(f"""
            v_fmamk_f32 v54, v52, {fhex(0.125)}, v15
            v_fmamk_f32 v55, v53, {fhex(0.125)}, v15
            v_max_f32 v54, v54, v52
            v_max_f32 v55, v55, v53
            v_cvt_pk_bf16_f32 v2, v54, v55
            """)
        else:
            a("v_cvt_pk_bf16_f32 v2, v52, v53")
        if e < 18: a("v_pk_add_f32 v[52:53], v[52:53], -2.0 op_sel_hi:[1,0]")
        a(f"v_mad_u32_u16 v{212+e}, v2, 4, s78")
        if e + 1 <= 18: a(f"v_mad_u32_u16 v{213+e}, v2, 4, s78 op_sel:[1,0,0,0]")
    a.flush_bg()
    a.wait_vm(tokT)
    stamp(a, "T")
    for k in range(4):
        a(f"v_perm_b32 v{44+k}, v{32+2*k+1}, v{32+2*k}, s73")
    a(f"buffer_store_dwordx4 v[44:47], v14, s[8:11], s85 offen sc1")
    for k in range(4):
        a(f"v_perm_b32 v{48+k}, v{32+2*k+1}, v{32+2*k}, s74")
    a(f"buffer_store_dwordx4 v[48:51], v14, s[8:11], s86 offen sc1")
    tokXT = a.vm
    a(f"""
    s_lshl_b32 s5, s2, 2
    s_add_u32 s5, s5, s3
    s_mul_i32 s5, s5, {14*128}
    v_lshlrev_b32 v2, 7, v1
    s_mov_b64 exec, 0x3fff
    buffer_load_dword v254, v2, s[20:23], s5 offen
    buffer_load_dword v253, v2, s[16:19], s5 offen
    s_mov_b64 exec, -1
    """)
    a("v_mov_b32 v52, 0\nv_mov_b32 v53, 0\nv_mov_b32 v54, 0\nv_mov_b32 v55, 0")
    a.wait_vm(tokS)
    for j in range(8):
        a(f"v_dot2_f32_bf16 v{52+(j&1)}, v{16+j}, s75, v{52+(j&1)}")
        a(f"v_dot2_f32_bf16 v{54+(j&1)}, v{16+j}, v{16+j}, v{54+(j&1)}")
    a("v_add_f32 v52, v52, v53\nv_add_f32 v54, v54, v55")
    for sh in (8, 4, 2, 1):
        a(f"v_add_f32_dpp v52, v52, v52 row_ror:{sh} row_mask:0xf bank_mask:0xf")
        a(f"v_add_f32_dpp v54, v54, v54 row_ror:{sh} row_mask:0xf bank_mask:0xf")
    a(f"""
    v_mov_b32 v53, v52
    v_mov_b32 v55, v54
    s_lshl_b32 s91, s29, 6
    s_lshl_b32 s5, s3, 4
    s_add_u32 s91, s91, s5
    s_add_u32 s91, s91, {ST:#x}
    v_permlane16_swap_b32 v52, v53
    v_permlane16_swap_b32 v54, v55
    v_add_f32 v52, v52, v53
    v_add_f32 v54, v54, v55
    """)
    row_stats(a, 52, 54, 56, 45, 53)
    a(f"""
    s_waitcnt lgkmcnt(0)
    s_add_u32 s28, s6, 1
    s_mul_i32 s28, s28, 0x9E3779B1      ; tag
    v_readlane_b32 s92, v56, 32
    v_readlane_b32 s93, v45, 32
    v_lshrrev_b32 v44, 16, v56
    v_mov_b32 v47, s28
    v_or_b32 v44, s92, v44
    v_mov_b32 v46, s93
    s_mov_b32 s4, {fhex(LOG2E_HI)}
    """)
    a.wait_vm(tokA)
    stamp(a, "A")
    a(f"""
    v_lshlrev_b32 v24, 16, v24
    v_lshlrev_b32 v25, 16, v25
    v_lshlrev_b32 v26, 16, v26
    v_mul_f32 v16, s4, v24
    v_fma_f32 v17, v24, s4, -v16
    v_fmac_f32 v17, {fhex(LOG2E_LO)}, v24
    v_exp_f32 v16, v16
    v_mul_f32 v17, {fhex(math.log(2))}, v17
    v_fma_f32 v16, v16, v17, v16
    v_cvt_pk_bf16_f32 v16, v16, v16
    v_and_b32 v16, 0xffff0000, v16      ; dt
    v_mul_f32 v25, v16, v25
    v_mul_f32 v26, v16, v26
    v_mul_f32 v25, s4, v25              ; a2
    v_mul_f32 v26, 0.15915494, v26      ; b2
    """)
    def edirect(d, l):
        a(f"""
        v_mul_f32 v18, {fhex(float(l))}, v25
        v_mul_f32 v19, {fhex(float(l))}, v26
        v_exp_f32 v18, v18
        v_fract_f32 v19, v19
        v_cos_f32 v{d}, v19
        v_sin_f32 v{d+1}, v19
        v_pk_mul_f32 {vr(d,2)}, {vr(d,2)}, v[18:19] op_sel_hi:[1,0]
        """)
    cnt = [0]; pend = []
    def flush_put():
        for x in pend: a(x)
        pend.clear()
    def put(src, row, isP):
        t = 20 + cnt[0] % 4; cnt[0] += 1
        a(f"v_cvt_pk_bf16_f32 v{t}, v{src}, {'-' if isP else ''}v{src+1}")
        pend.append(f"ds_write_addtid_b32 v{t} offset:{row*PQ_PITCH + (0 if isP else P_BYTES)}")
        if len(pend) >= 2: flush_put()
    TMP = [56, 58, 60, 62]
    Q = {j: 64 + 2 * j for j in range(1, 17)}
    npub = [0]
    def publish(final=False):
        n = npub[0]; npub[0] += 1
        flush_put()
        if final:
            a(f"s_cmp_eq_u32 s94, 0\ns_cbranch_scc1 L_np{n}\ns_waitcnt vmcnt({NY})")
        else:
            if n == 0: a("s_waitcnt vmcnt(15)")
            a(f"s_getreg_b32 s93, hwreg(HW_REG_IB_STS, 0, 4)\ns_cmp_lt_u32 s93, s94\ns_cbranch_scc0 L_np{n}")
        a(f"""
        s_mov_b64 exec, 1
        buffer_store_dwordx4 v[44:47], v3, s[8:11], s91 offen sc1
        s_mov_b64 exec, -1
        s_mov_b32 s94, 0
        """)
        stamp(a, "pub")
        a(f"L_np{n}:")
    edirect(Q[1], 8)
    a.flush_bg()
    NY = a.vm - tokXT
    a(f"s_mov_b32 m0, s88\ns_mov_b32 s94, {NY+1}")
    a(f"v_mov_b32 v17, 0x00003f80\nds_write_addtid_b32 v17 offset:{P_BYTES}")
    prev = 1
    PUBAT = {0: (12, 18, 24, 30), 1: (16, 26), 2: (20,)}[OPT.get("pubs", 1)]
    for j in range(2, 17):
        hb = 1 << (j.bit_length() - 1)
        x, y = (j // 2, j // 2) if j == hb else (hb, j - hb)
        cmul(a, Q[j], Q[x], Q[y]); put(Q[prev], prev, 0); prev = j
        if j in PUBAT: publish()
    pr, prow = Q[16], 16
    for j in range(17, 32):
        t = TMP[j % 4]
        cmul(a, t, Q[16], Q[j - 16]); put(pr, prow, 0); pr, prow = t, j
        if j in PUBAT: publish()
    put(pr, prow, 0)
    E1, E256, E1024, E2, E4, E512 = 64, 66, 68, 70, 72, 74
    P = {k: 76 + 2 * k for k in range(8)}
    R = {256: 92, 260: 94, 512: 96, 768: 98, 1024: 100}
    edirect(E1, 1); edirect(E256, 256); edirect(E1024, 1024)
    publish()
    a(f"""
    s_waitcnt vmcnt({4 + (8 if EARLY else 0)})
    v_lshlrev_b32 v28, 16, v28
    v_lshlrev_b32 v29, 16, v29
    v_lshlrev_b32 v30, 16, v30
    v_lshlrev_b32 v31, 16, v31
    v_mul_f32 v28, v16, v28
    v_mul_f32 v29, v16, v29
    """)
    cmul(a, E2, E1, E1); cmul(a, P[0], 30, 28); cmul(a, E512, E256, E256); cmul(a, E4, E2, E2)
    seq = [(P[1], P[0], E1, 1), (P[2], P[0], E2, 2), (P[3], P[1], E2, 3), (P[4], P[0], E4, 4), (P[5], P[1], E4, 5), (P[6], P[2], E4, 6),
           (P[7], P[3], E4, 7), (R[256], P[0], E256, 8), (TMP[0], P[2], E256, 9), (R[260], P[4], E256, 10), (TMP[1], P[6], E256, 11),
           (R[512], P[0], E512, 12), (R[768], R[256], E512, 13), (R[1024], P[0], E1024, 14), (TMP[2], R[256], E1024, 15),
           (TMP[3], R[512], E1024, 16), (TMP[0], R[768], E1024, 17), (TMP[1], R[1024], E1024, 18), (TMP[2], P[4], E512, 20), (TMP[3], R[260], E512, 21)]
    pr, prow = P[0], 0
    for d, x, y, row in seq:
        cmul(a, d, x, y); put(pr, prow, 1); pr, prow = d, row
        if row in ((6, 13) if OPT.get("pubs", 1) == 0 else (9,)): publish()
    put(pr, prow, 1); flush_put()
    publish(True)
    a("s_waitcnt lgkmcnt(0)\ns_barrier")
    stamp(a, "pq")
    toks = []
    for s in range(8):
        a(f"ds_read_b128 {vr(64+12*s,4)}, v202 offset:{64*s}")
        a(f"ds_read_b128 {vr(68+12*s,4)}, v201 offset:{64*s}"); t1 = a.lg
        a(f"ds_read_b128 {vr(72+12*s,4)}, v201 offset:{64*s+16*PQ_PITCH}"); toks.append((t1, a.lg))
    for s in range(8):
        a.wait_lg(toks[s][0])
        a(f"v_mfma_f32_16x16x32_bf16 v[16:19], {vr(68+12*s,4)}, {vr(64+12*s,4)}, {'0' if s==0 else 'v[16:19]'}")
        a.wait_lg(toks[s][1])
        a(f"v_mfma_f32_16x16x32_bf16 v[20:23], {vr(72+12*s,4)}, {vr(64+12*s,4)}, {'0' if s==0 else 'v[20:23]'}")
    a(f"""
    s_lshl_b32 s4, s3, 12
    s_add_u32 s4, s4, {ST:#x}
    v_cvt_pk_bf16_f32 v16, v16, v17
    v_cvt_pk_bf16_f32 v18, v18, v19
    v_cvt_pk_bf16_f32 v20, v20, v21
    v_cvt_pk_bf16_f32 v22, v22, v23
    """)
    for q in range(2):
        b = 16 + 4 * q
        a(f"""
        ds_write_b16 v{204+4*q}, v{b}
        ds_write_b16_d16_hi v{205+4*q}, v{b}
        ds_write_b16 v{206+4*q}, v{b+2}
        ds_write_b16_d16_hi v{207+4*q}, v{b+2}
        """)
    a("s_waitcnt lgkmcnt(0)\ns_barrier")
    stamp(a, "tab")
    pa_loads = [f"buffer_load_dwordx4 {vr(160+4*i,4)}, v3, s[8:11], s4 offen offset:{1024*i} sc1" for i in range(4)]
    for e in range(19):
        a(f"ds_read_u16 v{64+e}, v{212+e}")
    tg = a.lg
    for x in pa_loads: a(x)
    a.wait_lg(tg)
    def expand(c):
        st = 3 - c
        o = 96 + 8 * c
        for k in range(8):
            a(f"v_lshl_or_b32 v{o+k}, v{64+st+2*k+1}, 16, v{64+st+2*k}")
        a(f"ds_write_b128 v231, {vr(o,4)} offset:{c*KC_STR}")
        a(f"ds_write_b128 v231, {vr(o+4,4)} offset:{c*KC_STR+16}")
    NEXP = OPT.get("nexp", 2)
    for c in range(NEXP): expand(c)
    stamp(a, "kdone")
    poll4(a, "L_pa", pa_loads, [163, 167, 171, 175])
    a(f"""
    s_mul_i32 s4, s29, {2*RS}
    s_lshl_b32 s5, s3, 10
    s_add_u32 s4, s4, s5
    s_add_u32 s4, s4, {XT:#x}
    s_add_u32 s5, s4, {RS}
    """)
    stamp(a, "syncA")
    for i in range(4):
        a(f"buffer_load_dword v{176+2*i}, v233, s[8:11], s4 offen offset:{256*i} sc1")
        a(f"buffer_load_dword v{177+2*i}, v233, s[8:11], s5 offen offset:{256*i} sc1")
    tokX = a.vm
    for c in range(NEXP, 4): expand(c)
    a(f"""
    v_mov_b32 v20, 0x3f803f80
    v_mov_b32 v21, 0x3f803f80
    v_mov_b32 v22, 0x3f803f80
    v_mov_b32 v23, 0x3f803f80
    s_mul_i32 s76, s81, {RS}
    s_add_u32 s76, s76, s82
    s_add_u32 s77, s76, {HT:#x}
    v_lshlrev_b32 v251, 16, v251
    v_mov_b32 v252, s28
    v_mov_b32 v253, 0
    v_lshlrev_b32 v250, {OPT.get("fs", 4)}, v0
    s_lshl_b32 s82, s29, {OPT.get("fs", 4)}
    s_add_u32 s83, s82, {FBX[1]:#x}
    s_add_u32 s82, s82, {FBX[0]:#x}
    s_mov_b32 s85, {FBX[0]:#x}
    s_mov_b32 s86, {FBX[1]:#x}
    s_mul_i32 s90, s3, {128*RS}
    s_add_u32 s90, s90, {HT:#x}
    s_and_b32 s36, s66, {3 if OPT.get("g1map", 1) else 1}
    s_mul_i32 s36, s36, {OPT.get("rot1", 1) * (1 if OPT.get("g1map", 1) else 2)}   ; rot1
    s_lshr_b32 s37, s31, {2 if OPT.get("g2map", 1) else 3}
    s_cmp_eq_u32 s37, 7
    s_cselect_b32 s37, 0, s37
    s_mul_i32 s37, s37, {OPT.get("rot2", 1) * (1 if OPT.get("g2map", 1) else 2)}   ; rot2
    s_add_u32 s32, s95, {448*1024}
    s_lshl_b32 s4, s37, 16
    s_add_u32 s95, s95, s4
    s_add_u32 s33, s71, {128*3584}
    s_mul_i32 s4, s36, {32*3584}
    s_add_u32 s71, s71, s4
    """)
    for i in range(4):
        g = 160 + 4 * i
        a(f"v_and_b32 v{129+2*i}, 0xffff0000, v{g}")
        a(f"v_lshlrev_b32 v{128+2*i}, 16, v{g}")
        a(f"v_mov_b32 v{136+2*i}, v{g+1}")
        a(f"v_mov_b32 v{137+2*i}, v{g+2}")
    for i in range(4):
        a.wait_vm(tokX - 6 + 2 * i)
        for c in range(2):
            x, t = 176 + 2 * i + c, 144 + 4 * i + 2 * c
            a(f"""
            v_lshlrev_b32 v{t}, 16, v{x}
            v_and_b32 v{t+1}, 0xffff0000, v{x}
            v_pk_add_f32 {vr(t,2)}, {vr(t,2)}, {vr(128+2*i,2)} neg_lo:[0,1] neg_hi:[0,1]
            v_cvt_pk_bf16_f32 v{x}, v{t}, v{t+1}
            v_lshlrev_b32 v{t}, 16, v{x}
            v_and_b32 v{t+1}, 0xffff0000, v{x}
            v_pk_mul_f32 {vr(t,2)}, {vr(t,2)}, {vr(136+2*i,2)}
            v_cvt_pk_bf16_f32 v{x}, v{t}, v{t+1}
            """)
        for c in range(2):
            x = 176 + 2 * i + c
            a(f"""
            ds_write_b32 v{234+c}, v{x} offset:{256*i+456}
            ds_write_b32 v{234+c}, v{x} offset:{256*i+UC_STR+448}
            """)
    a("s_waitcnt lgkmcnt(0)\ns_barrier")
    stamp(a, "conv0")
    a(f"""
    ds_read_b64 v[28:29], v249
    ds_read_b64 v[30:31], v249 offset:512
    ds_read_b64 v[32:33], v249 offset:2048
    ds_read_b64 v[34:35], v249 offset:2560
    buffer_load_dwordx2 v[12:13], v248, s[8:11], s76 offen sc1
    buffer_load_dwordx2 v[14:15], v248, s[8:11], s76 offen offset:512 sc1
    buffer_load_dwordx2 v[16:17], v248, s[8:11], s76 offen offset:2048 sc1
    buffer_load_dwordx2 v[18:19], v248, s[8:11], s76 offen offset:2560 sc1
    """)
    T["XE"] = a.vm
    CA, CB = 40, 56
    ZR, XR = 160, 200
    SND, KP, RC = 216, 224, 176
    ops = []
    for X in range(2):
        for r in range(4):
            if X == 0: prs = sorted([(b, aa) for b in range(4) for aa in range(b + 1)], key=lambda p: (max(p[1], p[0] - p[1]), p[0]))
            else: prs = [(aa + c, aa) for aa in range(8) for c in range(7 - aa, max(3 - aa, -1), -1)]
            for b, aa in prs: ops.append((b, ("A", aa, r, X), ("B", b - aa, r, X)))
    order, last = [], {}
    for n, (b, A, B) in enumerate(ops):
        for f in (A, B):
            if f not in last: order.append(f)
            last[f] = n
    pos = {f: i for i, f in enumerate(order)}
    free = list(range(72, 160, 4))
    reg, tok = {}, {}
    st = {"issued": 0}
    def issue():
        f = order[st["issued"]]; reg[f] = free.pop(0)
        k, idx, r, X = f
        off = (7 - idx) * 512 + (3 - r) * 64 if k == "A" else idx * 512 + (3 - r) * 64
        a(f"ds_read_b128 {vr(reg[f],4)}, v{246 if k == 'A' else 247} offset:{off}")
        tok[f] = a.lg; st["issued"] += 1
    def zpre(ks):
        L = []
        for k in ks:
            u, z = 28 + k, ZR + 2 * k
            L += [f"v_lshlrev_b32 v{z}, 16, v{u}", f"v_and_b32 v{z+1}, 0xffff0000, v{u}", f"v_mul_f32 v{z}, v{z}, v251", f"v_mul_f32 v{z+1}, v{z+1}, v251",
                  f"v_cvt_pk_bf16_f32 v{z}, v{z}, v{z+1}", f"v_and_b32 v{z+1}, 0xffff0000, v{z}", f"v_lshlrev_b32 v{z}, 16, v{z}"]
        return L
    def xpre(ks):
        return sum(([f"v_lshlrev_b32 v{XR+2*k}, 16, v{12+k}", f"v_and_b32 v{XR+2*k+1}, 0xffff0000, v{12+k}"] for k in ks), [])
    def xch_send(C, X):
        a(f"""
        s_cmp_eq_u32 s80, 1
        s_cbranch_scc1 L_x{X}1
        s_nop 7
        ds_write_b128 v240, {vr(C+8,4)}
        ds_write_b128 v240, {vr(C+12,4)} offset:1024
        s_branch L_x{X}2
        L_x{X}1:
        s_nop 7
        """)
        a.lg -= 2
        a(f"""
        ds_write_b128 v240, {vr(C,4)}
        ds_write_b128 v240, {vr(C+4,4)} offset:1024
        """)
        for k in range(8): a(f"v_mov_b32 v{C+k}, v{C+8+k}")
        a(f"L_x{X}2:")
        T["exw"] = a.lg
    def xch_recv():
        a(f"ds_read_b128 {vr(RC,4)}, v241\nds_read_b128 {vr(RC+4,4)}, v241 offset:1024")
        T["exr"] = a.lg
    def cepi(C, X):
        a.wait_lg(T["exr"])
        for grp in (lambda k, y: f"v_pk_add_f32 {vr(y,2)}, {vr(y,2)}, {vr(RC+2*k,2)}",
                    lambda k, y: f"v_cvt_pk_bf16_f32 v{y}, v{y}, v{y+1}",
                    lambda k, y: f"v_and_b32 v{y+1}, 0xffff0000, v{y}\nv_lshlrev_b32 v{y}, 16, v{y}",
                    lambda k, y: f"v_pk_add_f32 {vr(y,2)}, {vr(y,2)}, {vr(ZR+8*X+2*k,2)}",
                    lambda k, y: f"v_cvt_pk_bf16_f32 v{y}, v{y}, v{y+1}",
                    lambda k, y: f"v_and_b32 v{y+1}, 0xffff0000, v{y}\nv_lshlrev_b32 v{y}, 16, v{y}",
                    lambda k, y: f"v_pk_add_f32 {vr(y,2)}, {vr(y,2)}, {vr(XR+8*X+2*k,2)}",
                    lambda k, y: f"v_cvt_pk_bf16_f32 v{SND+4*X+k}, v{y}, v{y+1}"):
            for k in range(4): a(grp(k, C + 2 * k))
        a(f"""
        buffer_store_dwordx2 {vr(SND+4*X,2)}, v248, s[8:11], s77 offen offset:{2048*X} sc1
        buffer_store_dwordx2 {vr(SND+4*X+2,2)}, v248, s[8:11], s77 offen offset:{2048*X+512} sc1
        """)
    FA = OPT.get("fa", 88)
    epiA = [41, lambda: xch_send(CA, 0), waitv("XE")] + xpre(range(4)) + [47, waitl("exw"), "s_barrier", xch_recv, 53, lambda: cepi(CA, 0), tokv("hA")]
    epiA += xpre(range(4, 8)) + [OPT.get("bj0", 62), waitv("j0"), "s_barrier"] + sum((w1_tr(sg) for sg in range(8)), []) + [tokl("tj0")]
    epiA += [FA, waitv("hA"), waitl("tj0"), "s_barrier", tokl("FA"), flag_store(82), lambda: stamp(a, "flagA")] + zpre(range(4, 8))
    PAL = "buffer_load_dword v254, v250, s[8:11], s85 offen sc1"
    qv = FQ(zpre(range(4)) + epiA, start=6, rate=OPT.get("cvr", 10) / 10)
    if OPT.get("pause", 1):
        qd = FQ(w1_dma(0) + [tokv("j0")] + w1_dma(1)[:7] + [OPT.get("res", 74)] + w1_dma(1)[7:] + w1_dma(2) + [Dep("FA")] + w1_dma(3) + [tokv("RA")], start=1, rate=OPT.get("cdr", 50) / 100)
    else:
        qd = FQ(w1_dma(0) + [tokv("j0")] + w1_dma(1) + w1_dma(2) + [Dep("FA")] + w1_dma(3) + [tokv("RA")], start=2, rate=OPT.get("cdr", 38) / 100)
    first = set()
    while st["issued"] < 10: issue()
    for n, (b, A, B) in enumerate(ops):
        needi = max(pos[A], pos[B])
        while st["issued"] <= needi: issue()
        need_tok = tok[order[needi]]
        if need_tok > a.lg_done:
            for la in (1, 2):
                if n + la < len(ops):
                    n2 = max(pos[ops[n+la][1]], pos[ops[n+la][2]])
                    if n2 < st["issued"] and a.lg - tok[order[n2]] >= 6: need_tok = max(need_tok, tok[order[n2]])
            a.wait_lg(need_tok)
        acc = vr(CA + 4 * b, 4)
        a(f"v_mfma_f32_16x16x32_bf16 {acc}, {vr(reg[A],4)}, {vr(reg[B],4)}, {acc if b in first else '0'}")
        first.add(b)
        rel = [f for f in (A, B) if last[f] == n]
        if st["issued"] < len(order) and a.lg - a.lg_done < 12 and free and st["issued"] - needi < 12: issue()
        for f in rel: free.append(reg[f])
        qd.step(n); qv.step(n)
        if n == 39: stamp(a, "convA")
    assert not qd.items
    qv.flush()
    stamp(a, "conv1")
    xch_send(CB, 1)
    a.wait_vm(T["RA"], " lgkmcnt(0)")
    a("s_barrier")
    xch_recv()
    a(PAL); T["pA"] = a.vm
    a(f"""
    v_mov_b32 v16, v242
    v_xor_b32 v17, 64, v242
    v_add_u32 v18, 0x20000, v16
    v_add_u32 v19, 0x20000, v17
    """)
    cepi(CB, 1)
    T["hB"] = a.vm
    stamp(a, "epiB")
    epoch = f"""s_cmp_lg_u32 s2, 0
            s_cbranch_scc1 L_noep@
            s_add_u32 s4, s6, 1
            v_mov_b32 v2, s4
            v_mov_b32 v9, {EPOCH:#x}
            buffer_store_dword v2, v9, s[8:11], 0 offen sc1
            L_noep@:"""
    a(f"""
    s_cmp_ge_u32 s31, 28
    s_cbranch_scc1 L_sp
    """)
    vm_sp, lg_sp = a.vm, a.lg
    Tsp = dict(T)
    RING = list(range(64, 96, 4)) + list(range(212, 236, 4)) + list(range(196, 212, 4))
    A2 = 32
    PRA = OPT.get("pra", 8)
    PCA1 = "buffer_load_dword v254, v245, s[8:11], s38 offen sc1"
    PCB1 = "buffer_load_dword v254, v245, s[8:11], s39 offen sc1"
    PCAL = f"s_mov_b64 exec, 0x3fff\n{PCA1}\ns_mov_b64 exec, -1"
    g2s = f"""
        s_lshr_b32 s40, s87, 1
        s_lshl_b32 s40, s40, 11
        s_add_u32 s38, s40, {FCX[0]:#x}
        s_add_u32 s39, s40, {FCX[1]:#x}
        v_lshlrev_b32 v245, {OPT.get("fsc", 5)}, v1
        s_lshr_b32 s41, s3, 1
        s_lshl_b32 s40, s41, 8
        v_xor_b32 v249, s40, v3
        s_mul_i32 s43, s87, {112*1024}
        s_mul_i32 s40, s3, {28*1024}
        s_add_u32 s43, s43, s40
        s_add_u32 s43, s43, {HF:#x}
        s_add_u32 s35, s43, {28*1024}
        s_lshl_b32 s40, s37, 12
        s_add_u32 s43, s43, s40
        v_and_b32 v246, 31, v1
        s_lshl_b32 s40, s69, 5
        v_add_u32 v246, s40, v246
        v_mul_u32_u24 v247, {RS}, v246
        v_lshl_add_u32 v247, v6, 4, v247
        s_lshl_b32 s44, s87, 6
        s_lshl_b32 s40, s41, 5
        s_add_u32 s44, s44, s40
        s_add_u32 s44, s44, {HT:#x}
        v_lshlrev_b32 v246, 1, v246
        v_lshl_add_u32 v248, v6, 12, v246
        s_lshl_b32 s45, s87, 15
        s_lshl_b32 s40, s41, 14
        s_add_u32 s45, s45, s40
        s_add_u32 s46, s45, 8192
        s_mul_i32 s40, s3, 6144
        v_add_u32 v12, s40, v3
        """
    for pl in (1, 2, 3):
        g2s += f"""
        s_xor_b32 s40, s3, {pl}
        s_mul_i32 s40, s40, 6144
        s_add_u32 s40, s40, {(pl-1)*2048}
        v_add_u32 v{12+pl}, s40, v3
        """
    g2s = [x.strip() for x in g2s.split("\n") if x.strip()]
    def g2setup(): emit(g2s)
    RESA = "buffer_load_dwordx4 v[176:179], v247, s[8:11], s44 offen sc1\nglobal_load_ushort v251, v246, s[58:59]"
    RESB = "buffer_load_dwordx4 v[180:183], v247, s[8:11], s44 offen offset:2048 sc1"
    def hload(s):
        L = [f"buffer_load_dwordx4 {vr(RING[s % len(RING)],4)}, v249, s[8:11], s43 offen offset:{(s%4)*1024} sc1", tokv(("H", s))]
        if s % 4 == 3: L.append(adv(43, 4096, 35, 28*1024))
        return L
    GA = [64, 96]; FR = [32, 40, 48, 56]
    PBL = "buffer_load_dword v254, v250, s[8:11], s86 offen sc1"
    def st_loads(X): return [f"buffer_load_dwordx4 {vr(160+8*X+4*q,4)}, v10, s[8:11], s{91+X} offen offset:{512*q} sc1" for q in range(2)]
    def hg(X, g): return h_dma(g) + [tokv(f"h{X}{g}")]
    su = f"""
    s_lshl_b32 s4, s66, 7
    s_add_u32 s90, s90, s4
    s_add_u32 s34, s90, {128*RS}
    s_mul_i32 s4, s36, {32*RS}
    s_add_u32 s90, s90, s4
    s_lshl_b32 s5, s67, 6
    v_lshl_add_u32 v25, v6, 3, s5
    v_and_b32 v10, 31, v1
    v_lshlrev_b32 v10, 4, v10
    s_lshl_b32 s91, s66, 10
    s_add_u32 s91, s91, {ST2:#x}
    s_add_u32 s92, s91, 16384
    s_mul_i32 s74, s66, {2*112*1024}
    s_lshl_b32 s5, s67, 11
    s_add_u32 s74, s74, s5
    s_add_u32 s74, s74, {HF:#x}
    s_add_u32 s75, s74, {112*1024}
    s_lshl_b32 s93, s66, 11
    s_lshl_b32 s5, s7, {OPT.get("fsc", 5)}
    s_add_u32 s93, s93, s5
    s_add_u32 s94, s93, {FCX[1]:#x}
    s_add_u32 s93, s93, {FCX[0]:#x}
    """
    su = [x.strip() for x in su.split("\n") if x.strip()]
    CKA = OPT.get("cka", 10)
    qt = FQ(sum((w1_tr(sg) + [tokl(("w", sg))] for sg in range(8, 32)), []), 0, 2.5)
    qs_ = FQ(su, 0, 2.5)
    b1l = [f"global_load_dwordx2 {vr(160+2*g,2)}, v25, s[54:55] offset:{16*g}" for g in range(4)]
    qd = FQ(hg(0, 0) + hg(0, 1) + b1l + [tokv("b1")], CKA, OPT.get("wdr", 100) / 100)
    qf = FQ([waitv("hB"), "s_barrier", flag_store(83, epoch.replace("@", "1")), lambda: stamp(a, "flagB")], OPT.get("fb", 24))
    NCW = OPT.get("ncw", 32)
    def csum(sg): return f"v_mfma_f32_32x32x16_bf16 v[128:143], {ar(4*sg,4)}, v[20:23], {'0' if sg == 0 else 'v[128:143]'}"
    for sg in range(NCW):
        if sg == CKA:
            qs_.flush()
            check1("L_pA", "pA", 254, PAL); stamp(a, "okA")
        if sg >= 8:
            while ("w", sg) not in T: qt.step(0, True)
            a.wait_lg(T[("w", sg)])
        a(csum(sg)); cur[0] += 1
        for q in (qt, qs_, qd, qf): q.step(sg)
    flush_all([qt, qd, qf])
    for sg in range(8, 32): T.pop(("w", sg))
    def g1(X, queues, after_first=None, hooks={}):
        tk = {}
        def rd(sg, q):
            j = sg >> 3
            for hf in range(2):
                a(f"ds_read_b64_tr_b16 {vr(FR[sg%4]+4*q+2*hf,2)}, v{16+2*(j&1)+q} offset:{(j>>1)*16384+(sg&7)*2048+hf*512}")
            tk[(sg, q)] = a.lg
        a.wait_vm(T[f"h{X}0"], " lgkmcnt(0)"); a("s_barrier")
        if after_first: after_first()
        stamp(a, f"g1{'AB'[X]}a")
        for sg in range(2):
            for q in range(2): rd(sg, q)
        for sg in range(32):
            if sg % 8 == 6 and sg < 30:
                a.wait_vm(T[f"h{X}{sg//8+1}"])
                a("s_barrier")
            if sg in hooks: hooks[sg]()
            for q in range(2):
                n = 2 * sg + q
                a.wait_lg(tk[(sg, q)])
                acc = vr(GA[X] + 16 * q, 16)
                a(f"v_mfma_f32_32x32x16_bf16 {acc}, {ar(4*sg,4)}, {vr(FR[sg%4]+4*q,4)}, {'0' if sg == 0 else acc}")
                if sg + 2 < 32: rd(sg + 2, q)
                cur[0] += 1
                for qq in queues: qq.step(n)
        flush_all(queues)
        cur[0] += 20
        stamp(a, f"g1{'AB'[X]}b")
    def epi_pk(X, obase, late=False):
        sts = []
        for q in range(2):
            stt = 160 + 8 * X + 4 * q
            A = GA[X] + 16 * q
            for hf in range(2):
                ks = range(8 * hf, 8 * hf + 8, 2)
                for k in ks: a(f"v_pk_fma_f32 {vr(A+k,2)}, {vr(A+k,2)}, {vr(stt,2)}, {vr(144+k,2)} op_sel:[0,1,0] op_sel_hi:[1,1,1]")
                for k in ks: a(f"v_pk_fma_f32 {vr(A+k,2)}, {vr(128+k,2)}, {vr(stt,2)}, {vr(A+k,2)} op_sel_hi:[1,0,1]")
                for k in range(8 * hf, 8 * hf + 8): a(f"v_max_f32 v{A+k}, 0, v{A+k}")
                for k in ks: a(f"v_pk_mul_f32 {vr(A+k,2)}, {vr(A+k,2)}, {vr(A+k,2)}")
                o = obase + 8 * q + 4 * hf
                for k in range(4): a(f"v_cvt_pk_bf16_f32 v{o+k}, v{A+8*hf+2*k}, v{A+8*hf+2*k+1}")
                sts.append(f"buffer_store_dwordx4 {vr(o,4)}, v3, s[8:11], s{74+q} offen offset:{1024*hf} sc1")
                if not late: a(sts.pop())
        return sts
    NWA = OPT.get("nwa", 3)
    TD = OPT.get("td", 14)
    NTA = OPT.get("nta", 1)
    qd = FQ(hg(0, 2) + hg(0, 3) + ["s_add_u32 s90, s90, 2048\ns_add_u32 s34, s34, 2048"]
            + sum((w2_dma(i) + [tokv(f"r{i}")] for i in range(NWA)), []), start=0, rate=OPT.get("dr", 100) / 100)
    b1u = []
    for g in range(4):
        for k in range(2):
            b1u += [f"v_lshlrev_b32 v{144+4*g+2*k}, 16, v{160+2*g+k}", f"v_and_b32 v{144+4*g+2*k+1}, 0xffff0000, v{160+2*g+k}"]
    qg = FQ(g2s, start=4, rate=1.0)
    qt = FQ([waitv("b1")] + b1u + sum(([Dep(f"r{i}", TD + 6), waitv(f"r{i}")] + w2_tr(i) + [tokl(f"t{i}")] for i in range(NTA)), []), start=14, rate=2.0)
    qp = FQ([PBL, tokv("pB")] + st_loads(0) + [tokv("sA")], start=OPT.get("pbl", 48))
    g1(0, [qp, qd, qt, qg])
    for sg in range(NCW, 32): a(csum(sg))
    check1("L_pB", "pB", 254, PBL); stamp(a, "okB")
    emit(hg(1, 0))
    check2("L_sA", "sA", 162, 166, st_loads(0))
    stamp(a, "stA")
    a.set_bg(h_dma(1)[:5] + [tokv("h11")] + h_dma(1)[5:], OPT.get("eas", 4))
    epi_pk(0, 196)
    assert not a.bg
    T["HA"] = a.vm
    stamp(a, "epi1A")
    FCA = OPT.get("fca", 18)
    qe = FQ([FCA, waitv("HA"), "s_barrier", flag_store(93), lambda: stamp(a, "flagCA")], start=1)
    NWB = OPT.get("nwb", 7)
    items = hg(1, 2) + hg(1, 3) + [OPT.get("q1b", 14), RESA, tokv("res")]
    for i in range(NWA, NWB):
        if i >= 3: items += [Dep(f"t{i-3}", 3), waitl(f"t{i-3}")]
        items += w2_dma(i) + [tokv(f"r{i}")]
    qd = FQ(items, start=0, rate=OPT.get("dr2", 110) / 100)
    items = []
    for i in range(NTA, min(4, NWB)):
        items += [Dep(f"r{i}", TD), waitv(f"r{i}")] + w2_tr(i) + [tokl(f"t{i}")]
    qt = FQ(items, start=0, rate=2.0)
    qs = FQ(st_loads(1) + [tokv("sB"), PCAL, tokv("pCA")], start=OPT.get("sbl", 50), rate=3)
    g1(1, [qe, qt, qs, qd])
    PR0 = OPT.get("pr0", 0)
    if PR0:
        check1("L_pCA", "pCA", 254, PCA1, mask=0x3fff); stamp(a, "okCA")
        for s in range(PR0): emit(hload(s))
    check2("L_sB", "sB", 170, 174, st_loads(1))
    a(f"s_add_u32 s74, s74, {32*112*1024}\ns_add_u32 s75, s75, {32*112*1024}")
    epi_pk(1, 16)
    T["HB"] = a.vm
    stamp(a, "epi1B")
    if not PR0:
        check1("L_pCA", "pCA", 254, PCA1, mask=0x3fff); stamp(a, "okCA")
    for s in range(PR0, PRA): emit(hload(s))
    a("s_mov_b32 s81, s3")
    a("s_branch L_join")
    vm_j, lg_j = a.vm, a.lg
    Tsave = dict(T)
    a.label("L_sp")
    a.vm, a.lg = vm_sp, lg_sp; a.lg_done = lg_sp
    a(f"""
    v_lshrrev_b32 v9, 2, v1
    v_mul_u32_u24 v9, {RS}, v9
    v_lshl_add_u32 v36, v7, 4, v9
    v_add_u32 v37, {16*RS-1024}, v36
    v_add_u32 v38, {2*(16*RS-1024)}, v36
    v_add_u32 v39, {3*(16*RS-1024)}, v36
    s_lshl_b32 s4, s30, 2
    s_add_u32 s4, s4, s31
    s_sub_u32 s4, s4, 28
    s_lshl_b32 s5, s4, 6
    s_add_u32 s90, s90, s5
    s_add_u32 m0, s89, 32768
    """)
    T.clear(); T.update(Tsp)
    check1("L_pA2", "pA", 254, PAL)
    stamp(a, "spokA")
    emit(dma_seq(8, 36, 8, 90, 16 * RS, flags="sc1"))
    a(f"""
    v_lshl_add_u32 v11, v4, 3, v8
    v_lshlrev_b32 v11, 6, v11
    v_lshl_add_u32 v11, v7, 3, v11
    s_lshl_b32 s5, s80, 5
    v_add_u32 v11, s5, v11
    s_lshl_b32 s91, s4, 9
    s_lshl_b32 s5, s80, 8
    s_add_u32 s91, s91, s5
    s_add_u32 s91, s91, {ST2:#x}
    s_add_u32 s92, s91, 16384
    v_lshlrev_b32 v10, 4, v5
    v_cmp_eq_u32 s[74:75], 1, v7
    v_cmp_eq_u32 s[76:77], 2, v7
    v_cmp_eq_u32 s[78:79], 3, v7
    """)
    def sp_stats(X, base):
        tks = []
        def mf(s2):
            a.wait_lg(tks[s2])
            a(f"v_mfma_f32_16x16x32_bf16 v[24:27], {vr(64+4*s2,4)}, {vr(64+4*s2,4)}, {'0' if s2==0 else 'v[24:27]'}")
            a(f"v_mfma_f32_16x16x32_bf16 v[28:31], v[20:23], {vr(64+4*s2,4)}, {'0' if s2==0 else 'v[28:31]'}")
        for s in range(16):
            a(f"ds_read_b64_tr_b16 {vr(64+4*s,2)}, v11 offset:{base+s*2048}")
            a(f"ds_read_b64_tr_b16 {vr(66+4*s,2)}, v11 offset:{base+s*2048+256}"); tks.append(a.lg)
            if s >= 6: mf(s - 6)
        for s2 in range(10, 16): mf(s2)
        a(f"""
        v_cndmask_b32 v24, v24, v25, s[74:75]
        v_cndmask_b32 v24, v24, v26, s[76:77]
        v_cndmask_b32 v24, v24, v27, s[78:79]
        """)
        row_stats(a, 28, 24, 32, 33, 25)
        a(f"""
        v_mul_f32 v32, -v32, v33
        v_mov_b32 v34, s28
        v_mov_b32 v35, s28
        s_cmp_ge_u32 s3, 2
        s_cbranch_scc1 L_sps{X}
        s_mov_b32 exec_lo, 0x00F0000F
        s_mov_b32 exec_hi, 0xF0000F00
        buffer_store_dwordx4 v[32:35], v10, s[8:11], s{91+X} offen sc1
        s_mov_b64 exec, -1
        L_sps{X}:
        """)
        stamp(a, f"sp{'AB'[X]}")
    a("s_waitcnt vmcnt(8)\ns_barrier")
    flag_store(83)()
    a("s_waitcnt vmcnt(0)\ns_barrier")
    stamp(a, "spldA")
    sp_stats(0, 32768)
    a(PBL); T["pB"] = a.vm
    check1("L_pB2", "pB", 254, PBL)
    stamp(a, "spokB")
    a(f"s_add_u32 s90, s90, {2048 - 128*RS}\ns_mov_b32 m0, s89")
    emit(dma_seq(8, 36, 8, 90, 16 * RS, flags="sc1"))
    emit(w2_dma(0))
    a("s_waitcnt vmcnt(8)\ns_barrier")
    sp_stats(1, 0)
    emit(w2_dma(1) + w2_dma(2))
    a("s_waitcnt vmcnt(16)")
    emit(w2_tr(0))
    a("s_waitcnt lgkmcnt(0)")
    emit(w2_dma(3))
    a("s_waitcnt vmcnt(0)")
    emit(w2_tr(1) + w2_tr(2) + w2_tr(3))
    a("s_waitcnt lgkmcnt(0)")
    for i in range(4, NWB): emit(w2_dma(i))
    g2setup()
    a(RESA)
    a(PCAL); T["pCA"] = a.vm
    check1("L_pCA2", "pCA", 254, PCA1, mask=0x3fff)
    a("s_barrier\ns_mov_b32 s81, 1")
    for s in range(PRA): emit(hload(s))
    if PR0: a(f"s_waitcnt vmcnt({PRA-PR0})")
    T.clear(); T.update(Tsave)
    a.label("L_join")
    a.vm, a.lg = vm_j, lg_j; a.lg_done = 0
    a.wait_vm(T["res"])
    a("v_lshlrev_b32 v251, 16, v251")
    def g2(X, pre, queues):
        a(f"v_permlane32_swap_b32 v{176+4*X}, v{178+4*X}\nv_permlane32_swap_b32 v{177+4*X}, v{179+4*X}")
        for k in range(4):
            r = 176 + 4 * X + k
            a(f"v_lshlrev_b32 v{A2+2*k}, 16, v{r}\nv_and_b32 v{A2+2*k+1}, 0xffff0000, v{r}")
        for k in range(8): a(f"v_add_f32 v{A2+k}, v{A2+k}, v251")
        for k in range(8, 16): a(f"v_mov_b32 v{A2+k}, 0")
        ql = FQ(sum((hload(s) for s in range(pre, 28)), []), 0, OPT.get("hr", 70) / 100)
        for s in range(28):
            b = vr(RING[s % len(RING)], 4)
            while ("H", s) not in T: ql.step(0, True)
            a.wait_vm(T.pop(("H", s)))
            if X == 0 and s % 4 == 0 and s >= 16:
                while f"t{s//4}" not in T:
                    for qq in queues[:2]: qq.step(0, True)
                a.wait_lg(T[f"t{s//4}"])
            for dl in (1, 0):
                acc = vr(A2 + 16 * dl, 16)
                a(f"v_mfma_f32_32x32x16_bf16 {acc}, {b}, {ar(W2A(s)+4*dl,4)}, {'0' if (s == 0 and dl == 1) else acc}")
                n = 2 * s + 1 - dl
                if ql.items and sum(1 for k in T if isinstance(k, tuple)) < len(RING) - 2: ql.step(n)
                cur[0] += 1
                for qq in queues: qq.step(n)
            if s == 0: stamp(a, f"g2{'AB'[X]}a")
        for qq in queues: qq.flush()
        stamp(a, f"g2{'AB'[X]}b")
    def tail(X, mid=None):
        off = 131072 * X
        if X:
            for k in range(4): a(f"v_add_u32 v{12+k}, 0x20000, v{12+k}")
        for pl in (1, 3, 2):
            src = A2 + 16 * (pl & 1) + 8 * (pl >> 1)
            for k in range(2): a(f"ds_write_b128 v{12+pl}, {vr(src+4*k,4)} offset:{1024*k}")
        a("s_waitcnt lgkmcnt(0)\ns_barrier")
        for k in range(2):
            for sl in range(3): a(f"ds_read_b128 {vr(96+8*sl+4*k,4)}, v12 offset:{2048*sl+1024*k}")
        if mid: mid()
        for k in range(2):
            a(f"s_waitcnt lgkmcnt({3-3*k})")
            for j in (0, 2):
                r = 4 * k + j
                a(f"v_pk_add_f32 {vr(96+r,2)}, {vr(96+r,2)}, {vr(104+r,2)}")
                a(f"v_pk_add_f32 {vr(120+r,2)}, {vr(A2+r,2)}, {vr(112+r,2)}")
            for j in (0, 2):
                r = 4 * k + j
                a(f"v_pk_add_f32 {vr(120+r,2)}, {vr(120+r,2)}, {vr(96+r,2)}")
            for j in (0, 2):
                r = 4 * k + j
                a(f"v_cvt_pk_bf16_f32 v{120+r}, v{120+r}, v{121+r}")
            for j in (0, 2):
                r = 4 * k + j
                a(f"buffer_store_short v{120+r}, v248, s[24:27], s{45+k} offen offset:{1024*j}")
                a(f"buffer_store_short_d16_hi v{120+r}, v248, s[24:27], s{45+k} offen offset:{1024*(j+1)}")
    items = []
    for i in range(NWB, 7): items += [waitl(f"t{i-3}")] + w2_dma(i) + [tokv(f"r{i}")]
    qd = FQ(items, start=0, rate=1.5)
    qd.flush(); cur[0] += 8
    NT2 = min(OPT.get("nt2", 3), NWB - 4)
    for i in range(4, 4 + NT2):
        assert i < NWB
        a.wait_vm(T[f"r{i}"]); emit(w2_tr(i)); settok(f"t{i}", a.lg)
    items = []
    for i in range(4 + NT2, 7):
        items += [Dep(f"r{i}", TD), waitv(f"r{i}")] + w2_tr(i) + [tokl(f"t{i}")]
    qt = FQ(items, start=1, rate=2.0)
    pcb = f"s_mov_b64 exec, 0x3fff\n{PCB1}\ns_mov_b64 exec, -1"
    qf = FQ([waitv("HB"), "s_barrier", flag_store(94, creg=81), lambda: stamp(a, "flagCB"), OPT.get("pcb", 50), RESB, pcb, tokv("pCB")], start=OPT.get("fcb", 2 * PR0))
    g2(0, PRA, [qd, qt, qf])
    PRB = OPT.get("prb", 8)
    def mid():
        a(f"s_add_u32 s43, s43, {32*112*1024}\ns_add_u32 s35, s35, {32*112*1024}")
        check1("L_pCB", "pCB", 254, PCB1, mask=0x3fff)
        stamp(a, "okCB")
        for s in range(PRB): emit(hload(s))
    if OPT.get("cbe", 1): tail(0, mid)
    else:
        tail(0); mid()
    stamp(a, "tailA")
    a(f"s_add_u32 s45, s45, {1024*1024}\ns_add_u32 s46, s46, {1024*1024}")
    g2(1, PRB, [])
    tail(1)
    if STAMP:
        a("s_waitcnt vmcnt(0)")
        stamp(a, "end")
        a(f"""
        s_lshl_b32 s4, s2, 10
        s_add_u32 s4, s4, {TSB:#x}
        v_lshlrev_b32 v2, 2, v0
        buffer_store_dword v255, v2, s[8:11], s4 offen
        """)
    a.label("L_exit")
    a("s_endpgm")
    a.label("L_end")

def build(path, stamp_=False, as_list=False, **opt):
    global STAMP
    STAMP = stamp_
    STAMPS.clear()
    OPT.clear(); OPT.update(opt)
    hdr = open(f"cdna_kernels/{NAME}.s.ref").read().split("; Override launch")[0]
    a = Asm()
    mega(a)
    lines = []
    for l in a.lines: lines += l.split("\n")
    lines, size, fx, np_ = align_pass(lines)
    s = hdr
    if as_list: s += f"; @launch kernel={KN} grid=(256,1,1) block=(256,1,1) lds={LDS_BYTES}\n"
    else: s += f"; @launch grid=(256,1,1) block=(256,1,1) lds={LDS_BYTES}\n"
    s += '.amdgcn_target "amdgcn-amd-amdhsa--gfx950"\n.text\n'
    s += "\n".join(lines) + "\n"
    s += f""".section .rodata,"a"
.p2align 6
.amdhsa_kernel {KN}
  .amdhsa_next_free_vgpr 512
  .amdhsa_next_free_sgpr 102
  .amdhsa_accum_offset 256
  .amdhsa_group_segment_fixed_size 0
  .amdhsa_kernarg_size 136
  .amdhsa_user_sgpr_count 2
  .amdhsa_user_sgpr_kernarg_segment_ptr 1
  .amdhsa_system_sgpr_workgroup_id_x 1
.end_amdhsa_kernel
"""
    open(path, "w").write(s)
    print(path, "code bytes", size, "align fixes", fx, np_)
if __name__ == "__main__":
    import json
    if len(sys.argv) > 1:
        for spec in sys.argv[1:]:
            name, _, o = spec.partition(":")
            opt = {k: int(v) for k, v in (kv.split("=") for kv in o.split(",") if kv)}
            build(f"work/{name}.s", False, True, **opt)
            build(f"work/{name}_dbg.s", True, True, **opt)
    else:
        build("mega.s", False)
        build("mega_l.s", False, True)
        build("mega_dbg.s", True, True)
    json.dump(STAMPS, open("stamps.json", "w"))
```

```python
import sys, math
import numpy as np
from asmlib import *
NAME = "sequential_preLN__ssm_conv_s4__dense_activation_squared_relu__prompt"
KN = NAME + "_kernel"
RS = 4352
XT, HT, HF = 0x0, 0x220000, 0x440000
ST, EPOCH, ST2 = 0xB40000, 0xB58000, 0xB60000
FBX = [0xB70000, 0xB78000]
FCX = [0xB80000, 0xB88000]
WS_USED = 0xB90000
TSB = 0xC00000
LOG2E = 1.4426950408889634
LOG2E_HI = float(np.float32(LOG2E)); LOG2E_LO = LOG2E - LOG2E_HI
STAMP = False
SPIN_MAX = 1 << 18
PQ_PITCH = 544
P_BYTES = 22 * PQ_PITCH
PQ_CH = P_BYTES + 32 * PQ_PITCH
KC_STR, KC_CH = 4160, 131072
RA = 32768
HB = 32768
PQ = 32768
TAB, TAB_CH = 25856, 131072
UC, UC_STR, UC_CH = 16640, 4576, 131072
LDS_BYTES = 163840
STAMPS = {}
OPT = dict(predelayB=0)

def srd(a, s, base, nbytes):
    a(f"""
    s_mov_b32 s{s}, s{base}
    s_and_b32 s{s+1}, s{base+1}, 0xffff
    s_mov_b32 s{s+2}, {nbytes:#x}
    s_mov_b32 s{s+3}, 0x20000
    """)
def stamp(a, name):
    if not STAMP: return
    k = STAMPS.setdefault(name, len(STAMPS))
    ld = a.lg_done
    a(f"s_memrealtime s[100:101]\ns_waitcnt lgkmcnt(0)\nv_writelane_b32 v255, s100, {k}")
    a.lg_done = ld
def cmul(a, d, x, y):
    a(f"v_pk_mul_f32 {vr(d,2)}, {vr(x,2)}, {vr(y,2)} op_sel_hi:[0,1]")
    a(f"v_pk_fma_f32 {vr(d,2)}, {vr(x,2)}, {vr(y,2)}, {vr(d,2)} op_sel:[1,1,0] op_sel_hi:[1,0,1] neg_lo:[1,0,0]")
def row_stats(a, vs, vq, vm, vri, t0):
    a(f"""
    v_mul_f32 v{vs}, {fhex(1/512)}, v{vs}
    v_mul_f32 v{vq}, {fhex(1/512)}, v{vq}
    v_fma_f32 v{vq}, -v{vs}, v{vs}, v{vq}
    v_max_f32 v{vq}, 0, v{vq}
    v_cvt_pk_bf16_f32 v{t0}, v{vs}, v{vq}
    v_lshlrev_b32 v{vm}, 16, v{t0}
    v_and_b32 v{t0}, 0xffff0000, v{t0}
    v_add_f32 v{t0}, {fhex(1e-5)}, v{t0}
    v_cvt_pk_bf16_f32 v{t0}, v{t0}, v{t0}
    v_and_b32 v{t0}, 0xffff0000, v{t0}
    v_sqrt_f32 v{t0}, v{t0}
    v_cvt_pk_bf16_f32 v{t0}, v{t0}, v{t0}
    v_and_b32 v{t0}, 0xffff0000, v{t0}
    v_rcp_f32 v{vri}, v{t0}
    """)
def dma_seq(n, v4, srd_, sreg, gstep, mgroup=4096, ggroup=None, flags=""):
    L = []
    j = 0
    while j < n:
        c = min(4, n - j)
        for q in range(c):
            L.append(f"buffer_load_dwordx4 v{v4+q}, s[{srd_}:{srd_+3}], s{sreg} offen offset:{1024*q} {flags} lds")
        L.append(f"s_add_u32 m0, m0, {mgroup if c == 4 else 1024*c}")
        L.append(f"s_add_u32 s{sreg}, s{sreg}, {(ggroup or 4*gstep) if c == 4 else gstep*c}")
        j += c
    return L
def poll(a, label, vaddr, soff, mask=None):
    if mask is not None: a(f"s_mov_b64 exec, {mask:#x}")
    a(f"""
    s_mov_b32 s72, 0
    {label}:
    buffer_load_dword v2, v{vaddr}, s[8:11], s{soff} offen sc1
    s_add_u32 s72, s72, 1
    s_waitcnt vmcnt(0)
    v_cmp_ne_u32 vcc, s28, v2
    s_cmp_gt_u32 s72, {SPIN_MAX}
    s_cbranch_scc1 {label}_x
    s_and_b64 exec, exec, vcc
    s_cbranch_execnz {label}
    {label}_x:
    s_mov_b64 exec, -1
    """)
def poll4(a, label, loads, regs):
    a(f"s_mov_b32 s72, 0\ns_branch {label}_c\n{label}:")
    for x in loads: a(x)
    a(f"""
    {label}_c:
    s_add_u32 s72, s72, 1
    s_waitcnt vmcnt(0)
    v_xor_b32 v2, s28, v{regs[0]}
    v_xor_b32 v{regs[1]}, s28, v{regs[1]}
    v_xor_b32 v{regs[2]}, s28, v{regs[2]}
    v_xor_b32 v{regs[3]}, s28, v{regs[3]}
    v_or3_b32 v2, v2, v{regs[1]}, v{regs[2]}
    v_or_b32 v2, v2, v{regs[3]}
    v_cmp_ne_u32 vcc, 0, v2
    s_cmp_gt_u32 s72, {SPIN_MAX}
    s_cbranch_scc1 {label}_x
    s_cbranch_vccnz {label}
    {label}_x:
    """)

W1V, HV, W2V = 184, 188, 192
W2A = lambda s: 128 + 8 * s if s < 16 else 8 * (s - 16)

def mega(a):
    EARLY = 0
    BUF = [2, 3, 1, 2, 3, 1, 2]
    def w2_tr(i):
        b = BUF[i]
        va = 238 if b == 3 else 236
        return [f"ds_read_b64_tr_b16 {ar(W2A(4*i+s)+4*dl+2*hf,2)}, v{va+dl} offset:{(32768 if b == 2 else 0)+s*2048+hf*1024}"
                for s in range(4) for dl in range(2) for hf in range(2)]
    def adv(r, step, end, total):
        return f"s_add_u32 s{r}, s{r}, {step}\ns_cmp_ge_u32 s{r}, s{end}\ns_cselect_b32 s47, {total}, 0\ns_sub_u32 s{r}, s{r}, s47"
    def w2_dma(i):
        return [f"s_add_u32 m0, s89, {BUF[i]*32768}"] + dma_seq(8, W2V, 20, 95, 8192)[:-2] + [adv(95, 32768, 32, 448*1024)]
    def w1_dma(j):
        return [f"s_add_u32 m0, s89, {(1 + j % 3)*32768}"] + dma_seq(8, W1V, 16, 71, 4 * 3584)[:-2] + [adv(71, 16*3584, 33, 128*3584)]
    def w1_tr(sg):
        b = 1 + (sg >> 3) % 3
        return [f"ds_read_b64_tr_b16 {ar(4*sg+2*hf,2)}, v{244 if b == 3 else 243} offset:{(32768 if b == 2 else 0)+(sg&7)*4096+hf*1024}" for hf in range(2)]
    def h_dma(g):
        return [f"s_add_u32 m0, s70, {[0, 131072, 16384, 147456][g]}"] + dma_seq(4, HV, 8, 90, 8 * RS, flags="sc1")[:4] + [adv(90, 32*RS, 34, 128*RS)]
    def emit(L):
        for x in L:
            if callable(x): x()
            else: a(x)
    T = {}; TS_ = {}; cur = [0]
    class Dep:
        def __init__(self, name, delay=0): self.name = name; self.delay = delay
    class FQ:
        def __init__(self, items, start=0, rate=1.0):
            self.items = list(items); self.start = start; self.rate = rate; self.credit = 0.999
        def step(self, n, force=False):
            if n < self.start and not force: return
            self.credit += self.rate
            while self.items and (self.credit >= 1 or callable(self.items[0])):
                x = self.items[0]
                if isinstance(x, int):
                    if n < x and not force: self.credit = min(self.credit, 1); return
                    self.items.pop(0); continue
                if isinstance(x, Dep):
                    if x.name not in T or (cur[0] < TS_[x.name] + x.delay and not force):
                        self.credit = min(self.credit, 1); return
                    self.items.pop(0); continue
                self.items.pop(0)
                if callable(x): x()
                else:
                    a(x); self.credit -= 1
        def flush(self):
            k = 0
            while self.items:
                self.step(0, True); k += 1
                assert k < 10000
    def flush_all(qs):
        k = 0
        while any(q.items for q in qs):
            for q in qs: q.step(0, True)
            k += 1; assert k < 10000
    def settok(name, v):
        T[name] = v; TS_[name] = cur[0]
    def tokv(name): return lambda: settok(name, a.vm)
    def tokl(name): return lambda: settok(name, a.lg)
    def waitv(name): return lambda: a.wait_vm(T[name])
    def waitl(name): return lambda: a.wait_lg(T[name])
    nfl = [0]
    def flag_store(sreg, extra="", creg=3):
        n = nfl[0]; nfl[0] += 1
        def f():
            vm = a.vm
            a(f"""
            s_cmp_lg_u32 s{creg}, 0
            s_cbranch_scc1 L_nf{n}
            s_mov_b64 exec, 1
            buffer_store_dword v252, v253, s[8:11], s{sreg} offen sc1
            {extra}
            s_mov_b64 exec, -1
            L_nf{n}:
            """)
            a.vm = vm
        return f
    def check1(label, tok, reg, load, mask=None):
        a.wait_vm(T[tok])
        vm = a.vm
        if mask is not None: a(f"s_mov_b64 exec, {mask:#x}")
        a(f"""
        s_mov_b32 s72, 0
        s_branch {label}_c
        {label}:
        {load}
        s_waitcnt vmcnt(0)
        {label}_c:
        s_add_u32 s72, s72, 1
        v_cmp_ne_u32 vcc, s28, v{reg}
        s_cmp_gt_u32 s72, {SPIN_MAX}
        s_cbranch_scc1 {label}_x
        s_and_b64 exec, exec, vcc
        s_cbranch_execnz {label}
        {label}_x:
        s_mov_b64 exec, -1
        """)
        a.vm = vm
    def check2(label, tok, r0, r1, loads):
        a.wait_vm(T[tok])
        vm = a.vm
        a(f"s_mov_b32 s72, 0\ns_branch {label}_c\n{label}:")
        emit(loads)
        a(f"""
        s_waitcnt vmcnt(0)
        {label}_c:
        s_add_u32 s72, s72, 1
        v_xor_b32 v2, s28, v{r0}
        v_xor_b32 v9, s28, v{r1}
        v_or_b32 v2, v2, v9
        v_cmp_ne_u32 vcc, 0, v2
        s_cmp_gt_u32 s72, {SPIN_MAX}
        s_cbranch_scc1 {label}_x
        s_cbranch_vccnz {label}
        {label}_x:
        """)
        a.vm = vm
    a.raw(f".globl {KN}\n.p2align 8\n.type {KN},@function\n{KN}:")
    if STAMP: a("v_mov_b32 v255, 0")
    stamp(a, "start")
    a(f"""
    s_cmp_ge_u32 s2, 256
    s_cbranch_scc1 L_exit
    s_load_dwordx16 s[32:47], s[0:1], 0
    s_load_dwordx2 s[64:65], s[0:1], 128
    s_load_dwordx16 s[48:63], s[0:1], 64
    s_getpc_b64 s[4:5]
    L_pc:
    s_lshr_b32 s31, s2, 3               ; k
    v_xor_b32 v2, s31, v0
    v_and_b32 v2, 3, v2
    v_cmp_eq_u32 vcc, 0, v2
    v_lshlrev_b32 v2, 7, v0
    v_min_u32 v2, L_end-L_pc-4, v2
    s_mov_b64 exec, vcc
    global_load_dword v254, v2, s[4:5]
    s_mov_b64 exec, -1
    v_lshrrev_b32 v2, 6, v0
    v_and_b32 v1, 63, v0
    v_readfirstlane_b32 s3, v2
    v_and_b32 v7, 3, v1                 ; l&3
    v_lshrrev_b32 v9, 2, v1             ; cp
    v_lshlrev_b32 v10, 13, v7
    v_lshl_add_u32 v10, v9, 2, v10
    s_and_b32 s30, s2, 7                ; xcd
    s_lshl_b32 s29, s30, 5
    s_add_u32 s29, s29, s31             ; p
    s_lshr_b32 s73, s29, 2              ; rg
    s_and_b32 s74, s29, 3               ; cq
    s_lshl_b32 s74, s74, 7
    s_lshl_b32 s75, s3, 5
    s_add_u32 s74, s74, s75
    s_lshl_b32 s75, s73, 15
    s_lshl_b32 s76, s74, 1
    s_add_u32 s75, s75, s76
    s_add_u32 s76, s75, 4096
    v_lshrrev_b32 v6, 5, v1             ; hh
    v_and_b32 v11, 31, v1
    v_lshlrev_b32 v11, 4, v11
    v_lshl_add_u32 v11, v6, 10, v11
    s_lshl_b32 s77, s29, 13
    s_lshl_b32 s78, s3, 11
    s_add_u32 s77, s77, s78
    s_lshr_b32 s79, s3, 1               ; ch_local
    s_and_b32 s80, s3, 1
    s_lshl_b32 s81, s29, 1
    s_add_u32 s81, s81, s79             ; d
    s_lshl_b32 s82, s81, 8
    s_lshl_b32 s83, s80, 7
    s_add_u32 s82, s82, s83
    v_lshl_add_u32 v12, v1, 1, s82
    s_lshl_b32 s83, s81, 1
    v_mov_b32 v13, s83
    s_mov_b32 s14, {2048*1024:#x}
    s_mov_b32 s15, 0x20000
    s_waitcnt lgkmcnt(0)
    s_mov_b32 s12, s32
    s_and_b32 s13, s33, 0xffff
    """)
    for e in range(8):
        a(f"buffer_load_dword v{32+e}, v10, s[12:15], s{75 if e < 4 else 76} offen offset:{(e%4)*1024}")
    tokT = a.vm
    a(f"""
    buffer_load_dwordx4 v[16:19], v11, s[12:15], s77 offen
    buffer_load_dwordx4 v[20:23], v11, s[12:15], s77 offen offset:512
    """)
    tokS = a.vm
    a(f"""
    global_load_ushort v24, v13, s[46:47]
    global_load_ushort v25, v12, s[34:35]
    global_load_ushort v26, v12, s[36:37]
    """)
    tokA = a.vm
    a(f"""
    global_load_ushort v28, v12, s[38:39]
    global_load_ushort v29, v12, s[40:41]
    global_load_ushort v30, v12, s[42:43]
    global_load_ushort v31, v12, s[44:45]
    global_load_ushort v251, v13, s[48:49]
    s_add_u32 s4, s64, {EPOCH:#x}
    s_addc_u32 s5, s65, 0
    s_load_dword s6, s[4:5], 0
    """)
    srd(a, 16, 52, 512 * 3584)
    a(f"""
    v_lshlrev_b32 v3, 4, v1             ; lane*16
    v_lshrrev_b32 v4, 4, v1             ; l>>4
    v_and_b32 v5, 15, v1                ; l&15
    v_bfe_u32 v8, v1, 2, 2              ; (l>>2)&3
    s_min_u32 s84, s31, 27
    """)
    if OPT.get("g1map", 1) == 0:
        a(f"""
        s_cmp_ge_u32 s84, 14
        s_cselect_b32 s85, 1, 0
        s_mul_i32 s86, s85, 14
        s_sub_u32 s7, s84, s86              ; ft
        s_lshl_b32 s66, s30, 1
        s_add_u32 s66, s66, s85             ; rb
        """)
    else:
        a(f"""
        s_mul_i32 s85, s84, 37
        s_lshr_b32 s85, s85, 8
        s_mul_i32 s86, s85, 7
        s_sub_u32 s86, s84, s86
        s_lshr_b32 s66, s30, 1
        s_lshl_b32 s66, s66, 2
        s_add_u32 s66, s66, s85             ; rb
        s_and_b32 s7, s30, 1
        s_mul_i32 s7, s7, 7
        s_add_u32 s7, s7, s86               ; ft
        """)
    a(f"""
    v_lshlrev_b32 v15, 2, v4
    v_xor_b32 v15, v5, v15
    v_lshlrev_b32 v15, 4, v15
    v_mul_u32_u24 v{W1V}, 3584, v4
    v_add_u32 v{W1V}, v{W1V}, v15
    v_add_u32 v{W1V+1}, {4*3584-1024}, v{W1V}
    v_add_u32 v{W1V+2}, {2*(4*3584-1024)}, v{W1V}
    v_add_u32 v{W1V+3}, {3*(4*3584-1024)}, v{W1V}
    s_lshl_b32 s70, s3, 12
    s_mul_i32 s71, s3, {128*3584}
    s_lshl_b32 s5, s7, 8
    s_add_u32 s71, s71, s5
    """)
    srd(a, 8, 64, WS_USED if not STAMP else 0x1000000)
    srd(a, 20, 56, 1792 * 1024)
    srd(a, 24, 60, 2048 * 1024)
    a(f"""
    v_lshrrev_b32 v2, 3, v1
    v_mul_u32_u24 v{HV}, {RS}, v2
    v_lshlrev_b32 v2, 2, v4
    v_xor_b32 v2, v1, v2
    v_and_b32 v2, 7, v2
    v_lshl_add_u32 v{HV}, v2, 4, v{HV}
    v_add_u32 v{HV+1}, {8*RS-1024}, v{HV}
    v_add_u32 v{HV+2}, {2*(8*RS-1024)}, v{HV}
    v_add_u32 v{HV+3}, {3*(8*RS-1024)}, v{HV}
    s_lshl_b32 s67, s7, 2
    s_add_u32 s67, s67, s3              ; fb
    """)
    if OPT.get("g2map", 1) == 0:
        a(f"""
        s_lshl_b32 s87, s30, 2
        s_lshr_b32 s85, s31, 3
        s_add_u32 s87, s87, s85             ; tt
        s_and_b32 s84, s31, 7               ; dt
        """)
    else:
        a(f"""
        s_lshr_b32 s87, s30, 1
        s_lshl_b32 s87, s87, 3
        s_lshr_b32 s85, s31, 2
        s_add_u32 s87, s87, s85             ; tt
        s_and_b32 s84, s30, 1
        s_lshl_b32 s84, s84, 2
        s_and_b32 s85, s31, 3
        s_add_u32 s84, s84, s85             ; dt
        """)
    a(f"""
    s_lshl_b32 s69, s84, 1
    s_add_u32 s69, s69, s80
    v_mul_u32_u24 v14, {2*RS}, v9
    v_lshl_add_u32 v14, v7, 4, v14
    s_mul_i32 s85, s74, {RS}
    s_lshl_b32 s86, s73, 6
    s_add_u32 s85, s85, s86
    s_add_u32 s85, s85, {XT:#x}
    s_add_u32 s86, s85, {RS}
    s_mov_b32 s73, 0x05040100
    s_mov_b32 s74, 0x07060302
    s_mov_b32 s75, 0x3f803f80
    v_and_b32 v15, 1, v4                ; th
    v_lshlrev_b32 v15, 5, v15
    v_lshl_add_u32 v15, v7, 3, v15      ; th*32 + c4*8
    v_lshl_add_u32 v242, v6, 3, v8
    v_lshl_add_u32 v242, v242, 8, v15
    v_xor_b32 v2, s3, v8
    v_lshl_add_u32 v242, v2, 6, v242
    v_add_u32 v243, 32768, v242
    v_add_u32 v244, 98304, v242
    v_lshl_add_u32 v242, v6, 3, v8
    v_lshl_add_u32 v242, v242, 7, v15
    v_lshrrev_b32 v2, 1, v8
    v_lshl_add_u32 v242, v2, 6, v242
    v_bfe_u32 v2, v1, 2, 3
    v_lshlrev_b32 v{W2V}, 10, v2
    v_lshl_add_u32 v{W2V}, v6, 6, v{W2V}
    v_lshl_add_u32 v{W2V}, v7, 4, v{W2V}
    v_add_u32 v{W2V+1}, {8192-1024}, v{W2V}
    v_add_u32 v{W2V+2}, {2*(8192-1024)}, v{W2V}
    v_add_u32 v{W2V+3}, {3*(8192-1024)}, v{W2V}
    s_mul_i32 s95, s3, {448*1024}
    s_lshl_b32 s76, s84, 7
    s_add_u32 s95, s95, s76
    s_lshl_b32 s89, s3, 13
    """)
    a(f"""
    v_lshl_add_u32 v245, v6, 2, v8
    v_lshl_add_u32 v245, v245, 6, v15
    s_lshl_b32 s76, s80, 9
    v_add_u32 v245, s76, v245
    v_add_u32 v236, s89, v245
    v_add_u32 v236, 32768, v236
    v_xor_b32 v237, 512, v236
    v_add_u32 v238, 0x10000, v236
    v_add_u32 v239, 0x10000, v237
    v_lshrrev_b32 v2, 1, v5
    v_lshlrev_b32 v2, 6, v2
    v_lshl_add_u32 v2, v4, 4, v2        ; 64(j>>1)+16h
    v_and_b32 v15, 1, v5
    v_lshl_add_u32 v248, v15, 3, v2
    v_mul_u32_u24 v247, {UC_STR}, v15
    s_mul_i32 s76, s79, {UC_CH}
    s_add_u32 s76, s76, {UC}            ; UC(ch)
    s_lshl_b32 s83, s80, 8
    s_sub_u32 s83, 256, s83             ; (1-par)*256
    s_add_u32 s82, s76, s83
    v_add3_u32 v247, v247, v2, s82      ; B base
    v_mul_u32_u24 v246, {KC_STR}, v7
    v_sub_u32 v2, v4, v8
    v_lshlrev_b32 v2, 4, v2
    s_mul_i32 s77, s79, {KC_CH}
    s_add_u32 s78, s77, 48
    s_add_u32 s78, s78, s83
    v_add3_u32 v246, v246, v2, s78      ; A base
    s_lshl_b32 s82, s80, 10
    s_add_u32 s78, s76, {UC_STR+448}
    s_add_u32 s78, s78, s82
    v_add_u32 v249, s78, v248
    s_add_u32 s78, s77, {TAB}
    s_lshl_b32 s83, s80, 11
    s_add_u32 s83, s83, s78
    v_add_u32 v240, s83, v3
    s_lshl_b32 s83, s80, 11
    s_sub_u32 s83, s78, s83
    s_add_u32 s83, s83, 2048
    v_add_u32 v241, s83, v3
    s_sub_u32 s96, 0, s80
    s_mov_b32 s97, s96
    v_mov_b32 v40, 0
    v_mov_b32 v41, 0
    v_mov_b32 v42, 0
    v_mov_b32 v43, 0
    s_mul_i32 s78, s80, {UC_STR}
    s_add_u32 s78, s78, s76
    v_add_u32 v2, s78, v3
    s_mul_i32 s78, s79, {TAB_CH}
    s_add_u32 s78, s78, {TAB}
    s_sub_u32 s4, s78, {29*16}
    v_add_u32 v15, s4, v3
    v_cmp_lt_u32 vcc, 28, v1
    v_cndmask_b32 v2, v2, v15, vcc
    ds_write_b128 v2, v[40:43]
    s_sub_u32 s78, s78, {4*0x3EC0}
    s_mul_i32 s4, s79, {PQ_CH}
    s_add_u32 s4, s4, {PQ}
    s_lshl_b32 s88, s80, 8
    s_add_u32 s88, s88, s4
    v_mul_u32_u24 v201, {PQ_PITCH}, v5
    v_lshl_add_u32 v201, v4, 4, v201
    s_mul_i32 s5, s80, {16*PQ_PITCH}
    s_add_u32 s5, s5, s4
    s_add_u32 s5, s5, {P_BYTES}
    v_add_u32 v202, s5, v201
    v_add_u32 v201, s4, v201
    s_lshl_b32 s5, s80, 11
    s_add_u32 s5, s5, s77
    v_lshl_add_u32 v231, v1, 5, s5
    v_mul_u32_u24 v232, {KC_STR}, v8
    v_lshl_add_u32 v232, v7, 4, v232
    s_add_u32 s5, s77, 4096
    v_add_u32 v232, s5, v232
    ds_write_b128 v232, v[40:43]
    s_lshl_b32 s5, s3, 10
    s_add_u32 s5, s5, {UC}
    v_lshlrev_b32 v233, 2, v1
    v_add_u32 v234, s5, v233
    v_add_u32 v235, {UC_CH}, v234
    s_lshl_b32 s5, s80, 7
    v_lshl_add_u32 v15, v5, 3, s5       ; 8*(16jb+j)
    """)
    a("v_cvt_f32_u32 v15, v15")
    for ib, tbl in enumerate([[(0, 1), (4, 1), (256, 2), (512, 256)], [(1536, 256), (516, 256), (1028, 256), (1028, 256)]]):
        a(f"v_mov_b32 v52, {fhex(tbl[3][0])}\nv_mov_b32 v53, {fhex(tbl[3][1])}")
        for h in range(3):
            if tbl[h] == tbl[3]: continue
            a(f"v_cmp_ne_u32 vcc, {h}, v4")
            a(f"v_mov_b32 v2, {fhex(tbl[h][0])}")
            a(f"v_cndmask_b32 v52, v2, v52, vcc")
            if tbl[h][1] != tbl[3][1]: a(f"v_cndmask_b32 v53, {float(tbl[h][1])}, v53, vcc")
        a("v_add_f32 v52, v52, v15")
        for r in range(4):
            if ib == 0 and r == 0:
                a(f"v_max_f32 v2, {fhex(0.75)}, v52\nv_lshrrev_b32 v2, 14, v2")
            else:
                a("v_lshrrev_b32 v2, 14, v52")
            a(f"v_add_u32 v{204+4*ib+r}, s78, v2")
            if r < 3: a("v_add_f32 v52, v52, v53")
    a(f"""
    s_lshl_b32 s5, s80, 10
    s_sub_u32 s5, 2047, s5
    v_sub_u32 v52, s5, v3
    v_cvt_f32_i32 v52, v52
    v_add_f32 v53, -1.0, v52
    v_mov_b32 v15, {fhex(0.75)}
    """)
    for e in range(0, 20, 2):
        if e >= 14:
            a(f"""
            v_fmamk_f32 v54, v52, {fhex(0.125)}, v15
            v_fmamk_f32 v55, v53, {fhex(0.125)}, v15
            v_max_f32 v54, v54, v52
            v_max_f32 v55, v55, v53
            v_cvt_pk_bf16_f32 v2, v54, v55
            """)
        else:
            a("v_cvt_pk_bf16_f32 v2, v52, v53")
        if e < 18: a("v_pk_add_f32 v[52:53], v[52:53], -2.0 op_sel_hi:[1,0]")
        a(f"v_mad_u32_u16 v{212+e}, v2, 4, s78")
        if e + 1 <= 18: a(f"v_mad_u32_u16 v{213+e}, v2, 4, s78 op_sel:[1,0,0,0]")
    a.flush_bg()
    a.wait_vm(tokT)
    stamp(a, "T")
    for k in range(4):
        a(f"v_perm_b32 v{44+k}, v{32+2*k+1}, v{32+2*k}, s73")
    a(f"buffer_store_dwordx4 v[44:47], v14, s[8:11], s85 offen sc1")
    for k in range(4):
        a(f"v_perm_b32 v{48+k}, v{32+2*k+1}, v{32+2*k}, s74")
    a(f"buffer_store_dwordx4 v[48:51], v14, s[8:11], s86 offen sc1")
    tokXT = a.vm
    a(f"""
    s_lshl_b32 s5, s2, 2
    s_add_u32 s5, s5, s3
    s_mul_i32 s5, s5, {14*128}
    v_lshlrev_b32 v2, 7, v1
    s_mov_b64 exec, 0x3fff
    buffer_load_dword v254, v2, s[20:23], s5 offen
    buffer_load_dword v253, v2, s[16:19], s5 offen
    s_mov_b64 exec, -1
    """)
    a("v_mov_b32 v52, 0\nv_mov_b32 v53, 0\nv_mov_b32 v54, 0\nv_mov_b32 v55, 0")
    a.wait_vm(tokS)
    for j in range(8):
        a(f"v_dot2_f32_bf16 v{52+(j&1)}, v{16+j}, s75, v{52+(j&1)}")
        a(f"v_dot2_f32_bf16 v{54+(j&1)}, v{16+j}, v{16+j}, v{54+(j&1)}")
    a("v_add_f32 v52, v52, v53\nv_add_f32 v54, v54, v55")
    for sh in (8, 4, 2, 1):
        a(f"v_add_f32_dpp v52, v52, v52 row_ror:{sh} row_mask:0xf bank_mask:0xf")
        a(f"v_add_f32_dpp v54, v54, v54 row_ror:{sh} row_mask:0xf bank_mask:0xf")
    a(f"""
    v_mov_b32 v53, v52
    v_mov_b32 v55, v54
    s_lshl_b32 s91, s29, 6
    s_lshl_b32 s5, s3, 4
    s_add_u32 s91, s91, s5
    s_add_u32 s91, s91, {ST:#x}
    v_permlane16_swap_b32 v52, v53
    v_permlane16_swap_b32 v54, v55
    v_add_f32 v52, v52, v53
    v_add_f32 v54, v54, v55
    """)
    row_stats(a, 52, 54, 56, 45, 53)
    a(f"""
    s_waitcnt lgkmcnt(0)
    s_add_u32 s28, s6, 1
    s_mul_i32 s28, s28, 0x9E3779B1      ; tag
    v_readlane_b32 s92, v56, 32
    v_readlane_b32 s93, v45, 32
    v_lshrrev_b32 v44, 16, v56
    v_mov_b32 v47, s28
    v_or_b32 v44, s92, v44
    v_mov_b32 v46, s93
    s_mov_b32 s4, {fhex(LOG2E_HI)}
    """)
    a.wait_vm(tokA)
    stamp(a, "A")
    a(f"""
    v_lshlrev_b32 v24, 16, v24
    v_lshlrev_b32 v25, 16, v25
    v_lshlrev_b32 v26, 16, v26
    v_mul_f32 v16, s4, v24
    v_fma_f32 v17, v24, s4, -v16
    v_fmac_f32 v17, {fhex(LOG2E_LO)}, v24
    v_exp_f32 v16, v16
    v_mul_f32 v17, {fhex(math.log(2))}, v17
    v_fma_f32 v16, v16, v17, v16
    v_cvt_pk_bf16_f32 v16, v16, v16
    v_and_b32 v16, 0xffff0000, v16      ; dt
    v_mul_f32 v25, v16, v25
    v_mul_f32 v26, v16, v26
    v_mul_f32 v25, s4, v25              ; a2
    v_mul_f32 v26, 0.15915494, v26      ; b2
    """)
    def edirect(d, l):
        a(f"""
        v_mul_f32 v18, {fhex(float(l))}, v25
        v_mul_f32 v19, {fhex(float(l))}, v26
        v_exp_f32 v18, v18
        v_fract_f32 v19, v19
        v_cos_f32 v{d}, v19
        v_sin_f32 v{d+1}, v19
        v_pk_mul_f32 {vr(d,2)}, {vr(d,2)}, v[18:19] op_sel_hi:[1,0]
        """)
    cnt = [0]; pend = []
    def flush_put():
        for x in pend: a(x)
        pend.clear()
    def put(src, row, isP):
        t = 20 + cnt[0] % 4; cnt[0] += 1
        a(f"v_cvt_pk_bf16_f32 v{t}, v{src}, {'-' if isP else ''}v{src+1}")
        pend.append(f"ds_write_addtid_b32 v{t} offset:{row*PQ_PITCH + (0 if isP else P_BYTES)}")
        if len(pend) >= 2: flush_put()
    TMP = [56, 58, 60, 62]
    Q = {j: 64 + 2 * j for j in range(1, 17)}
    npub = [0]
    def publish(final=False):
        n = npub[0]; npub[0] += 1
        flush_put()
        if final:
            a(f"s_cmp_eq_u32 s94, 0\ns_cbranch_scc1 L_np{n}\ns_waitcnt vmcnt({NY})")
        else:
            if n == 0: a("s_waitcnt vmcnt(15)")
            a(f"s_getreg_b32 s93, hwreg(HW_REG_IB_STS, 0, 4)\ns_cmp_lt_u32 s93, s94\ns_cbranch_scc0 L_np{n}")
        a(f"""
        s_mov_b64 exec, 1
        buffer_store_dwordx4 v[44:47], v3, s[8:11], s91 offen sc1
        s_mov_b64 exec, -1
        s_mov_b32 s94, 0
        """)
        stamp(a, "pub")
        a(f"L_np{n}:")
    edirect(Q[1], 8)
    a.flush_bg()
    NY = a.vm - tokXT
    a(f"s_mov_b32 m0, s88\ns_mov_b32 s94, {NY+1}")
    a(f"v_mov_b32 v17, 0x00003f80\nds_write_addtid_b32 v17 offset:{P_BYTES}")
    prev = 1
    PUBAT = {0: (12, 18, 24, 30), 1: (16, 26), 2: (20,)}[OPT.get("pubs", 1)]
    for j in range(2, 17):
        hb = 1 << (j.bit_length() - 1)
        x, y = (j // 2, j // 2) if j == hb else (hb, j - hb)
        cmul(a, Q[j], Q[x], Q[y]); put(Q[prev], prev, 0); prev = j
        if j in PUBAT: publish()
    pr, prow = Q[16], 16
    for j in range(17, 32):
        t = TMP[j % 4]
        cmul(a, t, Q[16], Q[j - 16]); put(pr, prow, 0); pr, prow = t, j
        if j in PUBAT: publish()
    put(pr, prow, 0)
    E1, E256, E1024, E2, E4, E512 = 64, 66, 68, 70, 72, 74
    P = {k: 76 + 2 * k for k in range(8)}
    R = {256: 92, 260: 94, 512: 96, 768: 98, 1024: 100}
    edirect(E1, 1); edirect(E256, 256); edirect(E1024, 1024)
    publish()
    a(f"""
    s_waitcnt vmcnt({4 + (8 if EARLY else 0)})
    v_lshlrev_b32 v28, 16, v28
    v_lshlrev_b32 v29, 16, v29
    v_lshlrev_b32 v30, 16, v30
    v_lshlrev_b32 v31, 16, v31
    v_mul_f32 v28, v16, v28
    v_mul_f32 v29, v16, v29
    """)
    cmul(a, E2, E1, E1); cmul(a, P[0], 30, 28); cmul(a, E512, E256, E256); cmul(a, E4, E2, E2)
    seq = [(P[1], P[0], E1, 1), (P[2], P[0], E2, 2), (P[3], P[1], E2, 3), (P[4], P[0], E4, 4), (P[5], P[1], E4, 5), (P[6], P[2], E4, 6),
           (P[7], P[3], E4, 7), (R[256], P[0], E256, 8), (TMP[0], P[2], E256, 9), (R[260], P[4], E256, 10), (TMP[1], P[6], E256, 11),
           (R[512], P[0], E512, 12), (R[768], R[256], E512, 13), (R[1024], P[0], E1024, 14), (TMP[2], R[256], E1024, 15),
           (TMP[3], R[512], E1024, 16), (TMP[0], R[768], E1024, 17), (TMP[1], R[1024], E1024, 18), (TMP[2], P[4], E512, 20), (TMP[3], R[260], E512, 21)]
    pr, prow = P[0], 0
    for d, x, y, row in seq:
        cmul(a, d, x, y); put(pr, prow, 1); pr, prow = d, row
        if row in ((6, 13) if OPT.get("pubs", 1) == 0 else (9,)): publish()
    put(pr, prow, 1); flush_put()
    publish(True)
    a("s_waitcnt lgkmcnt(0)\ns_barrier")
    stamp(a, "pq")
    toks = []
    for s in range(8):
        a(f"ds_read_b128 {vr(64+12*s,4)}, v202 offset:{64*s}")
        a(f"ds_read_b128 {vr(68+12*s,4)}, v201 offset:{64*s}"); t1 = a.lg
        a(f"ds_read_b128 {vr(72+12*s,4)}, v201 offset:{64*s+16*PQ_PITCH}"); toks.append((t1, a.lg))
    for s in range(8):
        a.wait_lg(toks[s][0])
        a(f"v_mfma_f32_16x16x32_bf16 v[16:19], {vr(68+12*s,4)}, {vr(64+12*s,4)}, {'0' if s==0 else 'v[16:19]'}")
        a.wait_lg(toks[s][1])
        a(f"v_mfma_f32_16x16x32_bf16 v[20:23], {vr(72+12*s,4)}, {vr(64+12*s,4)}, {'0' if s==0 else 'v[20:23]'}")
    a(f"""
    s_lshl_b32 s4, s3, 12
    s_add_u32 s4, s4, {ST:#x}
    v_cvt_pk_bf16_f32 v16, v16, v17
    v_cvt_pk_bf16_f32 v18, v18, v19
    v_cvt_pk_bf16_f32 v20, v20, v21
    v_cvt_pk_bf16_f32 v22, v22, v23
    """)
    for q in range(2):
        b = 16 + 4 * q
        a(f"""
        ds_write_b16 v{204+4*q}, v{b}
        ds_write_b16_d16_hi v{205+4*q}, v{b}
        ds_write_b16 v{206+4*q}, v{b+2}
        ds_write_b16_d16_hi v{207+4*q}, v{b+2}
        """)
    a("s_waitcnt lgkmcnt(0)\ns_barrier")
    stamp(a, "tab")
    pa_loads = [f"buffer_load_dwordx4 {vr(160+4*i,4)}, v3, s[8:11], s4 offen offset:{1024*i} sc1" for i in range(4)]
    for e in range(19):
        a(f"ds_read_u16 v{64+e}, v{212+e}")
    tg = a.lg
    for x in pa_loads: a(x)
    a.wait_lg(tg)
    def expand(c):
        st = 3 - c
        o = 96 + 8 * c
        for k in range(8):
            a(f"v_lshl_or_b32 v{o+k}, v{64+st+2*k+1}, 16, v{64+st+2*k}")
        a(f"ds_write_b128 v231, {vr(o,4)} offset:{c*KC_STR}")
        a(f"ds_write_b128 v231, {vr(o+4,4)} offset:{c*KC_STR+16}")
    NEXP = OPT.get("nexp", 2)
    for c in range(NEXP): expand(c)
    stamp(a, "kdone")
    poll4(a, "L_pa", pa_loads, [163, 167, 171, 175])
    a(f"""
    s_mul_i32 s4, s29, {2*RS}
    s_lshl_b32 s5, s3, 10
    s_add_u32 s4, s4, s5
    s_add_u32 s4, s4, {XT:#x}
    s_add_u32 s5, s4, {RS}
    """)
    stamp(a, "syncA")
    for i in range(4):
        a(f"buffer_load_dword v{176+2*i}, v233, s[8:11], s4 offen offset:{256*i} sc1")
        a(f"buffer_load_dword v{177+2*i}, v233, s[8:11], s5 offen offset:{256*i} sc1")
    tokX = a.vm
    for c in range(NEXP, 4): expand(c)
    a(f"""
    v_mov_b32 v20, 0x3f803f80
    v_mov_b32 v21, 0x3f803f80
    v_mov_b32 v22, 0x3f803f80
    v_mov_b32 v23, 0x3f803f80
    s_mul_i32 s76, s81, {RS}
    s_add_u32 s76, s76, s82
    s_add_u32 s77, s76, {HT:#x}
    v_lshlrev_b32 v251, 16, v251
    v_mov_b32 v252, s28
    v_mov_b32 v253, 0
    v_lshlrev_b32 v250, {OPT.get("fs", 4)}, v0
    s_lshl_b32 s82, s29, {OPT.get("fs", 4)}
    s_add_u32 s83, s82, {FBX[1]:#x}
    s_add_u32 s82, s82, {FBX[0]:#x}
    s_mov_b32 s85, {FBX[0]:#x}
    s_mov_b32 s86, {FBX[1]:#x}
    s_mul_i32 s90, s3, {128*RS}
    s_add_u32 s90, s90, {HT:#x}
    s_and_b32 s36, s66, {3 if OPT.get("g1map", 1) else 1}
    s_mul_i32 s36, s36, {OPT.get("rot1", 1) * (1 if OPT.get("g1map", 1) else 2)}   ; rot1
    s_lshr_b32 s37, s31, {2 if OPT.get("g2map", 1) else 3}
    s_cmp_eq_u32 s37, 7
    s_cselect_b32 s37, 0, s37
    s_mul_i32 s37, s37, {OPT.get("rot2", 1) * (1 if OPT.get("g2map", 1) else 2)}   ; rot2
    s_add_u32 s32, s95, {448*1024}
    s_lshl_b32 s4, s37, 16
    s_add_u32 s95, s95, s4
    s_add_u32 s33, s71, {128*3584}
    s_mul_i32 s4, s36, {32*3584}
    s_add_u32 s71, s71, s4
    """)
    if OPT.get("j0x", 0):
        emit(w1_dma(0)); settok("j0", a.vm)
    for i in range(4):
        g = 160 + 4 * i
        a(f"v_and_b32 v{129+2*i}, 0xffff0000, v{g}")
        a(f"v_lshlrev_b32 v{128+2*i}, 16, v{g}")
        a(f"v_mov_b32 v{136+2*i}, v{g+1}")
        a(f"v_mov_b32 v{137+2*i}, v{g+2}")
    for i in range(4):
        a.wait_vm(tokX - 6 + 2 * i)
        for c in range(2):
            x, t = 176 + 2 * i + c, 144 + 4 * i + 2 * c
            a(f"""
            v_lshlrev_b32 v{t}, 16, v{x}
            v_and_b32 v{t+1}, 0xffff0000, v{x}
            v_pk_add_f32 {vr(t,2)}, {vr(t,2)}, {vr(128+2*i,2)} neg_lo:[0,1] neg_hi:[0,1]
            v_cvt_pk_bf16_f32 v{x}, v{t}, v{t+1}
            v_lshlrev_b32 v{t}, 16, v{x}
            v_and_b32 v{t+1}, 0xffff0000, v{x}
            v_pk_mul_f32 {vr(t,2)}, {vr(t,2)}, {vr(136+2*i,2)}
            v_cvt_pk_bf16_f32 v{x}, v{t}, v{t+1}
            """)
        for c in range(2):
            x = 176 + 2 * i + c
            a(f"""
            ds_write_b32 v{234+c}, v{x} offset:{256*i+456}
            ds_write_b32 v{234+c}, v{x} offset:{256*i+UC_STR+448}
            """)
    a("s_waitcnt lgkmcnt(0)\ns_barrier")
    stamp(a, "conv0")
    a(f"""
    ds_read_b64 v[28:29], v249
    ds_read_b64 v[30:31], v249 offset:512
    ds_read_b64 v[32:33], v249 offset:2048
    ds_read_b64 v[34:35], v249 offset:2560
    buffer_load_dwordx2 v[12:13], v248, s[8:11], s76 offen sc1
    buffer_load_dwordx2 v[14:15], v248, s[8:11], s76 offen offset:512 sc1
    buffer_load_dwordx2 v[16:17], v248, s[8:11], s76 offen offset:2048 sc1
    buffer_load_dwordx2 v[18:19], v248, s[8:11], s76 offen offset:2560 sc1
    """)
    T["XE"] = a.vm
    CA, CB = 40, 56
    ZR, XR = 160, 200
    SND, KP, RC = 216, 224, 176
    ops = []
    for X in range(2):
        for r in range(4):
            if X == 0: prs = sorted([(b, aa) for b in range(4) for aa in range(b + 1)], key=lambda p: (max(p[1], p[0] - p[1]), p[0]))
            else: prs = [(aa + c, aa) for aa in range(8) for c in range(7 - aa, max(3 - aa, -1), -1)]
            for b, aa in prs: ops.append((b, ("A", aa, r, X), ("B", b - aa, r, X)))
    order, last = [], {}
    for n, (b, A, B) in enumerate(ops):
        for f in (A, B):
            if f not in last: order.append(f)
            last[f] = n
    pos = {f: i for i, f in enumerate(order)}
    free = list(range(72, 160, 4))
    reg, tok = {}, {}
    st = {"issued": 0}
    def issue():
        f = order[st["issued"]]; reg[f] = free.pop(0)
        k, idx, r, X = f
        off = (7 - idx) * 512 + (3 - r) * 64 if k == "A" else idx * 512 + (3 - r) * 64
        a(f"ds_read_b128 {vr(reg[f],4)}, v{246 if k == 'A' else 247} offset:{off}")
        tok[f] = a.lg; st["issued"] += 1
    def zpre(ks):
        L = []
        for k in ks:
            u, z = 28 + k, ZR + 2 * k
            L += [f"v_lshlrev_b32 v{z}, 16, v{u}", f"v_and_b32 v{z+1}, 0xffff0000, v{u}", f"v_mul_f32 v{z}, v{z}, v251", f"v_mul_f32 v{z+1}, v{z+1}, v251",
                  f"v_cvt_pk_bf16_f32 v{z}, v{z}, v{z+1}", f"v_and_b32 v{z+1}, 0xffff0000, v{z}", f"v_lshlrev_b32 v{z}, 16, v{z}"]
        return L
    def xpre(ks):
        return sum(([f"v_lshlrev_b32 v{XR+2*k}, 16, v{12+k}", f"v_and_b32 v{XR+2*k+1}, 0xffff0000, v{12+k}"] for k in ks), [])
    def xch_send(C, X):
        a(f"""
        s_cmp_eq_u32 s80, 1
        s_cbranch_scc1 L_x{X}1
        s_nop 7
        ds_write_b128 v240, {vr(C+8,4)}
        ds_write_b128 v240, {vr(C+12,4)} offset:1024
        s_branch L_x{X}2
        L_x{X}1:
        s_nop 7
        """)
        a.lg -= 2
        a(f"""
        ds_write_b128 v240, {vr(C,4)}
        ds_write_b128 v240, {vr(C+4,4)} offset:1024
        """)
        for k in range(8): a(f"v_mov_b32 v{C+k}, v{C+8+k}")
        a(f"L_x{X}2:")
        T["exw"] = a.lg
    def xch_recv():
        a(f"ds_read_b128 {vr(RC,4)}, v241\nds_read_b128 {vr(RC+4,4)}, v241 offset:1024")
        T["exr"] = a.lg
    def cepi(C, X):
        a.wait_lg(T["exr"])
        for grp in (lambda k, y: f"v_pk_add_f32 {vr(y,2)}, {vr(y,2)}, {vr(RC+2*k,2)}",
                    lambda k, y: f"v_cvt_pk_bf16_f32 v{y}, v{y}, v{y+1}",
                    lambda k, y: f"v_and_b32 v{y+1}, 0xffff0000, v{y}\nv_lshlrev_b32 v{y}, 16, v{y}",
                    lambda k, y: f"v_pk_add_f32 {vr(y,2)}, {vr(y,2)}, {vr(ZR+8*X+2*k,2)}",
                    lambda k, y: f"v_cvt_pk_bf16_f32 v{y}, v{y}, v{y+1}",
                    lambda k, y: f"v_and_b32 v{y+1}, 0xffff0000, v{y}\nv_lshlrev_b32 v{y}, 16, v{y}",
                    lambda k, y: f"v_pk_add_f32 {vr(y,2)}, {vr(y,2)}, {vr(XR+8*X+2*k,2)}",
                    lambda k, y: f"v_cvt_pk_bf16_f32 v{SND+4*X+k}, v{y}, v{y+1}"):
            for k in range(4): a(grp(k, C + 2 * k))
        a(f"""
        buffer_store_dwordx2 {vr(SND+4*X,2)}, v248, s[8:11], s77 offen offset:{2048*X} sc1
        buffer_store_dwordx2 {vr(SND+4*X+2,2)}, v248, s[8:11], s77 offen offset:{2048*X+512} sc1
        """)
    FA = OPT.get("fa", 88)
    epiA = [41, lambda: xch_send(CA, 0), waitv("XE")] + xpre(range(4)) + [47, waitl("exw"), "s_barrier", xch_recv, 53, lambda: cepi(CA, 0), tokv("hA")]
    epiA += xpre(range(4, 8)) + [OPT.get("bj0", 62), waitv("j0"), "s_barrier"] + sum((w1_tr(sg) for sg in range(8)), []) + [tokl("tj0")]
    epiA += [FA, waitv("hA"), waitl("tj0"), "s_barrier", tokl("FA"), flag_store(82), lambda: stamp(a, "flagA")] + zpre(range(4, 8))
    if OPT.get("ada", 0):
        epiA += [f"s_cmp_ge_u32 s31, 28\ns_cselect_b32 s40, 0, s66\ns_cselect_b32 s41, 0, s36", "s_lshl_b32 s40, s40, 7", "s_add_u32 s90, s90, s40", f"s_add_u32 s34, s90, {128*RS}",
                 f"s_mul_i32 s41, s41, {32*RS}", "s_add_u32 s90, s90, s41",
                 OPT.get("pa0", 134), "buffer_load_dword v254, v250, s[8:11], s85 offen sc1", tokv("pA0")]
    PAL = "buffer_load_dword v254, v250, s[8:11], s85 offen sc1"
    qv = FQ(zpre(range(4)) + epiA, start=6, rate=OPT.get("cvr", 10) / 10)
    if OPT.get("j0x", 0):
        qd = FQ(w1_dma(1) + [OPT.get("res", 70)] + w1_dma(2) + [Dep("FA")] + w1_dma(3) + [tokv("RA")], start=OPT.get("cds", 10), rate=OPT.get("cdr", 42) / 100)
    elif OPT.get("pause", 1):
        qd = FQ(w1_dma(0) + [tokv("j0")] + w1_dma(1)[:7] + [OPT.get("res", 74)] + w1_dma(1)[7:] + w1_dma(2) + [Dep("FA")] + w1_dma(3) + [tokv("RA")], start=1, rate=OPT.get("cdr", 50) / 100)
    else:
        qd = FQ(w1_dma(0) + [tokv("j0")] + w1_dma(1) + w1_dma(2) + [Dep("FA")] + w1_dma(3) + [tokv("RA")], start=2, rate=OPT.get("cdr", 38) / 100)
    first = set()
    while st["issued"] < 10: issue()
    for n, (b, A, B) in enumerate(ops):
        needi = max(pos[A], pos[B])
        while st["issued"] <= needi: issue()
        need_tok = tok[order[needi]]
        if need_tok > a.lg_done:
            for la in (1, 2):
                if n + la < len(ops):
                    n2 = max(pos[ops[n+la][1]], pos[ops[n+la][2]])
                    if n2 < st["issued"] and a.lg - tok[order[n2]] >= 6: need_tok = max(need_tok, tok[order[n2]])
            a.wait_lg(need_tok)
        acc = vr(CA + 4 * b, 4)
        a(f"v_mfma_f32_16x16x32_bf16 {acc}, {vr(reg[A],4)}, {vr(reg[B],4)}, {acc if b in first else '0'}")
        first.add(b)
        rel = [f for f in (A, B) if last[f] == n]
        if st["issued"] < len(order) and a.lg - a.lg_done < 12 and free and st["issued"] - needi < 12: issue()
        for f in rel: free.append(reg[f])
        qd.step(n); qv.step(n)
        if n == 39: stamp(a, "convA")
    assert not qd.items
    qv.flush()
    stamp(a, "conv1")
    ADA = OPT.get("ada", 0)
    xch_send(CB, 1)
    a.wait_vm(T["RA"], " lgkmcnt(0)")
    a("s_barrier")
    xch_recv()
    if ADA:
        a.wait_vm(T["pA0"])
        vm0 = a.vm
        a(f"""
        v_cmp_ne_u32 vcc, s28, v254
        s_mov_b32 s42, 0
        s_cmp_ge_u32 s31, 28
        s_cbranch_scc1 L_ada
        s_cbranch_vccnz L_ada
        s_mov_b32 s42, 1
        """)
        emit(h_dma(0) + h_dma(1))
        stamp(a, "adaA")
        a("L_ada:")
        a.vm = vm0
    a(PAL); T["pA"] = a.vm
    a(f"""
    v_mov_b32 v16, v242
    v_xor_b32 v17, 64, v242
    v_add_u32 v18, 0x20000, v16
    v_add_u32 v19, 0x20000, v17
    """)
    cepi(CB, 1)
    T["hB"] = a.vm
    stamp(a, "epiB")
    epoch = f"""s_cmp_lg_u32 s2, 0
            s_cbranch_scc1 L_noep@
            s_add_u32 s4, s6, 1
            v_mov_b32 v2, s4
            v_mov_b32 v9, {EPOCH:#x}
            buffer_store_dword v2, v9, s[8:11], 0 offen sc1
            L_noep@:"""
    a(f"""
    s_cmp_ge_u32 s31, 28
    s_cbranch_scc1 L_sp
    """)
    vm_sp, lg_sp = a.vm, a.lg
    Tsp = dict(T)
    RING = list(range(64, 96, 4)) + list(range(212, 236, 4)) + list(range(196, 212, 4))
    A2 = 32
    PRA = OPT.get("pra", 8)
    PCA1 = "buffer_load_dword v254, v245, s[8:11], s38 offen sc1"
    PCB1 = "buffer_load_dword v254, v245, s[8:11], s39 offen sc1"
    PCAL = f"s_mov_b64 exec, 0x3fff\n{PCA1}\ns_mov_b64 exec, -1"
    g2s = f"""
        s_lshr_b32 s40, s87, 1
        s_lshl_b32 s40, s40, 11
        s_add_u32 s38, s40, {FCX[0]:#x}
        s_add_u32 s39, s40, {FCX[1]:#x}
        v_lshlrev_b32 v245, {OPT.get("fsc", 5)}, v1
        s_lshr_b32 s41, s3, 1
        s_lshl_b32 s40, s41, 8
        v_xor_b32 v249, s40, v3
        s_mul_i32 s43, s87, {112*1024}
        s_mul_i32 s40, s3, {28*1024}
        s_add_u32 s43, s43, s40
        s_add_u32 s43, s43, {HF:#x}
        s_add_u32 s35, s43, {28*1024}
        s_lshl_b32 s40, s37, 12
        s_add_u32 s43, s43, s40
        v_and_b32 v246, 31, v1
        s_lshl_b32 s40, s69, 5
        v_add_u32 v246, s40, v246
        v_mul_u32_u24 v247, {RS}, v246
        v_lshl_add_u32 v247, v6, 4, v247
        s_lshl_b32 s44, s87, 6
        s_lshl_b32 s40, s41, 5
        s_add_u32 s44, s44, s40
        s_add_u32 s44, s44, {HT:#x}
        v_lshlrev_b32 v246, 1, v246
        v_lshl_add_u32 v248, v6, 12, v246
        s_lshl_b32 s45, s87, 15
        s_lshl_b32 s40, s41, 14
        s_add_u32 s45, s45, s40
        s_add_u32 s46, s45, 8192
        s_mul_i32 s40, s3, 6144
        v_add_u32 v12, s40, v3
        """
    for pl in (1, 2, 3):
        g2s += f"""
        s_xor_b32 s40, s3, {pl}
        s_mul_i32 s40, s40, 6144
        s_add_u32 s40, s40, {(pl-1)*2048}
        v_add_u32 v{12+pl}, s40, v3
        """
    g2s = [x.strip() for x in g2s.split("\n") if x.strip()]
    def g2setup(): emit(g2s)
    RESA = "buffer_load_dwordx4 v[176:179], v247, s[8:11], s44 offen sc1\nglobal_load_ushort v251, v246, s[58:59]"
    RESB = "buffer_load_dwordx4 v[180:183], v247, s[8:11], s44 offen offset:2048 sc1"
    def hload(s):
        L = [f"buffer_load_dwordx4 {vr(RING[s % len(RING)],4)}, v249, s[8:11], s43 offen offset:{(s%4)*1024} sc1", tokv(("H", s))]
        if s % 4 == 3: L.append(adv(43, 4096, 35, 28*1024))
        return L
    GA = [64, 96]; FR = [32, 40, 48, 56]
    PBL = "buffer_load_dword v254, v250, s[8:11], s86 offen sc1"
    def st_loads(X): return [f"buffer_load_dwordx4 {vr(160+8*X+4*q,4)}, v10, s[8:11], s{91+X} offen offset:{512*q} sc1" for q in range(2)]
    def hg(X, g): return h_dma(g) + [tokv(f"h{X}{g}")]
    su = f"""
    s_lshl_b32 s4, s66, 7
    s_add_u32 s90, s90, s4
    s_add_u32 s34, s90, {128*RS}
    s_mul_i32 s4, s36, {32*RS}
    s_add_u32 s90, s90, s4
    s_lshl_b32 s5, s67, 6
    v_lshl_add_u32 v25, v6, 3, s5
    v_and_b32 v10, 31, v1
    v_lshlrev_b32 v10, 4, v10
    s_lshl_b32 s91, s66, 10
    s_add_u32 s91, s91, {ST2:#x}
    s_add_u32 s92, s91, 16384
    s_mul_i32 s74, s66, {2*112*1024}
    s_lshl_b32 s5, s67, 11
    s_add_u32 s74, s74, s5
    s_add_u32 s74, s74, {HF:#x}
    s_add_u32 s75, s74, {112*1024}
    s_lshl_b32 s93, s66, 11
    s_lshl_b32 s5, s7, {OPT.get("fsc", 5)}
    s_add_u32 s93, s93, s5
    s_add_u32 s94, s93, {FCX[1]:#x}
    s_add_u32 s93, s93, {FCX[0]:#x}
    """
    su = [x.strip() for x in su.split("\n") if x.strip()]
    if ADA: su = su[5:]
    CKA = OPT.get("cka", 6)
    qt = FQ(sum((w1_tr(sg) + [tokl(("w", sg))] for sg in range(8, 32)), []), 0, 2.5)
    qs_ = FQ(su, 0, 2.5)
    b1l = [f"global_load_dwordx2 {vr(160+2*g,2)}, v25, s[54:55] offset:{16*g}" for g in range(4)]
    qd = FQ(([] if ADA else hg(0, 0) + hg(0, 1)) + b1l + [tokv("b1")], CKA, OPT.get("wdr", 100) / 100)
    qf = FQ([waitv("hB"), "s_barrier", flag_store(83, epoch.replace("@", "1")), lambda: stamp(a, "flagB")], OPT.get("fb", 20))
    NCW = OPT.get("ncw", 32)
    def csum(sg): return f"v_mfma_f32_32x32x16_bf16 v[128:143], {ar(4*sg,4)}, v[20:23], {'0' if sg == 0 else 'v[128:143]'}"
    for sg in range(NCW):
        if sg == CKA:
            qs_.flush()
            if ADA:
                a("s_cmp_lg_u32 s42, 0\ns_cbranch_scc1 L_ada2")
                check1("L_pA", "pA", 254, PAL); stamp(a, "okA")
                emit(hg(0, 0) + hg(0, 1))
                a("L_ada2:")
                T["hB"] = a.vm
            else:
                check1("L_pA", "pA", 254, PAL); stamp(a, "okA")
        if sg >= 8:
            while ("w", sg) not in T: qt.step(0, True)
            a.wait_lg(T[("w", sg)])
        a(csum(sg)); cur[0] += 1
        for q in (qt, qs_, qd, qf): q.step(sg)
    flush_all([qt, qd, qf])
    for sg in range(8, 32): T.pop(("w", sg))
    def g1(X, queues, after_first=None, hooks={}):
        tk = {}
        def rd(sg, q):
            j = sg >> 3
            for hf in range(2):
                a(f"ds_read_b64_tr_b16 {vr(FR[sg%4]+4*q+2*hf,2)}, v{16+2*(j&1)+q} offset:{(j>>1)*16384+(sg&7)*2048+hf*512}")
            tk[(sg, q)] = a.lg
        a.wait_vm(T[f"h{X}0"], " lgkmcnt(0)"); a("s_barrier")
        if after_first: after_first()
        stamp(a, f"g1{'AB'[X]}a")
        for sg in range(2):
            for q in range(2): rd(sg, q)
        for sg in range(32):
            if sg % 8 == 6 and sg < 30:
                a.wait_vm(T[f"h{X}{sg//8+1}"])
                a("s_barrier")
            if sg in hooks: hooks[sg]()
            for q in range(2):
                n = 2 * sg + q
                a.wait_lg(tk[(sg, q)])
                acc = vr(GA[X] + 16 * q, 16)
                a(f"v_mfma_f32_32x32x16_bf16 {acc}, {ar(4*sg,4)}, {vr(FR[sg%4]+4*q,4)}, {'0' if sg == 0 else acc}")
                if sg + 2 < 32: rd(sg + 2, q)
                cur[0] += 1
                for qq in queues: qq.step(n)
        flush_all(queues)
        cur[0] += 20
        stamp(a, f"g1{'AB'[X]}b")
    def epi_pk(X, obase, late=False):
        sts = []
        for q in range(2):
            stt = 160 + 8 * X + 4 * q
            A = GA[X] + 16 * q
            for hf in range(2):
                ks = range(8 * hf, 8 * hf + 8, 2)
                for k in ks: a(f"v_pk_fma_f32 {vr(A+k,2)}, {vr(A+k,2)}, {vr(stt,2)}, {vr(144+k,2)} op_sel:[0,1,0] op_sel_hi:[1,1,1]")
                for k in ks: a(f"v_pk_fma_f32 {vr(A+k,2)}, {vr(128+k,2)}, {vr(stt,2)}, {vr(A+k,2)} op_sel_hi:[1,0,1]")
                for k in range(8 * hf, 8 * hf + 8): a(f"v_max_f32 v{A+k}, 0, v{A+k}")
                for k in ks: a(f"v_pk_mul_f32 {vr(A+k,2)}, {vr(A+k,2)}, {vr(A+k,2)}")
                o = obase + 8 * q + 4 * hf
                for k in range(4): a(f"v_cvt_pk_bf16_f32 v{o+k}, v{A+8*hf+2*k}, v{A+8*hf+2*k+1}")
                sts.append(f"buffer_store_dwordx4 {vr(o,4)}, v3, s[8:11], s{74+q} offen offset:{1024*hf} sc1")
                if not late: a(sts.pop())
        return sts
    NWA = OPT.get("nwa", 3)
    TD = OPT.get("td", 14)
    NTA = OPT.get("nta", 1)
    qd = FQ(hg(0, 2) + hg(0, 3) + ["s_add_u32 s90, s90, 2048\ns_add_u32 s34, s34, 2048"]
            + sum((w2_dma(i) + [tokv(f"r{i}")] for i in range(NWA)), []), start=0, rate=OPT.get("dr", 100) / 100)
    b1u = []
    for g in range(4):
        for k in range(2):
            b1u += [f"v_lshlrev_b32 v{144+4*g+2*k}, 16, v{160+2*g+k}", f"v_and_b32 v{144+4*g+2*k+1}, 0xffff0000, v{160+2*g+k}"]
    qg = FQ(g2s, start=4, rate=1.0)
    qt = FQ([waitv("b1")] + b1u + sum(([Dep(f"r{i}", TD + 6), waitv(f"r{i}")] + w2_tr(i) + [tokl(f"t{i}")] for i in range(NTA)), []), start=14, rate=2.0)
    qp = FQ([PBL, tokv("pB")] + st_loads(0) + [tokv("sA")], start=OPT.get("pbl", 48))
    g1(0, [qp, qd, qt, qg])
    for sg in range(NCW, 32): a(csum(sg))
    check1("L_pB", "pB", 254, PBL); stamp(a, "okB")
    emit(hg(1, 0))
    check2("L_sA", "sA", 162, 166, st_loads(0))
    stamp(a, "stA")
    a.set_bg(h_dma(1)[:5] + [tokv("h11")] + h_dma(1)[5:], OPT.get("eas", 4))
    epi_pk(0, 196)
    assert not a.bg
    T["HA"] = a.vm
    stamp(a, "epi1A")
    FCA = OPT.get("fca", 18)
    qe = FQ([FCA, waitv("HA"), "s_barrier", flag_store(93), lambda: stamp(a, "flagCA")], start=1)
    NWB = OPT.get("nwb", 6)
    items = hg(1, 2) + hg(1, 3) + [OPT.get("q1b", 14), RESA, tokv("res")]
    for i in range(NWA, NWB):
        if i >= 3: items += [Dep(f"t{i-3}", 3), waitl(f"t{i-3}")]
        items += w2_dma(i) + [tokv(f"r{i}")]
    qd = FQ(items, start=0, rate=OPT.get("dr2", 110) / 100)
    items = []
    for i in range(NTA, min(4, NWB)):
        items += [Dep(f"r{i}", TD), waitv(f"r{i}")] + w2_tr(i) + [tokl(f"t{i}")]
    qt = FQ(items, start=0, rate=2.0)
    qs = FQ(st_loads(1) + [tokv("sB"), PCAL, tokv("pCA")], start=OPT.get("sbl", 50), rate=3)
    g1(1, [qe, qt, qs, qd])
    PR0 = OPT.get("pr0", 0)
    if PR0:
        check1("L_pCA", "pCA", 254, PCA1, mask=0x3fff); stamp(a, "okCA")
        for s in range(PR0): emit(hload(s))
    check2("L_sB", "sB", 170, 174, st_loads(1))
    a(f"s_add_u32 s74, s74, {32*112*1024}\ns_add_u32 s75, s75, {32*112*1024}")
    epi_pk(1, 16)
    T["HB"] = a.vm
    stamp(a, "epi1B")
    if not PR0:
        check1("L_pCA", "pCA", 254, PCA1, mask=0x3fff); stamp(a, "okCA")
    for s in range(PR0, PRA): emit(hload(s))
    a("s_mov_b32 s81, s3")
    a("s_branch L_join")
    vm_j, lg_j = a.vm, a.lg
    Tsave = dict(T)
    a.label("L_sp")
    a.vm, a.lg = vm_sp, lg_sp; a.lg_done = lg_sp
    a(f"""
    v_lshrrev_b32 v9, 2, v1
    v_mul_u32_u24 v9, {RS}, v9
    v_lshl_add_u32 v36, v7, 4, v9
    v_add_u32 v37, {16*RS-1024}, v36
    v_add_u32 v38, {2*(16*RS-1024)}, v36
    v_add_u32 v39, {3*(16*RS-1024)}, v36
    s_lshl_b32 s4, s30, 2
    s_add_u32 s4, s4, s31
    s_sub_u32 s4, s4, 28
    s_lshl_b32 s5, s4, 6
    s_add_u32 s90, s90, s5
    s_add_u32 m0, s89, 32768
    """)
    T.clear(); T.update(Tsp)
    check1("L_pA2", "pA", 254, PAL)
    stamp(a, "spokA")
    emit(dma_seq(8, 36, 8, 90, 16 * RS, flags="sc1"))
    a(f"""
    v_lshl_add_u32 v11, v4, 3, v8
    v_lshlrev_b32 v11, 6, v11
    v_lshl_add_u32 v11, v7, 3, v11
    s_lshl_b32 s5, s80, 5
    v_add_u32 v11, s5, v11
    s_lshl_b32 s91, s4, 9
    s_lshl_b32 s5, s80, 8
    s_add_u32 s91, s91, s5
    s_add_u32 s91, s91, {ST2:#x}
    s_add_u32 s92, s91, 16384
    v_lshlrev_b32 v10, 4, v5
    v_cmp_eq_u32 s[74:75], 1, v7
    v_cmp_eq_u32 s[76:77], 2, v7
    v_cmp_eq_u32 s[78:79], 3, v7
    """)
    def sp_stats(X, base):
        tks = []
        def mf(s2):
            a.wait_lg(tks[s2])
            a(f"v_mfma_f32_16x16x32_bf16 v[24:27], {vr(64+4*s2,4)}, {vr(64+4*s2,4)}, {'0' if s2==0 else 'v[24:27]'}")
            a(f"v_mfma_f32_16x16x32_bf16 v[28:31], v[20:23], {vr(64+4*s2,4)}, {'0' if s2==0 else 'v[28:31]'}")
        for s in range(16):
            a(f"ds_read_b64_tr_b16 {vr(64+4*s,2)}, v11 offset:{base+s*2048}")
            a(f"ds_read_b64_tr_b16 {vr(66+4*s,2)}, v11 offset:{base+s*2048+256}"); tks.append(a.lg)
            if s >= 6: mf(s - 6)
        for s2 in range(10, 16): mf(s2)
        a(f"""
        v_cndmask_b32 v24, v24, v25, s[74:75]
        v_cndmask_b32 v24, v24, v26, s[76:77]
        v_cndmask_b32 v24, v24, v27, s[78:79]
        """)
        row_stats(a, 28, 24, 32, 33, 25)
        a(f"""
        v_mul_f32 v32, -v32, v33
        v_mov_b32 v34, s28
        v_mov_b32 v35, s28
        s_cmp_ge_u32 s3, 2
        s_cbranch_scc1 L_sps{X}
        s_mov_b32 exec_lo, 0x00F0000F
        s_mov_b32 exec_hi, 0xF0000F00
        buffer_store_dwordx4 v[32:35], v10, s[8:11], s{91+X} offen sc1
        s_mov_b64 exec, -1
        L_sps{X}:
        """)
        stamp(a, f"sp{'AB'[X]}")
    a("s_waitcnt vmcnt(8)\ns_barrier")
    flag_store(83)()
    a("s_waitcnt vmcnt(0)\ns_barrier")
    stamp(a, "spldA")
    sp_stats(0, 32768)
    a(PBL); T["pB"] = a.vm
    check1("L_pB2", "pB", 254, PBL)
    stamp(a, "spokB")
    a(f"s_add_u32 s90, s90, {2048 - 128*RS}\ns_mov_b32 m0, s89")
    emit(dma_seq(8, 36, 8, 90, 16 * RS, flags="sc1"))
    emit(w2_dma(0))
    a("s_waitcnt vmcnt(8)\ns_barrier")
    sp_stats(1, 0)
    emit(w2_dma(1) + w2_dma(2))
    a("s_waitcnt vmcnt(16)")
    emit(w2_tr(0))
    a("s_waitcnt lgkmcnt(0)")
    emit(w2_dma(3))
    a("s_waitcnt vmcnt(0)")
    emit(w2_tr(1) + w2_tr(2) + w2_tr(3))
    a("s_waitcnt lgkmcnt(0)")
    for i in range(4, NWB): emit(w2_dma(i))
    g2setup()
    a(RESA)
    a(PCAL); T["pCA"] = a.vm
    check1("L_pCA2", "pCA", 254, PCA1, mask=0x3fff)
    a("s_barrier\ns_mov_b32 s81, 1")
    for s in range(PRA): emit(hload(s))
    if PR0: a(f"s_waitcnt vmcnt({PRA-PR0})")
    T.clear(); T.update(Tsave)
    a.label("L_join")
    a.vm, a.lg = vm_j, lg_j; a.lg_done = 0
    a.wait_vm(T["res"])
    a("v_lshlrev_b32 v251, 16, v251")
    def g2(X, pre, queues):
        a(f"v_permlane32_swap_b32 v{176+4*X}, v{178+4*X}\nv_permlane32_swap_b32 v{177+4*X}, v{179+4*X}")
        for k in range(4):
            r = 176 + 4 * X + k
            a(f"v_lshlrev_b32 v{A2+2*k}, 16, v{r}\nv_and_b32 v{A2+2*k+1}, 0xffff0000, v{r}")
        for k in range(8): a(f"v_add_f32 v{A2+k}, v{A2+k}, v251")
        for k in range(8, 16): a(f"v_mov_b32 v{A2+k}, 0")
        ql = FQ(sum((hload(s) for s in range(pre, 28)), []), 0, OPT.get("hr", 70) / 100)
        for s in range(28):
            b = vr(RING[s % len(RING)], 4)
            while ("H", s) not in T: ql.step(0, True)
            a.wait_vm(T.pop(("H", s)))
            if X == 0 and s % 4 == 0 and s >= 16:
                while f"t{s//4}" not in T:
                    for qq in queues[:2]: qq.step(0, True)
                a.wait_lg(T[f"t{s//4}"])
            for dl in (1, 0):
                acc = vr(A2 + 16 * dl, 16)
                a(f"v_mfma_f32_32x32x16_bf16 {acc}, {b}, {ar(W2A(s)+4*dl,4)}, {'0' if (s == 0 and dl == 1) else acc}")
                n = 2 * s + 1 - dl
                if ql.items and sum(1 for k in T if isinstance(k, tuple)) < len(RING) - 2: ql.step(n)
                cur[0] += 1
                for qq in queues: qq.step(n)
            if s == 0: stamp(a, f"g2{'AB'[X]}a")
        for qq in queues: qq.flush()
        stamp(a, f"g2{'AB'[X]}b")
    def tail(X, mid=None):
        off = 131072 * X
        if X:
            for k in range(4): a(f"v_add_u32 v{12+k}, 0x20000, v{12+k}")
        for pl in (1, 3, 2):
            src = A2 + 16 * (pl & 1) + 8 * (pl >> 1)
            for k in range(2): a(f"ds_write_b128 v{12+pl}, {vr(src+4*k,4)} offset:{1024*k}")
        a("s_waitcnt lgkmcnt(0)\ns_barrier")
        for k in range(2):
            for sl in range(3): a(f"ds_read_b128 {vr(96+8*sl+4*k,4)}, v12 offset:{2048*sl+1024*k}")
        if mid: mid()
        for k in range(2):
            a(f"s_waitcnt lgkmcnt({3-3*k})")
            for j in (0, 2):
                r = 4 * k + j
                a(f"v_pk_add_f32 {vr(96+r,2)}, {vr(96+r,2)}, {vr(104+r,2)}")
                a(f"v_pk_add_f32 {vr(120+r,2)}, {vr(A2+r,2)}, {vr(112+r,2)}")
            for j in (0, 2):
                r = 4 * k + j
                a(f"v_pk_add_f32 {vr(120+r,2)}, {vr(120+r,2)}, {vr(96+r,2)}")
            for j in (0, 2):
                r = 4 * k + j
                a(f"v_cvt_pk_bf16_f32 v{120+r}, v{120+r}, v{121+r}")
            for j in (0, 2):
                r = 4 * k + j
                a(f"buffer_store_short v{120+r}, v248, s[24:27], s{45+k} offen offset:{1024*j}")
                a(f"buffer_store_short_d16_hi v{120+r}, v248, s[24:27], s{45+k} offen offset:{1024*(j+1)}")
    items = []
    for i in range(NWB, 7): items += [waitl(f"t{i-3}")] + w2_dma(i) + [tokv(f"r{i}")]
    qd = FQ(items, start=0, rate=1.5)
    qd.flush(); cur[0] += 8
    NT2 = min(OPT.get("nt2", 3), NWB - 4)
    for i in range(4, 4 + NT2):
        assert i < NWB
        a.wait_vm(T[f"r{i}"]); emit(w2_tr(i)); settok(f"t{i}", a.lg)
    items = []
    for i in range(4 + NT2, 7):
        items += [Dep(f"r{i}", TD), waitv(f"r{i}")] + w2_tr(i) + [tokl(f"t{i}")]
    qt = FQ(items, start=1, rate=2.0)
    pcb = f"s_mov_b64 exec, 0x3fff\n{PCB1}\ns_mov_b64 exec, -1"
    qf = FQ([waitv("HB"), "s_barrier", flag_store(94, creg=81), lambda: stamp(a, "flagCB"), OPT.get("pcb", 50), RESB, pcb, tokv("pCB")], start=OPT.get("fcb", 2 * PR0))
    g2(0, PRA, [qd, qt, qf])
    PRB = OPT.get("prb", 8)
    def mid():
        a(f"s_add_u32 s43, s43, {32*112*1024}\ns_add_u32 s35, s35, {32*112*1024}")
        check1("L_pCB", "pCB", 254, PCB1, mask=0x3fff)
        stamp(a, "okCB")
        for s in range(PRB): emit(hload(s))
    if OPT.get("cbe", 1): tail(0, mid)
    else:
        tail(0); mid()
    stamp(a, "tailA")
    a(f"s_add_u32 s45, s45, {1024*1024}\ns_add_u32 s46, s46, {1024*1024}")
    g2(1, PRB, [])
    tail(1)
    if STAMP:
        a("s_waitcnt vmcnt(0)")
        stamp(a, "end")
        a(f"""
        s_lshl_b32 s4, s2, 10
        s_add_u32 s4, s4, {TSB:#x}
        v_lshlrev_b32 v2, 2, v0
        buffer_store_dword v255, v2, s[8:11], s4 offen
        """)
    a.label("L_exit")
    a("s_endpgm")
    a.label("L_end")

def build(path, stamp_=False, as_list=False, **opt):
    global STAMP
    STAMP = stamp_
    STAMPS.clear()
    OPT.clear(); OPT.update(opt)
    hdr = open(f"cdna_kernels/{NAME}.s.ref").read().split("; Override launch")[0]
    a = Asm()
    mega(a)
    lines = []
    for l in a.lines: lines += l.split("\n")
    lines, size, fx, np_ = align_pass(lines)
    s = hdr
    if as_list: s += f"; @launch kernel={KN} grid=(256,1,1) block=(256,1,1) lds={LDS_BYTES}\n"
    else: s += f"; @launch grid=(256,1,1) block=(256,1,1) lds={LDS_BYTES}\n"
    s += '.amdgcn_target "amdgcn-amd-amdhsa--gfx950"\n.text\n'
    s += "\n".join(lines) + "\n"
    s += f""".section .rodata,"a"
.p2align 6
.amdhsa_kernel {KN}
  .amdhsa_next_free_vgpr 512
  .amdhsa_next_free_sgpr 102
  .amdhsa_accum_offset 256
  .amdhsa_group_segment_fixed_size 0
  .amdhsa_kernarg_size 136
  .amdhsa_user_sgpr_count 2
  .amdhsa_user_sgpr_kernarg_segment_ptr 1
  .amdhsa_system_sgpr_workgroup_id_x 1
.end_amdhsa_kernel
"""
    open(path, "w").write(s)
    print(path, "code bytes", size, "align fixes", fx, np_)
if __name__ == "__main__":
    import json
    if len(sys.argv) > 1:
        for spec in sys.argv[1:]:
            name, _, o = spec.partition(":")
            opt = {k: int(v) for k, v in (kv.split("=") for kv in o.split(",") if kv)}
            build(f"work/{name}.s", False, True, **opt)
            build(f"work/{name}_dbg.s", True, True, **opt)
    else:
        build("mega.s", False)
        build("mega_l.s", False, True)
        build("mega_dbg.s", True, True)
    json.dump(STAMPS, open("stamps.json", "w"))
```

```python
import sys, math
import numpy as np
from asmlib import *
NAME = "sequential_preLN__ssm_conv_s4__dense_activation_squared_relu__prompt"
KN = NAME + "_kernel"
RS = 4352
XT, HT, HF = 0x0, 0x220000, 0x440000
ST, EPOCH, ST2 = 0xB40000, 0xB58000, 0xB60000
FBX = [0xB70000, 0xB78000]
FCX = [0xB80000, 0xB88000]
WS_USED = 0xB90000
TSB = 0xC00000
LOG2E = 1.4426950408889634
LOG2E_HI = float(np.float32(LOG2E)); LOG2E_LO = LOG2E - LOG2E_HI
STAMP = False
SPIN_MAX = 1 << 18
PQ_PITCH = 544
P_BYTES = 22 * PQ_PITCH
PQ_CH = P_BYTES + 32 * PQ_PITCH
KC_STR, KC_CH = 4160, 131072
RA = 32768
HB = 32768
PQ = 32768
TAB, TAB_CH = 25856, 131072
UC, UC_STR, UC_CH = 16640, 4576, 131072
LDS_BYTES = 163840
STAMPS = {}
OPT = dict(predelayB=0)

def srd(a, s, base, nbytes):
    a(f"""
    s_mov_b32 s{s}, s{base}
    s_and_b32 s{s+1}, s{base+1}, 0xffff
    s_mov_b32 s{s+2}, {nbytes:#x}
    s_mov_b32 s{s+3}, 0x20000
    """)
def stamp(a, name):
    if not STAMP: return
    k = STAMPS.setdefault(name, len(STAMPS))
    ld = a.lg_done
    a(f"s_memrealtime s[100:101]\ns_waitcnt lgkmcnt(0)\nv_writelane_b32 v255, s100, {k}")
    a.lg_done = ld
def cmul(a, d, x, y):
    a(f"v_pk_mul_f32 {vr(d,2)}, {vr(x,2)}, {vr(y,2)} op_sel_hi:[0,1]")
    a(f"v_pk_fma_f32 {vr(d,2)}, {vr(x,2)}, {vr(y,2)}, {vr(d,2)} op_sel:[1,1,0] op_sel_hi:[1,0,1] neg_lo:[1,0,0]")
def row_stats(a, vs, vq, vm, vri, t0):
    a(f"""
    v_mul_f32 v{vs}, {fhex(1/512)}, v{vs}
    v_mul_f32 v{vq}, {fhex(1/512)}, v{vq}
    v_fma_f32 v{vq}, -v{vs}, v{vs}, v{vq}
    v_max_f32 v{vq}, 0, v{vq}
    v_cvt_pk_bf16_f32 v{t0}, v{vs}, v{vq}
    v_lshlrev_b32 v{vm}, 16, v{t0}
    v_and_b32 v{t0}, 0xffff0000, v{t0}
    v_add_f32 v{t0}, {fhex(1e-5)}, v{t0}
    v_cvt_pk_bf16_f32 v{t0}, v{t0}, v{t0}
    v_and_b32 v{t0}, 0xffff0000, v{t0}
    v_sqrt_f32 v{t0}, v{t0}
    v_cvt_pk_bf16_f32 v{t0}, v{t0}, v{t0}
    v_and_b32 v{t0}, 0xffff0000, v{t0}
    v_rcp_f32 v{vri}, v{t0}
    """)
def dma_seq(n, v4, srd_, sreg, gstep, mgroup=4096, ggroup=None, flags=""):
    L = []
    j = 0
    while j < n:
        c = min(4, n - j)
        for q in range(c):
            L.append(f"buffer_load_dwordx4 v{v4+q}, s[{srd_}:{srd_+3}], s{sreg} offen offset:{1024*q} {flags} lds")
        L.append(f"s_add_u32 m0, m0, {mgroup if c == 4 else 1024*c}")
        L.append(f"s_add_u32 s{sreg}, s{sreg}, {(ggroup or 4*gstep) if c == 4 else gstep*c}")
        j += c
    return L
def poll(a, label, vaddr, soff, mask=None):
    if mask is not None: a(f"s_mov_b64 exec, {mask:#x}")
    a(f"""
    s_mov_b32 s72, 0
    {label}:
    buffer_load_dword v2, v{vaddr}, s[8:11], s{soff} offen sc1
    s_add_u32 s72, s72, 1
    s_waitcnt vmcnt(0)
    v_cmp_ne_u32 vcc, s28, v2
    s_cmp_gt_u32 s72, {SPIN_MAX}
    s_cbranch_scc1 {label}_x
    s_and_b64 exec, exec, vcc
    s_cbranch_execnz {label}
    {label}_x:
    s_mov_b64 exec, -1
    """)
def poll4(a, label, loads, regs):
    a(f"s_mov_b32 s72, 0\ns_branch {label}_c\n{label}:")
    for x in loads: a(x)
    a(f"""
    {label}_c:
    s_add_u32 s72, s72, 1
    s_waitcnt vmcnt(0)
    v_xor_b32 v2, s28, v{regs[0]}
    v_xor_b32 v{regs[1]}, s28, v{regs[1]}
    v_xor_b32 v{regs[2]}, s28, v{regs[2]}
    v_xor_b32 v{regs[3]}, s28, v{regs[3]}
    v_or3_b32 v2, v2, v{regs[1]}, v{regs[2]}
    v_or_b32 v2, v2, v{regs[3]}
    v_cmp_ne_u32 vcc, 0, v2
    s_cmp_gt_u32 s72, {SPIN_MAX}
    s_cbranch_scc1 {label}_x
    s_cbranch_vccnz {label}
    {label}_x:
    """)

W1V, HV, W2V = 184, 188, 192
W2A = lambda s: 128 + 8 * s if s < 16 else 8 * (s - 16)

def mega(a):
    EMODE = OPT.get("early", 0)
    EARLY = 1 if EMODE else 0
    BUF = [3, 1, 2, 3, 1, 2, 3] if EARLY else [2, 3, 1, 2, 3, 1, 2]
    def w2_tr(i):
        b = BUF[i]
        va = 238 if b == 3 else 236
        return [f"ds_read_b64_tr_b16 {ar(W2A(4*i+s)+4*dl+2*hf,2)}, v{va+dl} offset:{(32768 if b == 2 else 0)+s*2048+hf*1024}"
                for s in range(4) for dl in range(2) for hf in range(2)]
    def adv(r, step, end, total):
        return f"s_add_u32 s{r}, s{r}, {step}\ns_cmp_ge_u32 s{r}, s{end}\ns_cselect_b32 s47, {total}, 0\ns_sub_u32 s{r}, s{r}, s47"
    def w2_dma(i):
        return [f"s_add_u32 m0, s89, {BUF[i]*32768}"] + dma_seq(8, W2V, 20, 95, 8192)[:-2] + [adv(95, 32768, 32, 448*1024)]
    def w1_dma(j):
        return [f"s_add_u32 m0, s89, {(1 + j % 3)*32768}"] + dma_seq(8, W1V, 16, 71, 4 * 3584)[:-2] + [adv(71, 16*3584, 33, 128*3584)]
    def w1_tr(sg):
        b = 1 + (sg >> 3) % 3
        return [f"ds_read_b64_tr_b16 {ar(4*sg+2*hf,2)}, v{244 if b == 3 else 243} offset:{(32768 if b == 2 else 0)+(sg&7)*4096+hf*1024}" for hf in range(2)]
    def h_dma(g):
        return [f"s_add_u32 m0, s70, {[0, 131072, 16384, 147456][g]}"] + dma_seq(4, HV, 8, 90, 8 * RS, flags="sc1")[:4] + [adv(90, 32*RS, 34, 128*RS)]
    def emit(L):
        for x in L:
            if callable(x): x()
            else: a(x)
    T = {}; TS_ = {}; cur = [0]
    class Dep:
        def __init__(self, name, delay=0): self.name = name; self.delay = delay
    class FQ:
        def __init__(self, items, start=0, rate=1.0):
            self.items = list(items); self.start = start; self.rate = rate; self.credit = 0.999
        def step(self, n, force=False):
            if n < self.start and not force: return
            self.credit += self.rate
            while self.items and (self.credit >= 1 or callable(self.items[0])):
                x = self.items[0]
                if isinstance(x, int):
                    if n < x and not force: self.credit = min(self.credit, 1); return
                    self.items.pop(0); continue
                if isinstance(x, Dep):
                    if x.name not in T or (cur[0] < TS_[x.name] + x.delay and not force):
                        self.credit = min(self.credit, 1); return
                    self.items.pop(0); continue
                self.items.pop(0)
                if callable(x): x()
                else:
                    a(x); self.credit -= 1
        def flush(self):
            k = 0
            while self.items:
                self.step(0, True); k += 1
                assert k < 10000
    def flush_all(qs):
        k = 0
        while any(q.items for q in qs):
            for q in qs: q.step(0, True)
            k += 1; assert k < 10000
    def settok(name, v):
        T[name] = v; TS_[name] = cur[0]
    def tokv(name): return lambda: settok(name, a.vm)
    def tokl(name): return lambda: settok(name, a.lg)
    def waitv(name): return lambda: a.wait_vm(T[name])
    def waitl(name): return lambda: a.wait_lg(T[name])
    nfl = [0]
    def flag_store(sreg, extra="", creg=3):
        n = nfl[0]; nfl[0] += 1
        def f():
            vm = a.vm
            a(f"""
            s_cmp_lg_u32 s{creg}, 0
            s_cbranch_scc1 L_nf{n}
            s_mov_b64 exec, 1
            buffer_store_dword v252, v253, s[8:11], s{sreg} offen sc1
            {extra}
            s_mov_b64 exec, -1
            L_nf{n}:
            """)
            a.vm = vm
        return f
    def check1(label, tok, reg, load, mask=None):
        a.wait_vm(T[tok])
        vm = a.vm
        if mask is not None: a(f"s_mov_b64 exec, {mask:#x}")
        a(f"""
        s_mov_b32 s72, 0
        s_branch {label}_c
        {label}:
        {load}
        s_waitcnt vmcnt(0)
        {label}_c:
        s_add_u32 s72, s72, 1
        v_cmp_ne_u32 vcc, s28, v{reg}
        s_cmp_gt_u32 s72, {SPIN_MAX}
        s_cbranch_scc1 {label}_x
        s_and_b64 exec, exec, vcc
        s_cbranch_execnz {label}
        {label}_x:
        s_mov_b64 exec, -1
        """)
        a.vm = vm
    def check2(label, tok, r0, r1, loads):
        a.wait_vm(T[tok])
        vm = a.vm
        a(f"s_mov_b32 s72, 0\ns_branch {label}_c\n{label}:")
        emit(loads)
        a(f"""
        s_waitcnt vmcnt(0)
        {label}_c:
        s_add_u32 s72, s72, 1
        v_xor_b32 v2, s28, v{r0}
        v_xor_b32 v9, s28, v{r1}
        v_or_b32 v2, v2, v9
        v_cmp_ne_u32 vcc, 0, v2
        s_cmp_gt_u32 s72, {SPIN_MAX}
        s_cbranch_scc1 {label}_x
        s_cbranch_vccnz {label}
        {label}_x:
        """)
        a.vm = vm
    a.raw(f".globl {KN}\n.p2align 8\n.type {KN},@function\n{KN}:")
    if STAMP: a("v_mov_b32 v255, 0")
    stamp(a, "start")
    a(f"""
    s_cmp_ge_u32 s2, 256
    s_cbranch_scc1 L_exit
    s_load_dwordx16 s[32:47], s[0:1], 0
    s_load_dwordx2 s[64:65], s[0:1], 128
    s_load_dwordx16 s[48:63], s[0:1], 64
    s_getpc_b64 s[4:5]
    L_pc:
    s_lshr_b32 s31, s2, 3               ; k
    v_xor_b32 v2, s31, v0
    v_and_b32 v2, 3, v2
    v_cmp_eq_u32 vcc, 0, v2
    v_lshlrev_b32 v2, 7, v0
    v_min_u32 v2, L_end-L_pc-4, v2
    s_mov_b64 exec, vcc
    global_load_dword v254, v2, s[4:5]
    s_mov_b64 exec, -1
    v_lshrrev_b32 v2, 6, v0
    v_and_b32 v1, 63, v0
    v_readfirstlane_b32 s3, v2
    v_and_b32 v7, 3, v1                 ; l&3
    v_lshrrev_b32 v9, 2, v1             ; cp
    v_lshlrev_b32 v10, 13, v7
    v_lshl_add_u32 v10, v9, 2, v10
    s_and_b32 s30, s2, 7                ; xcd
    s_lshl_b32 s29, s30, 5
    s_add_u32 s29, s29, s31             ; p
    s_lshr_b32 s73, s29, 2              ; rg
    s_and_b32 s74, s29, 3               ; cq
    s_lshl_b32 s74, s74, 7
    s_lshl_b32 s75, s3, 5
    s_add_u32 s74, s74, s75
    s_lshl_b32 s75, s73, 15
    s_lshl_b32 s76, s74, 1
    s_add_u32 s75, s75, s76
    s_add_u32 s76, s75, 4096
    v_lshrrev_b32 v6, 5, v1             ; hh
    v_and_b32 v11, 31, v1
    v_lshlrev_b32 v11, 4, v11
    v_lshl_add_u32 v11, v6, 10, v11
    s_lshl_b32 s77, s29, 13
    s_lshl_b32 s78, s3, 11
    s_add_u32 s77, s77, s78
    s_lshr_b32 s79, s3, 1               ; ch_local
    s_and_b32 s80, s3, 1
    s_lshl_b32 s81, s29, 1
    s_add_u32 s81, s81, s79             ; d
    s_lshl_b32 s82, s81, 8
    s_lshl_b32 s83, s80, 7
    s_add_u32 s82, s82, s83
    v_lshl_add_u32 v12, v1, 1, s82
    s_lshl_b32 s83, s81, 1
    v_mov_b32 v13, s83
    s_mov_b32 s14, {2048*1024:#x}
    s_mov_b32 s15, 0x20000
    s_mov_b32 s10, {WS_USED if not STAMP else 0x1000000:#x}
    s_mov_b32 s11, 0x20000
    s_mov_b32 s18, {512*3584:#x}
    s_mov_b32 s19, 0x20000
    s_mov_b32 s22, {1792*1024:#x}
    s_mov_b32 s23, 0x20000
    v_lshlrev_b32 v3, 4, v1             ; lane*16
    v_lshrrev_b32 v4, 4, v1             ; l>>4
    v_and_b32 v5, 15, v1                ; l&15
    v_bfe_u32 v8, v1, 2, 2              ; (l>>2)&3
    v_mul_u32_u24 v14, {2*RS}, v9
    v_lshl_add_u32 v14, v7, 4, v14
    s_mul_i32 s85, s74, {RS}
    s_lshl_b32 s86, s73, 6
    s_add_u32 s85, s85, s86
    s_add_u32 s85, s85, {XT:#x}
    s_add_u32 s86, s85, {RS}
    v_mov_b32 v40, 0
    v_mov_b32 v41, 0
    v_mov_b32 v42, 0
    v_mov_b32 v43, 0
    v_lshrrev_b32 v2, 1, v5
    v_lshlrev_b32 v2, 6, v2
    v_lshl_add_u32 v36, v4, 4, v2       ; 64(j>>1)+16h
    v_and_b32 v15, 1, v5
    v_lshl_add_u32 v248, v15, 3, v36
    v_mul_u32_u24 v247, {UC_STR}, v15
    v_mul_u32_u24 v246, {KC_STR}, v7
    v_sub_u32 v27, v4, v8
    v_lshlrev_b32 v27, 4, v27
    v_mul_u32_u24 v201, {PQ_PITCH}, v5
    v_lshl_add_u32 v201, v4, 4, v201
    v_mul_u32_u24 v232, {KC_STR}, v8
    v_lshl_add_u32 v232, v7, 4, v232
    v_lshlrev_b32 v233, 2, v1
    v_add_u32 v247, v247, v36
    v_add_u32 v246, v246, v27
    s_waitcnt lgkmcnt(0)
    s_mov_b32 s12, s32
    s_and_b32 s13, s33, 0xffff
    """)
    GAT = OPT.get("gat", 0)
    if not GAT:
        for e in range(8):
            a(f"buffer_load_dword v{32+e}, v10, s[12:15], s{75 if e < 4 else 76} offen offset:{(e%4)*1024}")
    tokT = a.vm
    a(f"""
    buffer_load_dwordx4 v[16:19], v11, s[12:15], s77 offen
    buffer_load_dwordx4 v[20:23], v11, s[12:15], s77 offen offset:512
    """)
    tokS = a.vm
    a(f"""
    global_load_ushort v24, v13, s[46:47]
    global_load_ushort v25, v12, s[34:35]
    global_load_ushort v26, v12, s[36:37]
    """)
    tokA = a.vm
    a(f"""
    global_load_ushort v28, v12, s[38:39]
    global_load_ushort v29, v12, s[40:41]
    global_load_ushort v30, v12, s[42:43]
    global_load_ushort v31, v12, s[44:45]
    global_load_ushort v251, v13, s[48:49]
    s_add_u32 s4, s64, {EPOCH:#x}
    s_addc_u32 s5, s65, 0
    s_load_dword s6, s[4:5], 0
    """)
    tokBC = a.vm
    gl = []
    def lines(t): return [x.strip() for x in t.split("\n") if x.strip()]
    a(f"""
    s_mov_b32 s8, s64
    s_and_b32 s9, s65, 0xffff
    s_mov_b32 s16, s52
    s_and_b32 s17, s53, 0xffff
    s_mov_b32 s20, s56
    s_and_b32 s21, s57, 0xffff
    s_mov_b32 s73, 0x05040100
    s_mov_b32 s74, 0x07060302
    s_mov_b32 s75, 0x3f803f80
    """)
    blkGa = lines(f"""
    s_min_u32 s40, s31, 27
    s_mul_i32 s41, s40, 37
    s_lshr_b32 s36, s41, 8              ; k/7 = rot1
    s_mul_i32 s41, s36, 7
    s_sub_u32 s41, s40, s41
    s_lshr_b32 s66, s30, 1
    s_lshl_b32 s66, s66, 2
    s_add_u32 s66, s66, s36             ; rb
    s_and_b32 s7, s30, 1
    s_mul_i32 s7, s7, 7
    s_add_u32 s7, s7, s41               ; ft
    v_lshlrev_b32 v36, 2, v4
    v_xor_b32 v36, v5, v36
    v_lshlrev_b32 v36, 4, v36
    v_mul_u32_u24 v{W1V}, 3584, v4
    v_add_u32 v{W1V}, v{W1V}, v36
    v_add_u32 v{W1V+1}, {4*3584-1024}, v{W1V}
    v_add_u32 v{W1V+2}, {2*(4*3584-1024)}, v{W1V}
    v_add_u32 v{W1V+3}, {3*(4*3584-1024)}, v{W1V}
    s_mul_i32 s71, s3, {128*3584}
    s_lshl_b32 s40, s7, 8
    s_add_u32 s71, s71, s40
    s_lshl_b32 s89, s3, 13
    s_add_u32 s33, s71, {128*3584}
    s_mul_i32 s40, s36, {32*3584}
    s_add_u32 s71, s71, s40
    """)
    blkCV = lines(f"""
    s_lshl_b32 s40, s80, 8
    s_sub_u32 s40, 256, s40
    s_add_u32 s41, s76, s40
    v_add_u32 v247, s41, v247
    s_add_u32 s41, s77, 48
    s_add_u32 s41, s41, s40
    v_add_u32 v246, s41, v246
    s_lshl_b32 s82, s80, 10
    s_add_u32 s41, s76, {UC_STR+448}
    s_add_u32 s41, s41, s82
    v_add_u32 v249, s41, v248
    s_add_u32 s41, s77, {TAB}
    s_lshl_b32 s40, s80, 11
    s_add_u32 s42, s40, s41
    v_add_u32 v240, s42, v3
    s_sub_u32 s42, s41, s40
    s_add_u32 s42, s42, 2048
    v_add_u32 v241, s42, v3
    s_lshl_b32 s40, s3, 10
    s_add_u32 s40, s40, {UC}
    v_add_u32 v234, s40, v233
    v_add_u32 v235, {UC_CH}, v234
    """)
    blkGb = lines(f"""
    v_and_b32 v37, 1, v4
    v_lshlrev_b32 v37, 5, v37
    v_lshl_add_u32 v37, v7, 3, v37
    v_lshl_add_u32 v38, v6, 3, v8
    v_lshl_add_u32 v243, v38, 8, v37
    v_xor_b32 v36, s3, v8
    v_lshl_add_u32 v243, v36, 6, v243
    v_add_u32 v244, 98304, v243
    v_add_u32 v243, 32768, v243
    """)
    blkGc = lines(f"""
    v_lshl_add_u32 v242, v38, 7, v37
    v_lshrrev_b32 v36, 1, v8
    v_lshl_add_u32 v242, v36, 6, v242
    v_lshrrev_b32 v36, 3, v1
    v_mul_u32_u24 v{HV}, {RS}, v36
    v_lshlrev_b32 v36, 2, v4
    v_xor_b32 v36, v1, v36
    v_and_b32 v36, 7, v36
    v_lshl_add_u32 v{HV}, v36, 4, v{HV}
    v_add_u32 v{HV+1}, {8*RS-1024}, v{HV}
    v_add_u32 v{HV+2}, {2*(8*RS-1024)}, v{HV}
    v_add_u32 v{HV+3}, {3*(8*RS-1024)}, v{HV}
    v_lshl_add_u32 v245, v6, 2, v8
    v_lshl_add_u32 v245, v245, 6, v37
    s_lshl_b32 s70, s3, 12
    s_lshl_b32 s67, s7, 2
    s_add_u32 s67, s67, s3
    """)
    blkGd = lines(f"""
    s_mov_b32 s24, s60
    s_and_b32 s25, s61, 0xffff
    s_mov_b32 s26, {2048*1024:#x}
    s_mov_b32 s27, 0x20000
    s_lshr_b32 s87, s30, 1
    s_lshl_b32 s87, s87, 3
    s_lshr_b32 s37, s31, 2
    s_add_u32 s87, s87, s37
    s_and_b32 s84, s30, 1
    s_lshl_b32 s84, s84, 2
    s_and_b32 s40, s31, 3
    s_add_u32 s84, s84, s40
    s_lshl_b32 s69, s84, 1
    s_add_u32 s69, s69, s80
    v_bfe_u32 v24, v1, 2, 3
    v_lshlrev_b32 v{W2V}, 10, v24
    v_lshl_add_u32 v{W2V}, v6, 6, v{W2V}
    v_lshl_add_u32 v{W2V}, v7, 4, v{W2V}
    v_add_u32 v{W2V+1}, {8192-1024}, v{W2V}
    v_add_u32 v{W2V+2}, {2*(8192-1024)}, v{W2V}
    v_add_u32 v{W2V+3}, {3*(8192-1024)}, v{W2V}
    s_mul_i32 s95, s3, {448*1024}
    s_lshl_b32 s40, s84, 7
    s_add_u32 s95, s95, s40
    """) + ["s_cmp_eq_u32 s37, 7\ns_cselect_b32 s37, 0, s37"] + lines(f"""
    s_add_u32 s32, s95, {448*1024}
    s_lshl_b32 s40, s37, 16
    s_add_u32 s95, s95, s40
    s_lshl_b32 s40, s80, 9
    s_add_u32 s40, s40, s89
    s_add_u32 s40, s40, 32768
    v_add_u32 v236, s40, v245
    v_xor_b32 v237, 512, v236
    v_add_u32 v238, 0x10000, v236
    v_add_u32 v239, 0x10000, v237
    """)
    a(f"""
    s_mul_i32 s76, s79, {UC_CH}
    s_add_u32 s76, s76, {UC}            ; UC(ch)
    s_mul_i32 s77, s79, {KC_CH}
    s_mul_i32 s78, s80, {UC_STR}
    s_add_u32 s78, s78, s76
    v_add_u32 v2, s78, v3
    s_mul_i32 s78, s79, {TAB_CH}
    s_add_u32 s78, s78, {TAB}
    s_sub_u32 s4, s78, {29*16}
    v_add_u32 v15, s4, v3
    v_cmp_lt_u32 vcc, 28, v1
    v_cndmask_b32 v2, v2, v15, vcc
    ds_write_b128 v2, v[40:43]
    s_sub_u32 s78, s78, {4*0x3EC0}
    s_mul_i32 s4, s79, {PQ_CH}
    s_add_u32 s4, s4, {PQ}
    s_lshl_b32 s88, s80, 8
    s_add_u32 s88, s88, s4
    s_mul_i32 s5, s80, {16*PQ_PITCH}
    s_add_u32 s5, s5, s4
    s_add_u32 s5, s5, {P_BYTES}
    v_add_u32 v202, s5, v201
    v_add_u32 v201, s4, v201
    s_lshl_b32 s5, s80, 11
    s_add_u32 s5, s5, s77
    v_lshl_add_u32 v231, v1, 5, s5
    s_add_u32 s5, s77, 4096
    v_add_u32 v232, s5, v232
    ds_write_b128 v232, v[40:43]
    s_lshl_b32 s5, s80, 7
    v_lshl_add_u32 v15, v5, 3, s5       ; 8*(16jb+j)
    """)
    a("v_cvt_f32_u32 v15, v15")
    for ib, tbl in enumerate([[(0, 1), (4, 1), (256, 2), (512, 256)], [(1536, 256), (516, 256), (1028, 256), (1028, 256)]]):
        a(f"v_mov_b32 v52, {fhex(tbl[3][0])}\nv_mov_b32 v53, {fhex(tbl[3][1])}")
        for h in range(3):
            if tbl[h] == tbl[3]: continue
            a(f"v_cmp_ne_u32 vcc, {h}, v4")
            a(f"v_mov_b32 v2, {fhex(tbl[h][0])}")
            a(f"v_cndmask_b32 v52, v2, v52, vcc")
            if tbl[h][1] != tbl[3][1]: a(f"v_cndmask_b32 v53, {float(tbl[h][1])}, v53, vcc")
        a("v_add_f32 v52, v52, v15")
        for r in range(4):
            if ib == 0 and r == 0:
                a(f"v_max_f32 v2, {fhex(0.75)}, v52\nv_lshrrev_b32 v2, 14, v2")
            else:
                a("v_lshrrev_b32 v2, 14, v52")
            a(f"v_add_u32 v{204+4*ib+r}, s78, v2")
            if r < 3: a("v_add_f32 v52, v52, v53")
    def gather_addrs():
        a(f"""
        s_lshl_b32 s5, s80, 10
        s_sub_u32 s5, 2047, s5
        v_sub_u32 v52, s5, v3
        v_cvt_f32_i32 v52, v52
        v_add_f32 v53, -1.0, v52
        v_mov_b32 v15, {fhex(0.75)}
        """)
        for e in range(0, 20, 2):
            if e >= 14:
                a(f"""
                v_fmamk_f32 v54, v52, {fhex(0.125)}, v15
                v_fmamk_f32 v55, v53, {fhex(0.125)}, v15
                v_max_f32 v54, v54, v52
                v_max_f32 v55, v55, v53
                v_cvt_pk_bf16_f32 v2, v54, v55
                """)
            else:
                a("v_cvt_pk_bf16_f32 v2, v52, v53")
            if e < 18: a("v_pk_add_f32 v[52:53], v[52:53], -2.0 op_sel_hi:[1,0]")
            a(f"v_mad_u32_u16 v{212+e}, v2, 4, s78")
            if e + 1 <= 18: a(f"v_mad_u32_u16 v{213+e}, v2, 4, s78 op_sel:[1,0,0,0]")
    if not OPT.get("gal", 0): gather_addrs()
    if not OPT.get("cvl", 1): emit(blkCV)
    a.flush_bg()
    if not GAT:
        a.wait_vm(tokT)
        stamp(a, "T")
        for k in range(4):
            a(f"v_perm_b32 v{44+k}, v{32+2*k+1}, v{32+2*k}, s73")
        a(f"buffer_store_dwordx4 v[44:47], v14, s[8:11], s85 offen sc1")
        for k in range(4):
            a(f"v_perm_b32 v{48+k}, v{32+2*k+1}, v{32+2*k}, s74")
        a(f"buffer_store_dwordx4 v[48:51], v14, s[8:11], s86 offen sc1")
    tokXT = a.vm
    def touches():
        a(f"""
        s_lshl_b32 s5, s2, 2
        s_add_u32 s5, s5, s3
        s_mul_i32 s5, s5, {14*128}
        v_lshlrev_b32 v2, 7, v1
        s_mov_b64 exec, 0x3fff
        buffer_load_dword v254, v2, s[20:23], s5 offen
        buffer_load_dword v253, v2, s[16:19], s5 offen
        """)
        TC = OPT.get("tc", 0)
        if TC:
            a(f"""
            s_lshl_b32 s5, s31, 2
            s_add_u32 s5, s5, s3
            s_mul_i32 s5, s5, {14*1024}
            s_and_b32 s4, s30, 1
            s_lshl_b32 s4, s4, 9
            s_add_u32 s5, s5, s4
            """)
            if TC == 1:
                a("v_lshlrev_b32 v2, 10, v1\nbuffer_load_dword v252, v2, s[20:23], s5 offen offset:384")
            else:
                a("s_mov_b64 exec, -1\nv_lshlrev_b32 v2, 10, v9\nv_lshl_add_u32 v2, v7, 7, v2\ns_mov_b32 exec_hi, 0xffffff\nbuffer_load_dword v252, v2, s[20:23], s5 offen")
        a("s_mov_b64 exec, -1")
    if not GAT: touches()
    a("v_mov_b32 v52, 0\nv_mov_b32 v53, 0\nv_mov_b32 v54, 0\nv_mov_b32 v55, 0")
    a.wait_vm(tokS)
    for j in range(8):
        a(f"v_dot2_f32_bf16 v{52+(j&1)}, v{16+j}, s75, v{52+(j&1)}")
        a(f"v_dot2_f32_bf16 v{54+(j&1)}, v{16+j}, v{16+j}, v{54+(j&1)}")
    a("v_add_f32 v52, v52, v53\nv_add_f32 v54, v54, v55")
    for sh in (8, 4, 2, 1):
        a(f"v_add_f32_dpp v52, v52, v52 row_ror:{sh} row_mask:0xf bank_mask:0xf")
        a(f"v_add_f32_dpp v54, v54, v54 row_ror:{sh} row_mask:0xf bank_mask:0xf")
    a(f"""
    v_mov_b32 v53, v52
    v_mov_b32 v55, v54
    s_lshl_b32 s91, s29, 6
    s_lshl_b32 s5, s3, 4
    s_add_u32 s91, s91, s5
    s_add_u32 s91, s91, {ST:#x}
    v_permlane16_swap_b32 v52, v53
    v_permlane16_swap_b32 v54, v55
    v_add_f32 v52, v52, v53
    v_add_f32 v54, v54, v55
    """)
    row_stats(a, 52, 54, 56, 45, 53)
    a(f"""
    s_waitcnt lgkmcnt(0)
    s_add_u32 s28, s6, 1
    s_mul_i32 s28, s28, 0x9E3779B1      ; tag
    v_readlane_b32 s92, v56, 32
    v_readlane_b32 s93, v45, 32
    v_lshrrev_b32 v44, 16, v56
    v_mov_b32 v47, s28
    v_or_b32 v44, s92, v44
    v_mov_b32 v46, s93
    s_mov_b32 s4, {fhex(LOG2E_HI)}
    """)
    if GAT:
        a("s_mov_b64 exec, 1\nbuffer_store_dwordx4 v[44:47], v3, s[8:11], s91 offen sc1\ns_mov_b64 exec, -1")
        stamp(a, "pub")
        touches()
    a.wait_vm(tokA)
    stamp(a, "A")
    a(f"""
    v_lshlrev_b32 v24, 16, v24
    v_lshlrev_b32 v25, 16, v25
    v_lshlrev_b32 v26, 16, v26
    v_mul_f32 v16, s4, v24
    v_fma_f32 v17, v24, s4, -v16
    v_fmac_f32 v17, {fhex(LOG2E_LO)}, v24
    v_exp_f32 v16, v16
    v_mul_f32 v17, {fhex(math.log(2))}, v17
    v_fma_f32 v16, v16, v17, v16
    v_cvt_pk_bf16_f32 v16, v16, v16
    v_and_b32 v16, 0xffff0000, v16      ; dt
    v_mul_f32 v25, v16, v25
    v_mul_f32 v26, v16, v26
    v_mul_f32 v25, s4, v25              ; a2
    v_mul_f32 v26, 0.15915494, v26      ; b2
    """)
    def edirect(d, l):
        a(f"""
        v_mul_f32 v18, {fhex(float(l))}, v25
        v_mul_f32 v19, {fhex(float(l))}, v26
        v_exp_f32 v18, v18
        v_fract_f32 v19, v19
        v_cos_f32 v{d}, v19
        v_sin_f32 v{d+1}, v19
        v_pk_mul_f32 {vr(d,2)}, {vr(d,2)}, v[18:19] op_sel_hi:[1,0]
        """)
    cnt = [0]; pend = []
    def flush_put():
        for x in pend: a(x)
        pend.clear()
    def put(src, row, isP):
        t = 20 + cnt[0] % 4; cnt[0] += 1
        a(f"v_cvt_pk_bf16_f32 v{t}, v{src}, {'-' if isP else ''}v{src+1}")
        pend.append(f"ds_write_addtid_b32 v{t} offset:{row*PQ_PITCH + (0 if isP else P_BYTES)}")
        if len(pend) >= 2: flush_put()
    TMP = [56, 58, 60, 62]
    Q = {j: 64 + 2 * j for j in range(1, 17)}
    npub = [0]
    def publish(final=False):
        n = npub[0]; npub[0] += 1
        if GAT:
            if gl: flush_put(); a(gl.pop(0))
            while final and gl: a(gl.pop(0))
            return
        flush_put()
        if final:
            a(f"s_cmp_eq_u32 s94, 0\ns_cbranch_scc1 L_np{n}\ns_waitcnt vmcnt({NY})")
        else:
            if n == 0: a("s_waitcnt vmcnt(15)")
            a(f"s_getreg_b32 s93, hwreg(HW_REG_IB_STS, 0, 4)\ns_cmp_lt_u32 s93, s94\ns_cbranch_scc0 L_np{n}")
        a(f"""
        s_mov_b64 exec, 1
        buffer_store_dwordx4 v[44:47], v3, s[8:11], s91 offen sc1
        s_mov_b64 exec, -1
        s_mov_b32 s94, 0
        """)
        stamp(a, "pub")
        a(f"L_np{n}:")
    edirect(Q[1], 8)
    a.flush_bg()
    NY = a.vm - tokXT
    a(f"s_mov_b32 m0, s88\ns_mov_b32 s94, {NY+1}")
    a(f"v_mov_b32 v17, 0x00003f80\nds_write_addtid_b32 v17 offset:{P_BYTES}")
    prev = 1
    PUBAT = {0: (12, 18, 24, 30), 1: (16, 26), 2: (20,), 3: (3, 22)}[OPT.get("pubs", 3 if GAT else 1)]
    for j in range(2, 17):
        hb = 1 << (j.bit_length() - 1)
        x, y = (j // 2, j // 2) if j == hb else (hb, j - hb)
        cmul(a, Q[j], Q[x], Q[y]); put(Q[prev], prev, 0); prev = j
        if j in PUBAT: publish()
    pr, prow = Q[16], 16
    for j in range(17, 32):
        t = TMP[j % 4]
        cmul(a, t, Q[16], Q[j - 16]); put(pr, prow, 0); pr, prow = t, j
        if j in PUBAT: publish()
    put(pr, prow, 0)
    E1, E256, E1024, E2, E4, E512 = 64, 66, 68, 70, 72, 74
    P = {k: 76 + 2 * k for k in range(8)}
    R = {256: 92, 260: 94, 512: 96, 768: 98, 1024: 100}
    edirect(E1, 1); edirect(E256, 256); edirect(E1024, 1024)
    publish()
    if GAT: a.wait_vm(tokBC)
    else: a(f"s_waitcnt vmcnt({2 + NY + (8 if EMODE == 1 else 0)})")
    a(f"""
    v_lshlrev_b32 v28, 16, v28
    v_lshlrev_b32 v29, 16, v29
    v_lshlrev_b32 v30, 16, v30
    v_lshlrev_b32 v31, 16, v31
    v_mul_f32 v28, v16, v28
    v_mul_f32 v29, v16, v29
    """)
    cmul(a, E2, E1, E1); cmul(a, P[0], 30, 28); cmul(a, E512, E256, E256); cmul(a, E4, E2, E2)
    seq = [(P[1], P[0], E1, 1), (P[2], P[0], E2, 2), (P[3], P[1], E2, 3), (P[4], P[0], E4, 4), (P[5], P[1], E4, 5), (P[6], P[2], E4, 6),
           (P[7], P[3], E4, 7), (R[256], P[0], E256, 8), (TMP[0], P[2], E256, 9), (R[260], P[4], E256, 10), (TMP[1], P[6], E256, 11),
           (R[512], P[0], E512, 12), (R[768], R[256], E512, 13), (R[1024], P[0], E1024, 14), (TMP[2], R[256], E1024, 15),
           (TMP[3], R[512], E1024, 16), (TMP[0], R[768], E1024, 17), (TMP[1], R[1024], E1024, 18), (TMP[2], P[4], E512, 20), (TMP[3], R[260], E512, 21)]
    pr, prow = P[0], 0
    for d, x, y, row in seq:
        cmul(a, d, x, y); put(pr, prow, 1); pr, prow = d, row
        if row in ((6, 13) if OPT.get("pubs", 1) == 0 else (9,)): publish()
    put(pr, prow, 1); flush_put()
    publish(True)
    a("s_waitcnt lgkmcnt(0)\ns_barrier")
    stamp(a, "pq")
    if EMODE == 3: a.set_bg(w2_dma(0), OPT.get("esp", 3))
    toks = []
    def krd(s):
        a(f"ds_read_b128 {vr(64+12*s,4)}, v202 offset:{64*s}")
        a(f"ds_read_b128 {vr(68+12*s,4)}, v201 offset:{64*s}"); t1 = a.lg
        a(f"ds_read_b128 {vr(72+12*s,4)}, v201 offset:{64*s+16*PQ_PITCH}"); toks.append((t1, a.lg))
    for s in range(5): krd(s)
    if OPT.get("gal", 0): gather_addrs()
    for s in range(8):
        a.wait_lg(toks[s][0])
        a(f"v_mfma_f32_16x16x32_bf16 v[16:19], {vr(68+12*s,4)}, {vr(64+12*s,4)}, {'0' if s==0 else 'v[16:19]'}")
        a.wait_lg(toks[s][1])
        a(f"v_mfma_f32_16x16x32_bf16 v[20:23], {vr(72+12*s,4)}, {vr(64+12*s,4)}, {'0' if s==0 else 'v[20:23]'}")
        if s + 5 < 8: krd(s + 5)
    a(f"""
    s_lshl_b32 s4, s3, 12
    s_add_u32 s4, s4, {ST:#x}
    v_cvt_pk_bf16_f32 v16, v16, v17
    v_cvt_pk_bf16_f32 v18, v18, v19
    v_cvt_pk_bf16_f32 v20, v20, v21
    v_cvt_pk_bf16_f32 v22, v22, v23
    """)
    for q in range(2):
        b = 16 + 4 * q
        a(f"""
        ds_write_b16 v{204+4*q}, v{b}
        ds_write_b16_d16_hi v{205+4*q}, v{b}
        ds_write_b16 v{206+4*q}, v{b+2}
        ds_write_b16_d16_hi v{207+4*q}, v{b+2}
        """)
    a.flush_bg()
    a("s_waitcnt lgkmcnt(0)\ns_barrier")
    stamp(a, "tab")
    pa_loads = [f"buffer_load_dwordx4 {vr(160+4*i,4)}, v3, s[8:11], s4 offen offset:{1024*i} sc1" for i in range(4)]
    for e in range(19):
        a(f"ds_read_u16 v{64+e}, v{212+e}")
    tg = a.lg
    for x in pa_loads: a(x)
    if OPT.get("cvl", 1): emit(blkCV)
    a.wait_lg(tg)
    def expand(c):
        st = 3 - c
        o = 96 + 8 * c
        for k in range(8):
            a(f"v_lshl_or_b32 v{o+k}, v{64+st+2*k+1}, 16, v{64+st+2*k}")
        a(f"ds_write_b128 v231, {vr(o,4)} offset:{c*KC_STR}")
        a(f"ds_write_b128 v231, {vr(o+4,4)} offset:{c*KC_STR+16}")
    NEXP = OPT.get("nexp", 4 if GAT else 2)
    for c in range(NEXP): expand(c)
    stamp(a, "kdone")
    poll4(a, "L_pa", pa_loads, [163, 167, 171, 175])
    if not GAT:
        a(f"""
        s_mul_i32 s4, s29, {2*RS}
        s_lshl_b32 s5, s3, 10
        s_add_u32 s4, s4, s5
        s_add_u32 s4, s4, {XT:#x}
        s_add_u32 s5, s4, {RS}
        """)
        stamp(a, "syncA")
        for i in range(4):
            a(f"buffer_load_dword v{176+2*i}, v233, s[8:11], s4 offen offset:{256*i} sc1")
            a(f"buffer_load_dword v{177+2*i}, v233, s[8:11], s5 offen offset:{256*i} sc1")
    else: stamp(a, 'syncA')
    tokX = a.vm
    for c in range(NEXP, 4): expand(c)
    a(f"""
    v_mov_b32 v20, 0x3f803f80
    v_mov_b32 v21, 0x3f803f80
    v_mov_b32 v22, 0x3f803f80
    v_mov_b32 v23, 0x3f803f80
    s_mul_i32 s76, s81, {RS}
    s_add_u32 s76, s76, s82
    s_add_u32 s77, s76, {HT:#x}
    v_lshlrev_b32 v251, 16, v251
    v_mov_b32 v252, s28
    v_mov_b32 v253, 0
    v_lshlrev_b32 v250, {OPT.get("fs", 4)}, v0
    s_lshl_b32 s82, s29, {OPT.get("fs", 4)}
    s_add_u32 s83, s82, {FBX[1]:#x}
    s_add_u32 s82, s82, {FBX[0]:#x}
    s_mov_b32 s85, {FBX[0]:#x}
    s_mov_b32 s86, {FBX[1]:#x}
    s_mul_i32 s90, s3, {128*RS}
    s_add_u32 s90, s90, {HT:#x}
    """)
    emit(blkGa)
    if OPT.get("j0x", 0):
        emit(w1_dma(0)); settok("j0", a.vm)
    for i in range(4):
        g = 160 + 4 * i
        a(f"v_and_b32 v{129+2*i}, 0xffff0000, v{g}")
        a(f"v_lshlrev_b32 v{128+2*i}, 16, v{g}")
        a(f"v_mov_b32 v{136+2*i}, v{g+1}")
        a(f"v_mov_b32 v{137+2*i}, v{g+2}")
    for i in range(4):
        if GAT:
            e, o, t = 176 + 2 * i, 177 + 2 * i, 144 + 4 * i
            a(f"""
            v_lshlrev_b32 v{t}, 16, v{e}
            v_lshlrev_b32 v{t+1}, 16, v{o}
            v_and_b32 v{t+2}, 0xffff0000, v{e}
            v_and_b32 v{t+3}, 0xffff0000, v{o}
            v_perm_b32 v{64+2*i}, v{o}, v{e}, s73
            v_perm_b32 v{65+2*i}, v{o}, v{e}, s74
            """)
        else: a.wait_vm(tokX - 6 + 2 * i)
        for c in range(2):
            x, t = 176 + 2 * i + c, 144 + 4 * i + 2 * c
            if not GAT: a(f"v_lshlrev_b32 v{t}, 16, v{x}\nv_and_b32 v{t+1}, 0xffff0000, v{x}")
            a(f"""
            v_pk_add_f32 {vr(t,2)}, {vr(t,2)}, {vr(128+2*i,2)} neg_lo:[0,1] neg_hi:[0,1]
            v_cvt_pk_bf16_f32 v{x}, v{t}, v{t+1}
            v_lshlrev_b32 v{t}, 16, v{x}
            v_and_b32 v{t+1}, 0xffff0000, v{x}
            v_pk_mul_f32 {vr(t,2)}, {vr(t,2)}, {vr(136+2*i,2)}
            v_cvt_pk_bf16_f32 v{x}, v{t}, v{t+1}
            """)
        for c in range(2):
            x = 176 + 2 * i + c
            a(f"""
            ds_write_b32 v{234+c}, v{x} offset:{256*i+456}
            ds_write_b32 v{234+c}, v{x} offset:{256*i+UC_STR+448}
            """)
            if GAT: a(f"ds_write_b32 v14, v{64+2*i+c} offset:{4096*c+256*i}")
    a("s_waitcnt lgkmcnt(0)\ns_barrier")
    stamp(a, "conv0")
    a(f"""
    ds_read_b64 v[28:29], v249
    ds_read_b64 v[30:31], v249 offset:512
    ds_read_b64 v[32:33], v249 offset:2048
    ds_read_b64 v[34:35], v249 offset:2560
    """)
    if GAT:
        a(f"""
        s_lshl_b32 s4, s79, 12
        s_lshl_b32 s5, s80, 10
        s_add_u32 s4, s4, s5
        s_add_u32 s4, s4, 98304
        v_add_u32 v2, s4, v248
        ds_read_b64 v[12:13], v2
        ds_read_b64 v[14:15], v2 offset:512
        ds_read_b64 v[16:17], v2 offset:2048
        ds_read_b64 v[18:19], v2 offset:2560
        """)
    else:
        a(f"""
        buffer_load_dwordx2 v[12:13], v248, s[8:11], s76 offen sc1
        buffer_load_dwordx2 v[14:15], v248, s[8:11], s76 offen offset:512 sc1
        buffer_load_dwordx2 v[16:17], v248, s[8:11], s76 offen offset:2048 sc1
        buffer_load_dwordx2 v[18:19], v248, s[8:11], s76 offen offset:2560 sc1
        """)
    T["XE"] = a.vm
    CA, CB = 40, 56
    ZR, XR = 160, 200
    SND, KP, RC = 216, 224, 176
    ops = []
    for X in range(2):
        for r in range(4):
            if X == 0: prs = sorted([(b, aa) for b in range(4) for aa in range(b + 1)], key=lambda p: (max(p[1], p[0] - p[1]), p[0]))
            else: prs = [(aa + c, aa) for aa in range(8) for c in range(7 - aa, max(3 - aa, -1), -1)]
            for b, aa in prs: ops.append((b, ("A", aa, r, X), ("B", b - aa, r, X)))
    order, last = [], {}
    for n, (b, A, B) in enumerate(ops):
        for f in (A, B):
            if f not in last: order.append(f)
            last[f] = n
    pos = {f: i for i, f in enumerate(order)}
    free = list(range(72, 160, 4))
    reg, tok = {}, {}
    st = {"issued": 0}
    def issue():
        f = order[st["issued"]]; reg[f] = free.pop(0)
        k, idx, r, X = f
        off = (7 - idx) * 512 + (3 - r) * 64 if k == "A" else idx * 512 + (3 - r) * 64
        a(f"ds_read_b128 {vr(reg[f],4)}, v{246 if k == 'A' else 247} offset:{off}")
        tok[f] = a.lg; st["issued"] += 1
    def zpre(ks):
        L = []
        for k in ks:
            u, z = 28 + k, ZR + 2 * k
            L += [f"v_lshlrev_b32 v{z}, 16, v{u}", f"v_and_b32 v{z+1}, 0xffff0000, v{u}", f"v_mul_f32 v{z}, v{z}, v251", f"v_mul_f32 v{z+1}, v{z+1}, v251",
                  f"v_cvt_pk_bf16_f32 v{z}, v{z}, v{z+1}", f"v_and_b32 v{z+1}, 0xffff0000, v{z}", f"v_lshlrev_b32 v{z}, 16, v{z}"]
        return L
    def xpre(ks):
        return sum(([f"v_lshlrev_b32 v{XR+2*k}, 16, v{12+k}", f"v_and_b32 v{XR+2*k+1}, 0xffff0000, v{12+k}"] for k in ks), [])
    def xch_send(C, X):
        a(f"""
        s_cmp_eq_u32 s80, 1
        s_cbranch_scc1 L_x{X}1
        s_nop 7
        ds_write_b128 v240, {vr(C+8,4)}
        ds_write_b128 v240, {vr(C+12,4)} offset:1024
        s_branch L_x{X}2
        L_x{X}1:
        s_nop 7
        """)
        a.lg -= 2
        a(f"""
        ds_write_b128 v240, {vr(C,4)}
        ds_write_b128 v240, {vr(C+4,4)} offset:1024
        """)
        for k in range(8): a(f"v_mov_b32 v{C+k}, v{C+8+k}")
        a(f"L_x{X}2:")
        T["exw"] = a.lg
    def xch_recv():
        a(f"ds_read_b128 {vr(RC,4)}, v241\nds_read_b128 {vr(RC+4,4)}, v241 offset:1024")
        T["exr"] = a.lg
    def cepi(C, X, hold=False):
        a.wait_lg(T["exr"])
        for grp in (lambda k, y: f"v_pk_add_f32 {vr(y,2)}, {vr(y,2)}, {vr(RC+2*k,2)}",
                    lambda k, y: f"v_cvt_pk_bf16_f32 v{y}, v{y}, v{y+1}",
                    lambda k, y: f"v_and_b32 v{y+1}, 0xffff0000, v{y}\nv_lshlrev_b32 v{y}, 16, v{y}",
                    lambda k, y: f"v_pk_add_f32 {vr(y,2)}, {vr(y,2)}, {vr(ZR+8*X+2*k,2)}",
                    lambda k, y: f"v_cvt_pk_bf16_f32 v{y}, v{y}, v{y+1}",
                    lambda k, y: f"v_and_b32 v{y+1}, 0xffff0000, v{y}\nv_lshlrev_b32 v{y}, 16, v{y}",
                    lambda k, y: f"v_pk_add_f32 {vr(y,2)}, {vr(y,2)}, {vr(XR+8*X+2*k,2)}",
                    lambda k, y: f"v_cvt_pk_bf16_f32 v{SND+4*X+k}, v{y}, v{y+1}"):
            for k in range(4): a(grp(k, C + 2 * k))
        sts = [f"buffer_store_dwordx2 {vr(SND+4*X,2)}, v248, s[8:11], s77 offen offset:{2048*X} sc1",
               f"buffer_store_dwordx2 {vr(SND+4*X+2,2)}, v248, s[8:11], s77 offen offset:{2048*X+512} sc1"]
        if hold: return sts
        emit(sts)
    FA = OPT.get("fa", 88)
    epiA = [41, lambda: xch_send(CA, 0), waitv("XE")] + xpre(range(4)) + [47, waitl("exw"), "s_barrier", xch_recv, 53, lambda: cepi(CA, 0), tokv("hA")]
    epiA += blkGb + [OPT.get("bj0", 62), waitv("j0"), "s_barrier"] + sum((w1_tr(sg) for sg in range(8)), []) + [tokl("tj0")]
    epiA += [FA, waitv("hA"), waitl("tj0"), "s_barrier", tokl("FA"), flag_store(82), lambda: stamp(a, "flagA")] + xpre(range(4, 8)) + zpre(range(4, 8)) + blkGc
    if OPT.get("ada", 0):
        epiA += [f"s_cmp_ge_u32 s31, 28\ns_cselect_b32 s40, 0, s66\ns_cselect_b32 s41, 0, s36", "s_lshl_b32 s40, s40, 7", "s_add_u32 s90, s90, s40", f"s_add_u32 s34, s90, {128*RS}",
                 f"s_mul_i32 s41, s41, {32*RS}", "s_add_u32 s90, s90, s41",
                 OPT.get("pa0", 134), "buffer_load_dword v254, v250, s[8:11], s85 offen sc1", tokv("pA0")]
    PAL = "buffer_load_dword v254, v250, s[8:11], s85 offen sc1"
    q0 = FQ((w2_tr(0) + [tokl("t0")]) if EARLY else [], start=OPT.get("t0s", 8), rate=OPT.get("t0r", 6) / 10)
    qv = FQ(zpre(range(4)) + epiA, start=6, rate=OPT.get("cvr", 10) / 10)
    if OPT.get("j0x", 0):
        qd = FQ(w1_dma(1) + [OPT.get("res", 70)] + w1_dma(2) + [Dep("FA")] + w1_dma(3) + [tokv("RA")], start=OPT.get("cds", 10), rate=OPT.get("cdr", 42) / 100)
    elif OPT.get("pause", 1):
        J1 = OPT.get("j1", 3)
        def fast(): qd.rate = OPT.get("cdr2", 55) / 100
        qd = FQ(w1_dma(0) + [tokv("j0")] + w1_dma(1)[:J1] + [OPT.get("res", 66), fast] + w1_dma(1)[J1:] + ([waitl("t0")] if EARLY else []) + w1_dma(2) + [Dep("FA")] + w1_dma(3) + [tokv("RA")], start=1, rate=OPT.get("cdr", 35) / 100)
    else:
        qd = FQ(w1_dma(0) + [tokv("j0")] + w1_dma(1) + w1_dma(2) + [Dep("FA")] + w1_dma(3) + [tokv("RA")], start=2, rate=OPT.get("cdr", 38) / 100)
    first = set()
    while st["issued"] < 10: issue()
    for n, (b, A, B) in enumerate(ops):
        needi = max(pos[A], pos[B])
        while st["issued"] <= needi: issue()
        need_tok = tok[order[needi]]
        if need_tok > a.lg_done:
            for la in (1, 2):
                if n + la < len(ops):
                    n2 = max(pos[ops[n+la][1]], pos[ops[n+la][2]])
                    if n2 < st["issued"] and a.lg - tok[order[n2]] >= 6: need_tok = max(need_tok, tok[order[n2]])
            a.wait_lg(need_tok)
        acc = vr(CA + 4 * b, 4)
        a(f"v_mfma_f32_16x16x32_bf16 {acc}, {vr(reg[A],4)}, {vr(reg[B],4)}, {acc if b in first else '0'}")
        first.add(b)
        rel = [f for f in (A, B) if last[f] == n]
        if st["issued"] < len(order) and a.lg - a.lg_done < 12 and free and st["issued"] - needi < 12: issue()
        for f in rel: free.append(reg[f])
        qd.step(n); qv.step(n); q0.step(n)
        if n == 39: stamp(a, "convA")
    assert not qd.items
    qv.flush()
    stamp(a, "conv1")
    ADA = OPT.get("ada", 0)
    xch_send(CB, 1)
    a.wait_vm(T["RA"], " lgkmcnt(0)")
    a("s_barrier")
    xch_recv()
    if ADA:
        a.wait_vm(T["pA0"])
        vm0 = a.vm
        a(f"""
        v_cmp_ne_u32 vcc, s28, v254
        s_mov_b32 s42, 0
        s_cmp_ge_u32 s31, 28
        s_cbranch_scc1 L_ada
        s_cbranch_vccnz L_ada
        s_mov_b32 s42, 1
        """)
        emit(h_dma(0) + h_dma(1))
        stamp(a, "adaA")
        a("L_ada:")
        a.vm = vm0
    a(PAL); T["pA"] = a.vm
    a(f"""
    v_mov_b32 v16, v242
    v_xor_b32 v17, 64, v242
    v_add_u32 v18, 0x20000, v16
    v_add_u32 v19, 0x20000, v17
    """)
    HOLD = OPT.get("hold", 0)
    stsB = cepi(CB, 1, HOLD) or []
    T["hB"] = a.vm
    stamp(a, "epiB")
    epoch = f"""s_cmp_lg_u32 s2, 0
            s_cbranch_scc1 L_noep@
            s_add_u32 s4, s6, 1
            v_mov_b32 v2, s4
            v_mov_b32 v9, {EPOCH:#x}
            buffer_store_dword v2, v9, s[8:11], 0 offen sc1
            L_noep@:"""
    a(f"""
    s_cmp_ge_u32 s31, 28
    s_cbranch_scc1 L_sp
    """)
    vm_sp, lg_sp = a.vm, a.lg
    Tsp = dict(T)
    RING = list(range(64, 96, 4)) + list(range(212, 236, 4)) + list(range(196, 212, 4))
    A2 = 32
    PRA = OPT.get("pra", 8)
    PCA1 = "buffer_load_dword v254, v245, s[8:11], s38 offen sc1"
    PCB1 = "buffer_load_dword v254, v245, s[8:11], s39 offen sc1"
    PCAL = f"s_mov_b64 exec, 0x3fff\n{PCA1}\ns_mov_b64 exec, -1"
    g2s = f"""
        s_lshr_b32 s40, s87, 1
        s_lshl_b32 s40, s40, 11
        s_add_u32 s38, s40, {FCX[0]:#x}
        s_add_u32 s39, s40, {FCX[1]:#x}
        v_lshlrev_b32 v245, {OPT.get("fsc", 5)}, v1
        s_lshr_b32 s41, s3, 1
        s_lshl_b32 s40, s41, 8
        v_xor_b32 v249, s40, v3
        s_mul_i32 s43, s87, {112*1024}
        s_mul_i32 s40, s3, {28*1024}
        s_add_u32 s43, s43, s40
        s_add_u32 s43, s43, {HF:#x}
        s_add_u32 s35, s43, {28*1024}
        s_lshl_b32 s40, s37, 12
        s_add_u32 s43, s43, s40
        v_and_b32 v246, 31, v1
        s_lshl_b32 s40, s69, 5
        v_add_u32 v246, s40, v246
        v_mul_u32_u24 v247, {RS}, v246
        v_lshl_add_u32 v247, v6, 4, v247
        s_lshl_b32 s44, s87, 6
        s_lshl_b32 s40, s41, 5
        s_add_u32 s44, s44, s40
        s_add_u32 s44, s44, {HT:#x}
        v_lshlrev_b32 v246, 1, v246
        v_lshl_add_u32 v248, v6, 12, v246
        s_lshl_b32 s45, s87, 15
        s_lshl_b32 s40, s41, 14
        s_add_u32 s45, s45, s40
        s_add_u32 s46, s45, 8192
        s_mul_i32 s40, s3, 6144
        v_add_u32 v12, s40, v3
        """
    for pl in (1, 2, 3):
        g2s += f"""
        s_xor_b32 s40, s3, {pl}
        s_mul_i32 s40, s40, 6144
        s_add_u32 s40, s40, {(pl-1)*2048}
        v_add_u32 v{12+pl}, s40, v3
        """
    g2s = [x.strip() for x in g2s.split("\n") if x.strip()]
    def g2setup(): emit(g2s)
    RESA = "buffer_load_dwordx4 v[176:179], v247, s[8:11], s44 offen sc1\nglobal_load_ushort v251, v246, s[58:59]"
    RESB = "buffer_load_dwordx4 v[180:183], v247, s[8:11], s44 offen offset:2048 sc1"
    def hload(s):
        L = [f"buffer_load_dwordx4 {vr(RING[s % len(RING)],4)}, v249, s[8:11], s43 offen offset:{(s%4)*1024} sc1", tokv(("H", s))]
        if s % 4 == 3: L.append(adv(43, 4096, 35, 28*1024))
        return L
    GA = [64, 96]; FR = [32, 40, 48, 56]
    PBL = "buffer_load_dword v254, v250, s[8:11], s86 offen sc1"
    def st_loads(X): return [f"buffer_load_dwordx4 {vr(160+8*X+4*q,4)}, v10, s[8:11], s{91+X} offen offset:{512*q} sc1" for q in range(2)]
    def hg(X, g): return h_dma(g) + [tokv(f"h{X}{g}")]
    su = f"""
    s_lshl_b32 s4, s66, 7
    s_add_u32 s90, s90, s4
    s_add_u32 s34, s90, {128*RS}
    s_mul_i32 s4, s36, {32*RS}
    s_add_u32 s90, s90, s4
    s_lshl_b32 s5, s67, 6
    v_lshl_add_u32 v25, v6, 3, s5
    v_and_b32 v10, 31, v1
    v_lshlrev_b32 v10, 4, v10
    s_lshl_b32 s91, s66, 10
    s_add_u32 s91, s91, {ST2:#x}
    s_add_u32 s92, s91, 16384
    s_mul_i32 s74, s66, {2*112*1024}
    s_lshl_b32 s5, s67, 11
    s_add_u32 s74, s74, s5
    s_add_u32 s74, s74, {HF:#x}
    s_add_u32 s75, s74, {112*1024}
    s_lshl_b32 s93, s66, 11
    s_lshl_b32 s5, s7, {OPT.get("fsc", 5)}
    s_add_u32 s93, s93, s5
    s_add_u32 s94, s93, {FCX[1]:#x}
    s_add_u32 s93, s93, {FCX[0]:#x}
    """
    su = [x.strip() for x in su.split("\n") if x.strip()]
    if ADA: su = su[5:]
    CKA = OPT.get("cka", 6)
    qt = FQ(sum((w1_tr(sg) + [tokl(("w", sg))] for sg in range(8, 32)), []), 0, 2.5)
    qs_ = FQ(su, 0, 2.5)
    qs2 = FQ(blkGd, CKA + 1, 2.0)
    b1l = [f"global_load_dwordx2 {vr(160+2*g,2)}, v25, s[54:55] offset:{16*g}" for g in range(4)]
    if HOLD == 1: lst = hg(0, 0) + hg(0, 1) + stsB + [tokv("hB")]
    elif HOLD == 2: lst = hg(0, 0) + stsB + [tokv("hB")] + hg(0, 1)
    else: lst = [] if ADA else hg(0, 0) + hg(0, 1)
    if HOLD: T.pop("hB")
    qd = FQ(lst + b1l + [tokv("b1")], CKA, OPT.get("wdr", 100) / 100)
    fbl = [waitv("hB"), "s_barrier", flag_store(83, epoch.replace("@", "1")), lambda: stamp(a, "flagB")]
    qf = FQ([] if HOLD else fbl, OPT.get("fb", 20))
    NCW = OPT.get("ncw", 32)
    def csum(sg): return f"v_mfma_f32_32x32x16_bf16 v[128:143], {ar(4*sg,4)}, v[20:23], {'0' if sg == 0 else 'v[128:143]'}"
    for sg in range(NCW):
        if sg == CKA:
            qs_.flush()
            if ADA:
                a("s_cmp_lg_u32 s42, 0\ns_cbranch_scc1 L_ada2")
                check1("L_pA", "pA", 254, PAL); stamp(a, "okA")
                emit(hg(0, 0) + hg(0, 1))
                a("L_ada2:")
                T["hB"] = a.vm
            else:
                check1("L_pA", "pA", 254, PAL); stamp(a, "okA")
        if sg >= 8:
            while ("w", sg) not in T: qt.step(0, True)
            a.wait_lg(T[("w", sg)])
        a(csum(sg)); cur[0] += 1
        for q in (qt, qs_, qd, qf, qs2): q.step(sg)
    flush_all([qt, qd, qf, qs2])
    for sg in range(8, 32): T.pop(("w", sg))
    def g1(X, queues, after_first=None, hooks={}):
        tk = {}
        def rd(sg, q):
            j = sg >> 3
            for hf in range(2):
                a(f"ds_read_b64_tr_b16 {vr(FR[sg%4]+4*q+2*hf,2)}, v{16+2*(j&1)+q} offset:{(j>>1)*16384+(sg&7)*2048+hf*512}")
            tk[(sg, q)] = a.lg
        a.wait_vm(T[f"h{X}0"], " lgkmcnt(0)"); a("s_barrier")
        if after_first: after_first()
        stamp(a, f"g1{'AB'[X]}a")
        for sg in range(2):
            for q in range(2): rd(sg, q)
        for sg in range(32):
            if sg % 8 == 6 and sg < 30:
                a.wait_vm(T[f"h{X}{sg//8+1}"])
                a("s_barrier")
            if OPT.get("fine") and sg % 4 == 0 and sg: stamp(a, f"{'AB'[X]}{sg}")
            if sg in hooks: hooks[sg]()
            for q in range(2):
                n = 2 * sg + q
                a.wait_lg(tk[(sg, q)])
                acc = vr(GA[X] + 16 * q, 16)
                a(f"v_mfma_f32_32x32x16_bf16 {acc}, {ar(4*sg,4)}, {vr(FR[sg%4]+4*q,4)}, {'0' if sg == 0 else acc}")
                if sg + 2 < 32: rd(sg + 2, q)
                cur[0] += 1
                for qq in queues: qq.step(n)
        flush_all(queues)
        cur[0] += 20
        stamp(a, f"g1{'AB'[X]}b")
    def epi_pk(X, obase, late=False):
        sts = []
        for q in range(2):
            stt = 160 + 8 * X + 4 * q
            A = GA[X] + 16 * q
            for hf in range(2):
                ks = range(8 * hf, 8 * hf + 8, 2)
                for k in ks: a(f"v_pk_fma_f32 {vr(A+k,2)}, {vr(A+k,2)}, {vr(stt,2)}, {vr(144+k,2)} op_sel:[0,1,0] op_sel_hi:[1,1,1]")
                for k in ks: a(f"v_pk_fma_f32 {vr(A+k,2)}, {vr(128+k,2)}, {vr(stt,2)}, {vr(A+k,2)} op_sel_hi:[1,0,1]")
                for k in range(8 * hf, 8 * hf + 8): a(f"v_max_f32 v{A+k}, 0, v{A+k}")
                for k in ks: a(f"v_pk_mul_f32 {vr(A+k,2)}, {vr(A+k,2)}, {vr(A+k,2)}")
                o = obase + 8 * q + 4 * hf
                for k in range(4): a(f"v_cvt_pk_bf16_f32 v{o+k}, v{A+8*hf+2*k}, v{A+8*hf+2*k+1}")
                sts.append(f"buffer_store_dwordx4 {vr(o,4)}, v3, s[8:11], s{74+q} offen offset:{1024*hf} sc1")
                if not late: a(sts.pop())
        return sts
    NWA = OPT.get("nwa", 3 + EARLY)
    TD = OPT.get("td", 14)
    NTA = OPT.get("nta", 1 + EARLY)
    qd = FQ(hg(0, 2) + hg(0, 3) + ["s_add_u32 s90, s90, 2048\ns_add_u32 s34, s34, 2048"]
            + sum((w2_dma(i) + [tokv(f"r{i}")] for i in range(EARLY, NWA)), []), start=0, rate=OPT.get("dr", 100) / 100)
    b1u = []
    for g in range(4):
        for k in range(2):
            b1u += [f"v_lshlrev_b32 v{144+4*g+2*k}, 16, v{160+2*g+k}", f"v_and_b32 v{144+4*g+2*k+1}, 0xffff0000, v{160+2*g+k}"]
    qg = FQ(g2s, start=4, rate=1.0)
    qt = FQ([waitv("b1")] + b1u + sum(([Dep(f"r{i}", TD + 6), waitv(f"r{i}")] + w2_tr(i) + [tokl(f"t{i}")] for i in range(EARLY, NTA)), []), start=14, rate=2.0)
    qp = FQ([PBL, tokv("pB")] + st_loads(0) + [tokv("sA")], start=OPT.get("pbl", 48))
    qfb = FQ(fbl if HOLD else [], OPT.get("fb2", 10))
    g1(0, [qfb, qp, qd, qt, qg])
    for sg in range(NCW, 32): a(csum(sg))
    check1("L_pB", "pB", 254, PBL); stamp(a, "okB")
    emit(hg(1, 0))
    check2("L_sA", "sA", 162, 166, st_loads(0))
    stamp(a, "stA")
    HB4 = OPT.get("hb4", 0)
    stsA = []
    if HB4 == 1:
        a("s_barrier")
        a.set_bg(hg(1, 1) + hg(1, 2) + hg(1, 3), OPT.get("eas", 5))
        sts = epi_pk(0, 196, True)
        a.flush_bg(); emit(sts)
        T["HA"] = a.vm
    elif HB4 == 2:
        a.set_bg(hg(1, 1), OPT.get("eas", 8))
        stsA = epi_pk(0, 196, True) + [tokv("HA")]
        a.flush_bg()
    else:
        a.set_bg(h_dma(1)[:5] + [tokv("h11")] + h_dma(1)[5:], OPT.get("eas", 4))
        epi_pk(0, 196)
        assert not a.bg
        T["HA"] = a.vm
    stamp(a, "epi1A")
    FCA = OPT.get("fca", 18)
    qe = FQ([FCA, waitv("HA"), "s_barrier", flag_store(93), lambda: stamp(a, "flagCA")], start=1)
    NWB = OPT.get("nwb", 6)
    items = ([] if HB4 == 1 else hg(1, 2) + hg(1, 3)) + stsA + [OPT.get("q1b", 14), RESA, tokv("res")]
    for i in range(NWA, NWB):
        if i >= 3: items += [Dep(f"t{i-3}", 3), waitl(f"t{i-3}")]
        items += w2_dma(i) + [tokv(f"r{i}")]
    qd = FQ(items, start=0, rate=OPT.get("dr2", 110) / 100)
    items = []
    for i in range(NTA, min(4, NWB)):
        items += [Dep(f"r{i}", TD), waitv(f"r{i}")] + w2_tr(i) + [tokl(f"t{i}")]
    qt = FQ(items, start=0, rate=2.0)
    qs = FQ(st_loads(1) + [tokv("sB"), PCAL, tokv("pCA")], start=OPT.get("sbl", 50), rate=3)
    g1(1, [qe, qt, qs, qd])
    PR0 = OPT.get("pr0", 0)
    if PR0:
        check1("L_pCA", "pCA", 254, PCA1, mask=0x3fff); stamp(a, "okCA")
        for s in range(PR0): emit(hload(s))
    check2("L_sB", "sB", 170, 174, st_loads(1))
    a(f"s_add_u32 s74, s74, {32*112*1024}\ns_add_u32 s75, s75, {32*112*1024}")
    PR1 = OPT.get("pr1", 0)
    if PR1:
        a.set_bg(sum((hload(s) for s in range(PR0, PR0 + PR1)), []), OPT.get("prs", 6))
        sts = epi_pk(1, 16, True)
        a.flush_bg(); emit(sts)
        PR0 += PR1
    else:
        epi_pk(1, 16)
    T["HB"] = a.vm
    stamp(a, "epi1B")
    if not OPT.get("pr0", 0):
        check1("L_pCA", "pCA", 254, PCA1, mask=0x3fff); stamp(a, "okCA")
    for s in range(PR0, PRA): emit(hload(s))
    a("s_mov_b32 s81, s3")
    a("s_branch L_join")
    vm_j, lg_j = a.vm, a.lg
    Tsave = dict(T)
    a.label("L_sp")
    a.vm, a.lg = vm_sp, lg_sp; a.lg_done = lg_sp
    a(f"""
    v_lshrrev_b32 v9, 2, v1
    v_mul_u32_u24 v9, {RS}, v9
    v_lshl_add_u32 v36, v7, 4, v9
    v_add_u32 v37, {16*RS-1024}, v36
    v_add_u32 v38, {2*(16*RS-1024)}, v36
    v_add_u32 v39, {3*(16*RS-1024)}, v36
    s_lshl_b32 s4, s30, 2
    s_add_u32 s4, s4, s31
    s_sub_u32 s4, s4, 28
    s_lshl_b32 s5, s4, 6
    s_add_u32 s90, s90, s5
    s_add_u32 m0, s89, 32768
    """)
    T.clear(); T.update(Tsp)
    emit(stsB)
    check1("L_pA2", "pA", 254, PAL)
    stamp(a, "spokA")
    emit(dma_seq(8, 36, 8, 90, 16 * RS, flags="sc1"))
    a(f"""
    v_lshl_add_u32 v11, v4, 3, v8
    v_lshlrev_b32 v11, 6, v11
    v_lshl_add_u32 v11, v7, 3, v11
    s_lshl_b32 s5, s80, 5
    v_add_u32 v11, s5, v11
    s_lshl_b32 s91, s4, 9
    s_lshl_b32 s5, s80, 8
    s_add_u32 s91, s91, s5
    s_add_u32 s91, s91, {ST2:#x}
    s_add_u32 s92, s91, 16384
    v_lshlrev_b32 v10, 4, v5
    v_cmp_eq_u32 s[74:75], 1, v7
    v_cmp_eq_u32 s[76:77], 2, v7
    v_cmp_eq_u32 s[78:79], 3, v7
    """)
    def sp_stats(X, base):
        tks = []
        def mf(s2):
            a.wait_lg(tks[s2])
            a(f"v_mfma_f32_16x16x32_bf16 v[24:27], {vr(64+4*s2,4)}, {vr(64+4*s2,4)}, {'0' if s2==0 else 'v[24:27]'}")
            a(f"v_mfma_f32_16x16x32_bf16 v[28:31], v[20:23], {vr(64+4*s2,4)}, {'0' if s2==0 else 'v[28:31]'}")
        for s in range(16):
            a(f"ds_read_b64_tr_b16 {vr(64+4*s,2)}, v11 offset:{base+s*2048}")
            a(f"ds_read_b64_tr_b16 {vr(66+4*s,2)}, v11 offset:{base+s*2048+256}"); tks.append(a.lg)
            if s >= 6: mf(s - 6)
        for s2 in range(10, 16): mf(s2)
        a(f"""
        v_cndmask_b32 v24, v24, v25, s[74:75]
        v_cndmask_b32 v24, v24, v26, s[76:77]
        v_cndmask_b32 v24, v24, v27, s[78:79]
        """)
        row_stats(a, 28, 24, 32, 33, 25)
        a(f"""
        v_mul_f32 v32, -v32, v33
        v_mov_b32 v34, s28
        v_mov_b32 v35, s28
        s_cmp_ge_u32 s3, 2
        s_cbranch_scc1 L_sps{X}
        s_mov_b32 exec_lo, 0x00F0000F
        s_mov_b32 exec_hi, 0xF0000F00
        buffer_store_dwordx4 v[32:35], v10, s[8:11], s{91+X} offen sc1
        s_mov_b64 exec, -1
        L_sps{X}:
        """)
        stamp(a, f"sp{'AB'[X]}")
    emit(blkGd)
    a("s_waitcnt vmcnt(8)\ns_barrier")
    flag_store(83)()
    a("s_waitcnt vmcnt(0)\ns_barrier")
    stamp(a, "spldA")
    sp_stats(0, 32768)
    a(PBL); T["pB"] = a.vm
    check1("L_pB2", "pB", 254, PBL)
    stamp(a, "spokB")
    a(f"s_add_u32 s90, s90, {2048 - 128*RS}\ns_mov_b32 m0, s89")
    emit(dma_seq(8, 36, 8, 90, 16 * RS, flags="sc1"))
    if EARLY:
        a("s_waitcnt vmcnt(0)\ns_barrier")
        sp_stats(1, 0)
        emit(w2_dma(1) + w2_dma(2) + w2_dma(3))
    else:
        emit(w2_dma(0))
        a("s_waitcnt vmcnt(8)\ns_barrier")
        sp_stats(1, 0)
        emit(w2_dma(1) + w2_dma(2))
        a("s_waitcnt vmcnt(16)")
        emit(w2_tr(0))
        a("s_waitcnt lgkmcnt(0)")
        emit(w2_dma(3))
    a("s_waitcnt vmcnt(0)")
    emit(w2_tr(1) + w2_tr(2) + w2_tr(3))
    a("s_waitcnt lgkmcnt(0)")
    for i in range(4, NWB): emit(w2_dma(i))
    g2setup()
    a(RESA)
    a(PCAL); T["pCA"] = a.vm
    check1("L_pCA2", "pCA", 254, PCA1, mask=0x3fff)
    a("s_barrier\ns_mov_b32 s81, 1")
    for s in range(PRA): emit(hload(s))
    if PR0: a(f"s_waitcnt vmcnt({PRA-PR0})")
    T.clear(); T.update(Tsave)
    a.label("L_join")
    a.vm, a.lg = vm_j, lg_j; a.lg_done = 0
    a.wait_vm(T["res"])
    a("v_lshlrev_b32 v251, 16, v251")
    def g2(X, pre, queues):
        a(f"v_permlane32_swap_b32 v{176+4*X}, v{178+4*X}\nv_permlane32_swap_b32 v{177+4*X}, v{179+4*X}")
        for k in range(4):
            r = 176 + 4 * X + k
            a(f"v_lshlrev_b32 v{A2+2*k}, 16, v{r}\nv_and_b32 v{A2+2*k+1}, 0xffff0000, v{r}")
        for k in range(8): a(f"v_add_f32 v{A2+k}, v{A2+k}, v251")
        for k in range(8, 16): a(f"v_mov_b32 v{A2+k}, 0")
        ql = FQ(sum((hload(s) for s in range(pre, 28)), []), 0, OPT.get("hr", 70) / 100)
        for s in range(28):
            b = vr(RING[s % len(RING)], 4)
            while ("H", s) not in T: ql.step(0, True)
            a.wait_vm(T.pop(("H", s)))
            if X == 0 and s % 4 == 0 and s >= 16:
                while f"t{s//4}" not in T:
                    for qq in queues[:2]: qq.step(0, True)
                a.wait_lg(T[f"t{s//4}"])
            for dl in (1, 0):
                acc = vr(A2 + 16 * dl, 16)
                a(f"v_mfma_f32_32x32x16_bf16 {acc}, {b}, {ar(W2A(s)+4*dl,4)}, {'0' if (s == 0 and dl == 1) else acc}")
                n = 2 * s + 1 - dl
                if ql.items and sum(1 for k in T if isinstance(k, tuple)) < len(RING) - 2: ql.step(n)
                cur[0] += 1
                for qq in queues: qq.step(n)
            if s == 0: stamp(a, f"g2{'AB'[X]}a")
        for qq in queues: qq.flush()
        stamp(a, f"g2{'AB'[X]}b")
    def tail(X, mid=None):
        off = 131072 * X
        if X:
            for k in range(4): a(f"v_add_u32 v{12+k}, 0x20000, v{12+k}")
        for pl in (1, 3, 2):
            src = A2 + 16 * (pl & 1) + 8 * (pl >> 1)
            for k in range(2): a(f"ds_write_b128 v{12+pl}, {vr(src+4*k,4)} offset:{1024*k}")
        a("s_waitcnt lgkmcnt(0)\ns_barrier")
        for k in range(2):
            for sl in range(3): a(f"ds_read_b128 {vr(96+8*sl+4*k,4)}, v12 offset:{2048*sl+1024*k}")
        if mid: mid()
        for k in range(2):
            a(f"s_waitcnt lgkmcnt({3-3*k})")
            for j in (0, 2):
                r = 4 * k + j
                a(f"v_pk_add_f32 {vr(96+r,2)}, {vr(96+r,2)}, {vr(104+r,2)}")
                a(f"v_pk_add_f32 {vr(120+r,2)}, {vr(A2+r,2)}, {vr(112+r,2)}")
            for j in (0, 2):
                r = 4 * k + j
                a(f"v_pk_add_f32 {vr(120+r,2)}, {vr(120+r,2)}, {vr(96+r,2)}")
            for j in (0, 2):
                r = 4 * k + j
                a(f"v_cvt_pk_bf16_f32 v{120+r}, v{120+r}, v{121+r}")
            for j in (0, 2):
                r = 4 * k + j
                a(f"buffer_store_short v{120+r}, v248, s[24:27], s{45+k} offen offset:{1024*j}")
                a(f"buffer_store_short_d16_hi v{120+r}, v248, s[24:27], s{45+k} offen offset:{1024*(j+1)}")
    items = []
    for i in range(NWB, 7): items += [waitl(f"t{i-3}")] + w2_dma(i) + [tokv(f"r{i}")]
    qd = FQ(items, start=0, rate=1.5)
    qd.flush(); cur[0] += 8
    NT2 = min(OPT.get("nt2", 3), NWB - 4)
    for i in range(4, 4 + NT2):
        assert i < NWB
        a.wait_vm(T[f"r{i}"]); emit(w2_tr(i)); settok(f"t{i}", a.lg)
    items = []
    for i in range(4 + NT2, 7):
        items += [Dep(f"r{i}", TD), waitv(f"r{i}")] + w2_tr(i) + [tokl(f"t{i}")]
    qt = FQ(items, start=1, rate=2.0)
    pcb = f"s_mov_b64 exec, 0x3fff\n{PCB1}\ns_mov_b64 exec, -1"
    qf = FQ([waitv("HB"), "s_barrier", flag_store(94, creg=81), lambda: stamp(a, "flagCB"), OPT.get("pcb", 50), RESB, pcb, tokv("pCB")], start=OPT.get("fcb", 2 * PR0))
    g2(0, PRA, [qd, qt, qf])
    PRB = OPT.get("prb", 8)
    def mid():
        a(f"s_add_u32 s43, s43, {32*112*1024}\ns_add_u32 s35, s35, {32*112*1024}")
        check1("L_pCB", "pCB", 254, PCB1, mask=0x3fff)
        stamp(a, "okCB")
        for s in range(PRB): emit(hload(s))
    if OPT.get("cbe", 1): tail(0, mid)
    else:
        tail(0); mid()
    stamp(a, "tailA")
    a(f"s_add_u32 s45, s45, {1024*1024}\ns_add_u32 s46, s46, {1024*1024}")
    g2(1, PRB, [])
    tail(1)
    if STAMP:
        a("s_waitcnt vmcnt(0)")
        stamp(a, "end")
        a(f"""
        s_lshl_b32 s4, s2, 10
        s_add_u32 s4, s4, {TSB:#x}
        v_lshlrev_b32 v2, 2, v0
        buffer_store_dword v255, v2, s[8:11], s4 offen
        """)
    a.label("L_exit")
    a("s_endpgm")
    a.label("L_end")

def build(path, stamp_=False, as_list=False, **opt):
    global STAMP
    STAMP = stamp_
    STAMPS.clear()
    OPT.clear(); OPT.update(opt)
    hdr = open(f"cdna_kernels/{NAME}.s.ref").read().split("; Override launch")[0]
    a = Asm()
    mega(a)
    lines = []
    for l in a.lines: lines += l.split("\n")
    lines, size, fx, np_ = align_pass(lines)
    s = hdr
    if as_list: s += f"; @launch kernel={KN} grid=(256,1,1) block=(256,1,1) lds={LDS_BYTES}\n"
    else: s += f"; @launch grid=(256,1,1) block=(256,1,1) lds={LDS_BYTES}\n"
    s += '.amdgcn_target "amdgcn-amd-amdhsa--gfx950"\n.text\n'
    s += "\n".join(lines) + "\n"
    s += f""".section .rodata,"a"
.p2align 6
.amdhsa_kernel {KN}
  .amdhsa_next_free_vgpr 512
  .amdhsa_next_free_sgpr 102
  .amdhsa_accum_offset 256
  .amdhsa_group_segment_fixed_size 0
  .amdhsa_kernarg_size 136
  .amdhsa_user_sgpr_count 2
  .amdhsa_user_sgpr_kernarg_segment_ptr 1
  .amdhsa_system_sgpr_workgroup_id_x 1
.end_amdhsa_kernel
"""
    open(path, "w").write(s)
    print(path, "code bytes", size, "align fixes", fx, np_)
if __name__ == "__main__":
    import json
    if len(sys.argv) > 1:
        for spec in sys.argv[1:]:
            name, _, o = spec.partition(":")
            opt = {k: int(v) for k, v in (kv.split("=") for kv in o.split(",") if kv)}
            build(f"work/{name}.s", False, True, **opt)
            build(f"work/{name}_dbg.s", True, True, **opt)
    else:
        build("mega.s", False)
        build("mega_l.s", False, True)
        build("mega_dbg.s", True, True)
    json.dump(STAMPS, open("stamps.json", "w"))
```

```python
import sys, math
import numpy as np
from asmlib import *
NAME = "sequential_preLN__ssm_conv_s4__dense_activation_squared_relu__prompt"
KN = NAME + "_kernel"
RS = 4352
XT, HT, HF = 0x0, 0x220000, 0x440000
ST, EPOCH, ST2 = 0xB40000, 0xB58000, 0xB60000
FBX = [0xB70000, 0xB78000]
FCX = [0xB80000, 0xB88000]
WS_USED = 0xB90000
TSB = 0xC00000
LOG2E = 1.4426950408889634
LOG2E_HI = float(np.float32(LOG2E)); LOG2E_LO = LOG2E - LOG2E_HI
STAMP = False
SPIN_MAX = 1 << 18
PQ_PITCH = 544
P_BYTES = 22 * PQ_PITCH
PQ_CH = P_BYTES + 32 * PQ_PITCH
KC_STR, KC_CH = 4160, 131072
RA = 32768
HB = 32768
PQ = 32768
TAB, TAB_CH = 25856, 131072
UC, UC_STR, UC_CH = 16640, 4576, 131072
LDS_BYTES = 163840
STAMPS = {}
OPT = dict(predelayB=0)

def srd(a, s, base, nbytes):
    a(f"""
    s_mov_b32 s{s}, s{base}
    s_and_b32 s{s+1}, s{base+1}, 0xffff
    s_mov_b32 s{s+2}, {nbytes:#x}
    s_mov_b32 s{s+3}, 0x20000
    """)
def stamp(a, name):
    if not STAMP: return
    k = STAMPS.setdefault(name, len(STAMPS))
    ld = a.lg_done
    a(f"s_memrealtime s[100:101]\ns_waitcnt lgkmcnt(0)\nv_writelane_b32 v255, s100, {k}")
    a.lg_done = ld
def cmul(a, d, x, y):
    a(f"v_pk_mul_f32 {vr(d,2)}, {vr(x,2)}, {vr(y,2)} op_sel_hi:[0,1]")
    a(f"v_pk_fma_f32 {vr(d,2)}, {vr(x,2)}, {vr(y,2)}, {vr(d,2)} op_sel:[1,1,0] op_sel_hi:[1,0,1] neg_lo:[1,0,0]")
def row_stats(a, vs, vq, vm, vri, t0):
    a(f"""
    v_mul_f32 v{vs}, {fhex(1/512)}, v{vs}
    v_mul_f32 v{vq}, {fhex(1/512)}, v{vq}
    v_fma_f32 v{vq}, -v{vs}, v{vs}, v{vq}
    v_max_f32 v{vq}, 0, v{vq}
    v_cvt_pk_bf16_f32 v{t0}, v{vs}, v{vq}
    v_lshlrev_b32 v{vm}, 16, v{t0}
    v_and_b32 v{t0}, 0xffff0000, v{t0}
    v_add_f32 v{t0}, {fhex(1e-5)}, v{t0}
    v_cvt_pk_bf16_f32 v{t0}, v{t0}, v{t0}
    v_and_b32 v{t0}, 0xffff0000, v{t0}
    v_sqrt_f32 v{t0}, v{t0}
    v_cvt_pk_bf16_f32 v{t0}, v{t0}, v{t0}
    v_and_b32 v{t0}, 0xffff0000, v{t0}
    v_rcp_f32 v{vri}, v{t0}
    """)
def dma_seq(n, v4, srd_, sreg, gstep, mgroup=4096, ggroup=None, flags=""):
    L = []
    j = 0
    while j < n:
        c = min(4, n - j)
        for q in range(c):
            L.append(f"buffer_load_dwordx4 v{v4+q}, s[{srd_}:{srd_+3}], s{sreg} offen offset:{1024*q} {flags} lds")
        L.append(f"s_add_u32 m0, m0, {mgroup if c == 4 else 1024*c}")
        L.append(f"s_add_u32 s{sreg}, s{sreg}, {(ggroup or 4*gstep) if c == 4 else gstep*c}")
        j += c
    return L
def poll(a, label, vaddr, soff, mask=None):
    if mask is not None: a(f"s_mov_b64 exec, {mask:#x}")
    a(f"""
    s_mov_b32 s72, 0
    {label}:
    buffer_load_dword v2, v{vaddr}, s[8:11], s{soff} offen sc1
    s_add_u32 s72, s72, 1
    s_waitcnt vmcnt(0)
    v_cmp_ne_u32 vcc, s28, v2
    s_cmp_gt_u32 s72, {SPIN_MAX}
    s_cbranch_scc1 {label}_x
    s_and_b64 exec, exec, vcc
    s_cbranch_execnz {label}
    {label}_x:
    s_mov_b64 exec, -1
    """)
def poll4(a, label, loads, regs):
    a(f"s_mov_b32 s72, 0\ns_branch {label}_c\n{label}:")
    for x in loads: a(x)
    a(f"""
    {label}_c:
    s_add_u32 s72, s72, 1
    s_waitcnt vmcnt(0)
    v_xor_b32 v2, s28, v{regs[0]}
    v_xor_b32 v{regs[1]}, s28, v{regs[1]}
    v_xor_b32 v{regs[2]}, s28, v{regs[2]}
    v_xor_b32 v{regs[3]}, s28, v{regs[3]}
    v_or3_b32 v2, v2, v{regs[1]}, v{regs[2]}
    v_or_b32 v2, v2, v{regs[3]}
    v_cmp_ne_u32 vcc, 0, v2
    s_cmp_gt_u32 s72, {SPIN_MAX}
    s_cbranch_scc1 {label}_x
    s_cbranch_vccnz {label}
    {label}_x:
    """)

W1V, HV, W2V = 184, 188, 192
W2A = lambda s: 128 + 8 * s if s < 16 else 8 * (s - 16)

def mega(a):
    EMODE = OPT.get("early", 0)
    EARLY = 1 if EMODE else 0
    BUF = [3, 1, 2, 3, 1, 2, 3] if EARLY else [2, 3, 1, 2, 3, 1, 2]
    def w2_tr(i):
        b = BUF[i]
        va = 238 if b == 3 else 236
        return [f"ds_read_b64_tr_b16 {ar(W2A(4*i+s)+4*dl+2*hf,2)}, v{va+dl} offset:{(32768 if b == 2 else 0)+s*2048+hf*1024}"
                for s in range(4) for dl in range(2) for hf in range(2)]
    def adv(r, step, end, total):
        return f"s_add_u32 s{r}, s{r}, {step}\ns_cmp_ge_u32 s{r}, s{end}\ns_cselect_b32 s47, {total}, 0\ns_sub_u32 s{r}, s{r}, s47"
    def w2_dma(i):
        return [f"s_add_u32 m0, s89, {BUF[i]*32768}"] + dma_seq(8, W2V, 20, 95, 8192)[:-2] + [adv(95, 32768, 32, 448*1024)]
    def w1_dma(j):
        return [f"s_add_u32 m0, s89, {(1 + j % 3)*32768}"] + dma_seq(8, W1V, 16, 71, 4 * 3584)[:-2] + [adv(71, 16*3584, 33, 128*3584)]
    def w1_tr(sg):
        b = 1 + (sg >> 3) % 3
        return [f"ds_read_b64_tr_b16 {ar(4*sg+2*hf,2)}, v{244 if b == 3 else 243} offset:{(32768 if b == 2 else 0)+(sg&7)*4096+hf*1024}" for hf in range(2)]
    def h_dma(g):
        return [f"s_add_u32 m0, s70, {[0, 131072, 16384, 147456][g]}"] + dma_seq(4, HV, 8, 90, 8 * RS, flags="sc1")[:4] + [adv(90, 32*RS, 34, 128*RS)]
    def emit(L):
        for x in L:
            if callable(x): x()
            else: a(x)
    T = {}; TS_ = {}; cur = [0]
    class Dep:
        def __init__(self, name, delay=0): self.name = name; self.delay = delay
    class FQ:
        def __init__(self, items, start=0, rate=1.0):
            self.items = list(items); self.start = start; self.rate = rate; self.credit = 0.999
        def step(self, n, force=False):
            if n < self.start and not force: return
            self.credit += self.rate
            while self.items and (self.credit >= 1 or callable(self.items[0])):
                x = self.items[0]
                if isinstance(x, int):
                    if n < x and not force: self.credit = min(self.credit, 1); return
                    self.items.pop(0); continue
                if isinstance(x, Dep):
                    if x.name not in T or (cur[0] < TS_[x.name] + x.delay and not force):
                        self.credit = min(self.credit, 1); return
                    self.items.pop(0); continue
                self.items.pop(0)
                if callable(x): x()
                else:
                    a(x); self.credit -= 1
        def flush(self):
            k = 0
            while self.items:
                self.step(0, True); k += 1
                assert k < 10000
    def flush_all(qs):
        k = 0
        while any(q.items for q in qs):
            for q in qs: q.step(0, True)
            k += 1; assert k < 10000
    def settok(name, v):
        T[name] = v; TS_[name] = cur[0]
    def tokv(name): return lambda: settok(name, a.vm)
    def tokl(name): return lambda: settok(name, a.lg)
    def waitv(name): return lambda: a.wait_vm(T[name])
    def waitl(name): return lambda: a.wait_lg(T[name])
    nfl = [0]
    def flag_store(sreg, extra="", creg=3):
        n = nfl[0]; nfl[0] += 1
        def f():
            vm = a.vm
            a(f"""
            s_cmp_lg_u32 s{creg}, 0
            s_cbranch_scc1 L_nf{n}
            s_mov_b64 exec, 1
            buffer_store_dword v252, v253, s[8:11], s{sreg} offen sc1
            {extra}
            s_mov_b64 exec, -1
            L_nf{n}:
            """)
            a.vm = vm
        return f
    def check1(label, tok, reg, load, mask=None):
        a.wait_vm(T[tok])
        vm = a.vm
        if mask is not None: a(f"s_mov_b64 exec, {mask:#x}")
        a(f"""
        s_mov_b32 s72, 0
        s_branch {label}_c
        {label}:
        {f"s_sleep {OPT['slp']}" if OPT.get("slp") else ""}
        {load}
        s_waitcnt vmcnt(0)
        {label}_c:
        s_add_u32 s72, s72, 1
        v_cmp_ne_u32 vcc, s28, v{reg}
        s_cmp_gt_u32 s72, {SPIN_MAX}
        s_cbranch_scc1 {label}_x
        s_and_b64 exec, exec, vcc
        s_cbranch_execnz {label}
        {label}_x:
        s_mov_b64 exec, -1
        """)
        a.vm = vm
    def check2(label, tok, r0, r1, loads):
        a.wait_vm(T[tok])
        vm = a.vm
        a(f"s_mov_b32 s72, 0\ns_branch {label}_c\n{label}:")
        emit(loads)
        a(f"""
        s_waitcnt vmcnt(0)
        {label}_c:
        s_add_u32 s72, s72, 1
        v_xor_b32 v2, s28, v{r0}
        v_xor_b32 v9, s28, v{r1}
        v_or_b32 v2, v2, v9
        v_cmp_ne_u32 vcc, 0, v2
        s_cmp_gt_u32 s72, {SPIN_MAX}
        s_cbranch_scc1 {label}_x
        s_cbranch_vccnz {label}
        {label}_x:
        """)
        a.vm = vm
    a.raw(f".globl {KN}\n.p2align 8\n.type {KN},@function\n{KN}:")
    if STAMP: a("v_mov_b32 v255, 0")
    stamp(a, "start")
    a(f"""
    s_cmp_ge_u32 s2, 256
    s_cbranch_scc1 L_exit
    s_load_dwordx16 s[32:47], s[0:1], 0
    s_load_dwordx2 s[64:65], s[0:1], 128
    s_load_dwordx16 s[48:63], s[0:1], 64
    s_getpc_b64 s[4:5]
    L_pc:
    s_lshr_b32 s31, s2, 3               ; k
    v_xor_b32 v2, s31, v0
    v_and_b32 v2, 3, v2
    v_cmp_eq_u32 vcc, 0, v2
    v_lshlrev_b32 v2, 7, v0
    v_min_u32 v2, L_end-L_pc-4, v2
    s_mov_b64 exec, vcc
    global_load_dword v254, v2, s[4:5]
    s_mov_b64 exec, -1
    v_lshrrev_b32 v2, 6, v0
    v_and_b32 v1, 63, v0
    v_readfirstlane_b32 s3, v2
    v_and_b32 v7, 3, v1                 ; l&3
    v_lshrrev_b32 v9, 2, v1             ; cp
    v_lshlrev_b32 v10, 13, v7
    v_lshl_add_u32 v10, v9, 2, v10
    s_and_b32 s30, s2, 7                ; xcd
    s_lshl_b32 s29, s30, 5
    s_add_u32 s29, s29, s31             ; p
    s_lshr_b32 s73, s29, 2              ; rg
    s_and_b32 s74, s29, 3               ; cq
    s_lshl_b32 s74, s74, 7
    s_lshl_b32 s75, s3, 5
    s_add_u32 s74, s74, s75
    s_lshl_b32 s75, s73, 15
    s_lshl_b32 s76, s74, 1
    s_add_u32 s75, s75, s76
    s_add_u32 s76, s75, 4096
    v_lshrrev_b32 v6, 5, v1             ; hh
    v_and_b32 v11, 31, v1
    v_lshlrev_b32 v11, 4, v11
    v_lshl_add_u32 v11, v6, 10, v11
    s_lshl_b32 s77, s29, 13
    s_lshl_b32 s78, s3, 11
    s_add_u32 s77, s77, s78
    s_lshr_b32 s79, s3, 1               ; ch_local
    s_and_b32 s80, s3, 1
    s_lshl_b32 s81, s29, 1
    s_add_u32 s81, s81, s79             ; d
    s_lshl_b32 s82, s81, 8
    s_lshl_b32 s83, s80, 7
    s_add_u32 s82, s82, s83
    v_lshl_add_u32 v12, v1, 1, s82
    s_lshl_b32 s83, s81, 1
    v_mov_b32 v13, s83
    s_mov_b32 s14, {2048*1024:#x}
    s_mov_b32 s15, 0x20000
    s_mov_b32 s10, {WS_USED if not STAMP else 0x1000000:#x}
    s_mov_b32 s11, 0x20000
    s_mov_b32 s18, {512*3584:#x}
    s_mov_b32 s19, 0x20000
    s_mov_b32 s22, {1792*1024:#x}
    s_mov_b32 s23, 0x20000
    v_lshlrev_b32 v3, 4, v1             ; lane*16
    v_lshrrev_b32 v4, 4, v1             ; l>>4
    v_and_b32 v5, 15, v1                ; l&15
    v_bfe_u32 v8, v1, 2, 2              ; (l>>2)&3
    v_mul_u32_u24 v14, {2*RS}, v9
    v_lshl_add_u32 v14, v7, 4, v14
    s_mul_i32 s85, s74, {RS}
    s_lshl_b32 s86, s73, 6
    s_add_u32 s85, s85, s86
    s_add_u32 s85, s85, {XT:#x}
    s_add_u32 s86, s85, {RS}
    v_mov_b32 v40, 0
    v_mov_b32 v41, 0
    v_mov_b32 v42, 0
    v_mov_b32 v43, 0
    v_lshrrev_b32 v2, 1, v5
    v_lshlrev_b32 v2, 6, v2
    v_lshl_add_u32 v36, v4, 4, v2       ; 64(j>>1)+16h
    v_and_b32 v15, 1, v5
    v_lshl_add_u32 v248, v15, 3, v36
    v_mul_u32_u24 v247, {UC_STR}, v15
    v_mul_u32_u24 v246, {KC_STR}, v7
    v_sub_u32 v27, v4, v8
    v_lshlrev_b32 v27, 4, v27
    v_mul_u32_u24 v201, {PQ_PITCH}, v5
    v_lshl_add_u32 v201, v4, 4, v201
    v_mul_u32_u24 v232, {KC_STR}, v8
    v_lshl_add_u32 v232, v7, 4, v232
    v_lshlrev_b32 v233, 2, v1
    v_add_u32 v247, v247, v36
    v_add_u32 v246, v246, v27
    s_waitcnt lgkmcnt(0)
    s_mov_b32 s12, s32
    s_and_b32 s13, s33, 0xffff
    """)
    GAT = OPT.get("gat", 0)
    if not GAT:
        for e in range(8):
            a(f"buffer_load_dword v{32+e}, v10, s[12:15], s{75 if e < 4 else 76} offen offset:{(e%4)*1024}")
    tokT = a.vm
    a(f"""
    buffer_load_dwordx4 v[16:19], v11, s[12:15], s77 offen
    buffer_load_dwordx4 v[20:23], v11, s[12:15], s77 offen offset:512
    """)
    tokS = a.vm
    a(f"""
    global_load_ushort v24, v13, s[46:47]
    global_load_ushort v25, v12, s[34:35]
    global_load_ushort v26, v12, s[36:37]
    """)
    tokA = a.vm
    a(f"""
    global_load_ushort v28, v12, s[38:39]
    global_load_ushort v29, v12, s[40:41]
    global_load_ushort v30, v12, s[42:43]
    global_load_ushort v31, v12, s[44:45]
    global_load_ushort v251, v13, s[48:49]
    s_add_u32 s4, s64, {EPOCH:#x}
    s_addc_u32 s5, s65, 0
    s_load_dword s6, s[4:5], 0
    """)
    tokBC = a.vm
    gl = []
    def lines(t): return [x.strip() for x in t.split("\n") if x.strip()]
    a(f"""
    s_mov_b32 s8, s64
    s_and_b32 s9, s65, 0xffff
    s_mov_b32 s16, s52
    s_and_b32 s17, s53, 0xffff
    s_mov_b32 s20, s56
    s_and_b32 s21, s57, 0xffff
    s_mov_b32 s73, 0x05040100
    s_mov_b32 s74, 0x07060302
    s_mov_b32 s75, 0x3f803f80
    """)
    blkGa = lines(f"""
    s_min_u32 s40, s31, 27
    s_mul_i32 s41, s40, 37
    s_lshr_b32 s36, s41, 8              ; k/7 = rot1
    s_mul_i32 s41, s36, 7
    s_sub_u32 s41, s40, s41
    s_lshr_b32 s66, s30, 1
    s_lshl_b32 s66, s66, 2
    s_add_u32 s66, s66, s36             ; rb
    s_and_b32 s7, s30, 1
    s_mul_i32 s7, s7, 7
    s_add_u32 s7, s7, s41               ; ft
    v_lshlrev_b32 v36, 2, v4
    v_xor_b32 v36, v5, v36
    v_lshlrev_b32 v36, 4, v36
    v_mul_u32_u24 v{W1V}, 3584, v4
    v_add_u32 v{W1V}, v{W1V}, v36
    v_add_u32 v{W1V+1}, {4*3584-1024}, v{W1V}
    v_add_u32 v{W1V+2}, {2*(4*3584-1024)}, v{W1V}
    v_add_u32 v{W1V+3}, {3*(4*3584-1024)}, v{W1V}
    s_mul_i32 s71, s3, {128*3584}
    s_lshl_b32 s40, s7, 8
    s_add_u32 s71, s71, s40
    s_lshl_b32 s89, s3, 13
    {"s_mov_b32 s36, 0" if OPT.get("norot1") else ""}
    s_add_u32 s33, s71, {128*3584}
    s_mul_i32 s40, s36, {32*3584}
    s_add_u32 s71, s71, s40
    """)
    tc3 = lines(f"""
    s_lshl_b32 s42, s31, 2
    s_add_u32 s42, s42, s3
    s_mul_i32 s42, s42, {14*1024}
    s_and_b32 s43, s30, {1 if OPT.get("g2map", 1) else 0}
    s_lshl_b32 s43, s43, 9
    s_add_u32 s42, s42, s43
    v_min_u32 v39, 13, v1
    v_lshlrev_b32 v39, 10, v39
    buffer_load_dword v39, v39, s[20:23], s42 offen offset:384
    """)
    blkCV = lines(f"""
    s_lshl_b32 s40, s80, 8
    s_sub_u32 s40, 256, s40
    s_add_u32 s41, s76, s40
    v_add_u32 v247, s41, v247
    s_add_u32 s41, s77, 48
    s_add_u32 s41, s41, s40
    v_add_u32 v246, s41, v246
    s_lshl_b32 s82, s80, 10
    s_add_u32 s41, s76, {UC_STR+448}
    s_add_u32 s41, s41, s82
    v_add_u32 v249, s41, v248
    s_add_u32 s41, s77, {TAB}
    s_lshl_b32 s40, s80, 11
    s_add_u32 s42, s40, s41
    v_add_u32 v240, s42, v3
    s_sub_u32 s42, s41, s40
    s_add_u32 s42, s42, 2048
    v_add_u32 v241, s42, v3
    s_lshl_b32 s40, s3, 10
    s_add_u32 s40, s40, {UC}
    v_add_u32 v234, s40, v233
    v_add_u32 v235, {UC_CH}, v234
    """)
    blkGb = lines(f"""
    v_and_b32 v37, 1, v4
    v_lshlrev_b32 v37, 5, v37
    v_lshl_add_u32 v37, v7, 3, v37
    v_lshl_add_u32 v38, v6, 3, v8
    v_lshl_add_u32 v243, v38, 8, v37
    v_xor_b32 v36, s3, v8
    v_lshl_add_u32 v243, v36, 6, v243
    v_add_u32 v244, 98304, v243
    v_add_u32 v243, 32768, v243
    """)
    blkGc = lines(f"""
    v_lshl_add_u32 v242, v38, 7, v37
    v_lshrrev_b32 v36, 1, v8
    v_lshl_add_u32 v242, v36, 6, v242
    v_lshrrev_b32 v36, 3, v1
    v_mul_u32_u24 v{HV}, {RS}, v36
    v_lshlrev_b32 v36, 2, v4
    v_xor_b32 v36, v1, v36
    v_and_b32 v36, 7, v36
    v_lshl_add_u32 v{HV}, v36, 4, v{HV}
    v_add_u32 v{HV+1}, {8*RS-1024}, v{HV}
    v_add_u32 v{HV+2}, {2*(8*RS-1024)}, v{HV}
    v_add_u32 v{HV+3}, {3*(8*RS-1024)}, v{HV}
    v_lshl_add_u32 v245, v6, 2, v8
    v_lshl_add_u32 v245, v245, 6, v37
    s_lshl_b32 s70, s3, 12
    s_lshl_b32 s67, s7, 2
    s_add_u32 s67, s67, s3
    """)
    blkGd = lines(f"""
    s_mov_b32 s24, s60
    s_and_b32 s25, s61, 0xffff
    s_mov_b32 s26, {2048*1024:#x}
    s_mov_b32 s27, 0x20000
    """) + (lines("""
    s_lshr_b32 s87, s30, 1
    s_lshl_b32 s87, s87, 3
    s_lshr_b32 s37, s31, 2
    s_add_u32 s87, s87, s37
    s_and_b32 s84, s30, 1
    s_lshl_b32 s84, s84, 2
    s_and_b32 s40, s31, 3
    s_add_u32 s84, s84, s40
    """) if OPT.get("g2map", 1) else lines(f"""
    s_lshl_b32 s87, s30, 2
    s_lshr_b32 s37, s31, 3
    s_add_u32 s87, s87, s37
    s_and_b32 s84, s31, 7
    s_mul_i32 s37, s37, {OPT.get("rot2", 2)}
    """)) + lines(f"""
    s_lshl_b32 s69, s84, 1
    s_add_u32 s69, s69, s80
    v_bfe_u32 v24, v1, 2, 3
    v_lshlrev_b32 v{W2V}, 10, v24
    v_lshl_add_u32 v{W2V}, v6, 6, v{W2V}
    v_lshl_add_u32 v{W2V}, v7, 4, v{W2V}
    v_add_u32 v{W2V+1}, {8192-1024}, v{W2V}
    v_add_u32 v{W2V+2}, {2*(8192-1024)}, v{W2V}
    v_add_u32 v{W2V+3}, {3*(8192-1024)}, v{W2V}
    s_mul_i32 s95, s3, {448*1024}
    s_lshl_b32 s40, s84, 7
    s_add_u32 s95, s95, s40
    """) + ["s_cmp_eq_u32 s37, 7\ns_cselect_b32 s37, 0, s37"] + (["s_mov_b32 s37, 0"] if OPT.get("norot") else []) + lines(f"""
    s_add_u32 s32, s95, {448*1024}
    s_lshl_b32 s40, s37, 16
    s_add_u32 s95, s95, s40
    s_lshl_b32 s40, s80, 9
    s_add_u32 s40, s40, s89
    s_add_u32 s40, s40, 32768
    v_add_u32 v236, s40, v245
    v_xor_b32 v237, 512, v236
    v_add_u32 v238, 0x10000, v236
    v_add_u32 v239, 0x10000, v237
    """)
    a(f"""
    s_mul_i32 s76, s79, {UC_CH}
    s_add_u32 s76, s76, {UC}            ; UC(ch)
    s_mul_i32 s77, s79, {KC_CH}
    s_mul_i32 s78, s80, {UC_STR}
    s_add_u32 s78, s78, s76
    v_add_u32 v2, s78, v3
    s_mul_i32 s78, s79, {TAB_CH}
    s_add_u32 s78, s78, {TAB}
    s_sub_u32 s4, s78, {29*16}
    v_add_u32 v15, s4, v3
    v_cmp_lt_u32 vcc, 28, v1
    v_cndmask_b32 v2, v2, v15, vcc
    ds_write_b128 v2, v[40:43]
    s_sub_u32 s78, s78, {4*0x3EC0}
    s_mul_i32 s4, s79, {PQ_CH}
    s_add_u32 s4, s4, {PQ}
    s_lshl_b32 s88, s80, 8
    s_add_u32 s88, s88, s4
    s_mul_i32 s5, s80, {16*PQ_PITCH}
    s_add_u32 s5, s5, s4
    s_add_u32 s5, s5, {P_BYTES}
    v_add_u32 v202, s5, v201
    v_add_u32 v201, s4, v201
    s_lshl_b32 s5, s80, 11
    s_add_u32 s5, s5, s77
    v_lshl_add_u32 v231, v1, 5, s5
    s_add_u32 s5, s77, 4096
    v_add_u32 v232, s5, v232
    ds_write_b128 v232, v[40:43]
    s_lshl_b32 s5, s80, 7
    v_lshl_add_u32 v15, v5, 3, s5       ; 8*(16jb+j)
    """)
    a("v_cvt_f32_u32 v15, v15")
    for ib, tbl in enumerate([[(0, 1), (4, 1), (256, 2), (512, 256)], [(1536, 256), (516, 256), (1028, 256), (1028, 256)]]):
        a(f"v_mov_b32 v52, {fhex(tbl[3][0])}\nv_mov_b32 v53, {fhex(tbl[3][1])}")
        for h in range(3):
            if tbl[h] == tbl[3]: continue
            a(f"v_cmp_ne_u32 vcc, {h}, v4")
            a(f"v_mov_b32 v2, {fhex(tbl[h][0])}")
            a(f"v_cndmask_b32 v52, v2, v52, vcc")
            if tbl[h][1] != tbl[3][1]: a(f"v_cndmask_b32 v53, {float(tbl[h][1])}, v53, vcc")
        a("v_add_f32 v52, v52, v15")
        for r in range(4):
            if ib == 0 and r == 0:
                a(f"v_max_f32 v2, {fhex(0.75)}, v52\nv_lshrrev_b32 v2, 14, v2")
            else:
                a("v_lshrrev_b32 v2, 14, v52")
            a(f"v_add_u32 v{204+4*ib+r}, s78, v2")
            if r < 3: a("v_add_f32 v52, v52, v53")
    def gather_addrs():
        a(f"""
        s_lshl_b32 s5, s80, 10
        s_sub_u32 s5, 2047, s5
        v_sub_u32 v52, s5, v3
        v_cvt_f32_i32 v52, v52
        v_add_f32 v53, -1.0, v52
        v_mov_b32 v15, {fhex(0.75)}
        """)
        for e in range(0, 20, 2):
            if e >= 14:
                a(f"""
                v_fmamk_f32 v54, v52, {fhex(0.125)}, v15
                v_fmamk_f32 v55, v53, {fhex(0.125)}, v15
                v_max_f32 v54, v54, v52
                v_max_f32 v55, v55, v53
                v_cvt_pk_bf16_f32 v2, v54, v55
                """)
            else:
                a("v_cvt_pk_bf16_f32 v2, v52, v53")
            if e < 18: a("v_pk_add_f32 v[52:53], v[52:53], -2.0 op_sel_hi:[1,0]")
            a(f"v_mad_u32_u16 v{212+e}, v2, 4, s78")
            if e + 1 <= 18: a(f"v_mad_u32_u16 v{213+e}, v2, 4, s78 op_sel:[1,0,0,0]")
    if not OPT.get("gal", 0): gather_addrs()
    if not OPT.get("cvl", 1): emit(blkCV)
    a.flush_bg()
    if not GAT:
        a.wait_vm(tokT)
        stamp(a, "T")
        for k in range(4):
            a(f"v_perm_b32 v{44+k}, v{32+2*k+1}, v{32+2*k}, s73")
        a(f"buffer_store_dwordx4 v[44:47], v14, s[8:11], s85 offen sc1")
        for k in range(4):
            a(f"v_perm_b32 v{48+k}, v{32+2*k+1}, v{32+2*k}, s74")
        a(f"buffer_store_dwordx4 v[48:51], v14, s[8:11], s86 offen sc1")
    tokXT = a.vm
    def touches():
        a(f"""
        s_lshl_b32 s5, s2, 2
        s_add_u32 s5, s5, s3
        s_mul_i32 s5, s5, {14*128}
        v_lshlrev_b32 v2, 7, v1
        s_mov_b64 exec, 0x3fff
        buffer_load_dword v254, v2, s[20:23], s5 offen
        buffer_load_dword v253, v2, s[16:19], s5 offen
        """)
        TC = OPT.get("tc", 0)
        if TC:
            a(f"""
            s_lshl_b32 s5, s31, 2
            s_add_u32 s5, s5, s3
            s_mul_i32 s5, s5, {14*1024}
            s_and_b32 s4, s30, {1 if OPT.get("g2map", 1) else 0}
            s_lshl_b32 s4, s4, 9
            s_add_u32 s5, s5, s4
            """)
            if TC == 1:
                a("v_lshlrev_b32 v2, 10, v1\nbuffer_load_dword v252, v2, s[20:23], s5 offen offset:384")
            else:
                a("s_mov_b64 exec, -1\nv_lshlrev_b32 v2, 10, v9\nv_lshl_add_u32 v2, v7, 7, v2\ns_mov_b32 exec_hi, 0xffffff\nbuffer_load_dword v252, v2, s[20:23], s5 offen")
        a("s_mov_b64 exec, -1")
    if not GAT: touches()
    a("v_mov_b32 v52, 0\nv_mov_b32 v53, 0\nv_mov_b32 v54, 0\nv_mov_b32 v55, 0")
    a.wait_vm(tokS)
    for j in range(8):
        a(f"v_dot2_f32_bf16 v{52+(j&1)}, v{16+j}, s75, v{52+(j&1)}")
        a(f"v_dot2_f32_bf16 v{54+(j&1)}, v{16+j}, v{16+j}, v{54+(j&1)}")
    a("v_add_f32 v52, v52, v53\nv_add_f32 v54, v54, v55")
    for sh in (8, 4, 2, 1):
        a(f"v_add_f32_dpp v52, v52, v52 row_ror:{sh} row_mask:0xf bank_mask:0xf")
        a(f"v_add_f32_dpp v54, v54, v54 row_ror:{sh} row_mask:0xf bank_mask:0xf")
    a(f"""
    v_mov_b32 v53, v52
    v_mov_b32 v55, v54
    s_lshl_b32 s91, s29, 6
    s_lshl_b32 s5, s3, 4
    s_add_u32 s91, s91, s5
    s_add_u32 s91, s91, {ST:#x}
    v_permlane16_swap_b32 v52, v53
    v_permlane16_swap_b32 v54, v55
    v_add_f32 v52, v52, v53
    v_add_f32 v54, v54, v55
    """)
    row_stats(a, 52, 54, 56, 45, 53)
    a(f"""
    s_waitcnt lgkmcnt(0)
    s_add_u32 s28, s6, 1
    s_mul_i32 s28, s28, 0x9E3779B1      ; tag
    v_readlane_b32 s92, v56, 32
    v_readlane_b32 s93, v45, 32
    v_lshrrev_b32 v44, 16, v56
    v_mov_b32 v47, s28
    v_or_b32 v44, s92, v44
    v_mov_b32 v46, s93
    s_mov_b32 s4, {fhex(LOG2E_HI)}
    """)
    if GAT:
        a("s_mov_b64 exec, 1\nbuffer_store_dwordx4 v[44:47], v3, s[8:11], s91 offen sc1\ns_mov_b64 exec, -1")
        stamp(a, "pub")
        touches()
    a.wait_vm(tokA)
    stamp(a, "A")
    a(f"""
    v_lshlrev_b32 v24, 16, v24
    v_lshlrev_b32 v25, 16, v25
    v_lshlrev_b32 v26, 16, v26
    v_mul_f32 v16, s4, v24
    v_fma_f32 v17, v24, s4, -v16
    v_fmac_f32 v17, {fhex(LOG2E_LO)}, v24
    v_exp_f32 v16, v16
    v_mul_f32 v17, {fhex(math.log(2))}, v17
    v_fma_f32 v16, v16, v17, v16
    v_cvt_pk_bf16_f32 v16, v16, v16
    v_and_b32 v16, 0xffff0000, v16      ; dt
    v_mul_f32 v25, v16, v25
    v_mul_f32 v26, v16, v26
    v_mul_f32 v25, s4, v25              ; a2
    v_mul_f32 v26, 0.15915494, v26      ; b2
    """)
    def edirect(d, l):
        a(f"""
        v_mul_f32 v18, {fhex(float(l))}, v25
        v_mul_f32 v19, {fhex(float(l))}, v26
        v_exp_f32 v18, v18
        v_fract_f32 v19, v19
        v_cos_f32 v{d}, v19
        v_sin_f32 v{d+1}, v19
        v_pk_mul_f32 {vr(d,2)}, {vr(d,2)}, v[18:19] op_sel_hi:[1,0]
        """)
    cnt = [0]; pend = []
    def flush_put():
        for x in pend: a(x)
        pend.clear()
    def put(src, row, isP):
        t = 20 + cnt[0] % 4; cnt[0] += 1
        a(f"v_cvt_pk_bf16_f32 v{t}, v{src}, {'-' if isP else ''}v{src+1}")
        pend.append(f"ds_write_addtid_b32 v{t} offset:{row*PQ_PITCH + (0 if isP else P_BYTES)}")
        if len(pend) >= 2: flush_put()
    TMP = [56, 58, 60, 62]
    Q = {j: 64 + 2 * j for j in range(1, 17)}
    npub = [0]
    def publish(final=False):
        n = npub[0]; npub[0] += 1
        if GAT:
            if gl: flush_put(); a(gl.pop(0))
            while final and gl: a(gl.pop(0))
            return
        flush_put()
        if final:
            a(f"s_cmp_eq_u32 s94, 0\ns_cbranch_scc1 L_np{n}\ns_waitcnt vmcnt({NY})")
        else:
            if n == 0: a("s_waitcnt vmcnt(15)")
            a(f"s_getreg_b32 s93, hwreg(HW_REG_IB_STS, 0, 4)\ns_cmp_lt_u32 s93, s94\ns_cbranch_scc0 L_np{n}")
        a(f"""
        s_mov_b64 exec, 1
        buffer_store_dwordx4 v[44:47], v3, s[8:11], s91 offen sc1
        s_mov_b64 exec, -1
        s_mov_b32 s94, 0
        """)
        stamp(a, "pub")
        a(f"L_np{n}:")
    edirect(Q[1], 8)
    a.flush_bg()
    NY = a.vm - tokXT
    a(f"s_mov_b32 m0, s88\ns_mov_b32 s94, {NY+1}")
    a(f"v_mov_b32 v17, 0x00003f80\nds_write_addtid_b32 v17 offset:{P_BYTES}")
    prev = 1
    PUBAT = {0: (12, 18, 24, 30), 1: (16, 26), 2: (20,), 3: (3, 22)}[OPT.get("pubs", 3 if GAT else 1)]
    for j in range(2, 17):
        hb = 1 << (j.bit_length() - 1)
        x, y = (j // 2, j // 2) if j == hb else (hb, j - hb)
        cmul(a, Q[j], Q[x], Q[y]); put(Q[prev], prev, 0); prev = j
        if j in PUBAT: publish()
    pr, prow = Q[16], 16
    for j in range(17, 32):
        t = TMP[j % 4]
        cmul(a, t, Q[16], Q[j - 16]); put(pr, prow, 0); pr, prow = t, j
        if j in PUBAT: publish()
    put(pr, prow, 0)
    E1, E256, E1024, E2, E4, E512 = 64, 66, 68, 70, 72, 74
    P = {k: 76 + 2 * k for k in range(8)}
    R = {256: 92, 260: 94, 512: 96, 768: 98, 1024: 100}
    edirect(E1, 1); edirect(E256, 256); edirect(E1024, 1024)
    publish()
    if GAT: a.wait_vm(tokBC)
    else: a(f"s_waitcnt vmcnt({2 + NY + (8 if EMODE == 1 else 0)})")
    a(f"""
    v_lshlrev_b32 v28, 16, v28
    v_lshlrev_b32 v29, 16, v29
    v_lshlrev_b32 v30, 16, v30
    v_lshlrev_b32 v31, 16, v31
    v_mul_f32 v28, v16, v28
    v_mul_f32 v29, v16, v29
    """)
    cmul(a, E2, E1, E1); cmul(a, P[0], 30, 28); cmul(a, E512, E256, E256); cmul(a, E4, E2, E2)
    seq = [(P[1], P[0], E1, 1), (P[2], P[0], E2, 2), (P[3], P[1], E2, 3), (P[4], P[0], E4, 4), (P[5], P[1], E4, 5), (P[6], P[2], E4, 6),
           (P[7], P[3], E4, 7), (R[256], P[0], E256, 8), (TMP[0], P[2], E256, 9), (R[260], P[4], E256, 10), (TMP[1], P[6], E256, 11),
           (R[512], P[0], E512, 12), (R[768], R[256], E512, 13), (R[1024], P[0], E1024, 14), (TMP[2], R[256], E1024, 15),
           (TMP[3], R[512], E1024, 16), (TMP[0], R[768], E1024, 17), (TMP[1], R[1024], E1024, 18), (TMP[2], P[4], E512, 20), (TMP[3], R[260], E512, 21)]
    pr, prow = P[0], 0
    for d, x, y, row in seq:
        cmul(a, d, x, y); put(pr, prow, 1); pr, prow = d, row
        if row in ((6, 13) if OPT.get("pubs", 1) == 0 else (9,)): publish()
    put(pr, prow, 1); flush_put()
    publish(True)
    a("s_waitcnt lgkmcnt(0)\ns_barrier")
    stamp(a, "pq")
    if EMODE == 3: a.set_bg(w2_dma(0), OPT.get("esp", 3))
    toks = []
    def krd(s):
        a(f"ds_read_b128 {vr(64+12*s,4)}, v202 offset:{64*s}")
        a(f"ds_read_b128 {vr(68+12*s,4)}, v201 offset:{64*s}"); t1 = a.lg
        a(f"ds_read_b128 {vr(72+12*s,4)}, v201 offset:{64*s+16*PQ_PITCH}"); toks.append((t1, a.lg))
    for s in range(5): krd(s)
    if OPT.get("gal", 0): gather_addrs()
    for s in range(8):
        a.wait_lg(toks[s][0])
        a(f"v_mfma_f32_16x16x32_bf16 v[16:19], {vr(68+12*s,4)}, {vr(64+12*s,4)}, {'0' if s==0 else 'v[16:19]'}")
        a.wait_lg(toks[s][1])
        a(f"v_mfma_f32_16x16x32_bf16 v[20:23], {vr(72+12*s,4)}, {vr(64+12*s,4)}, {'0' if s==0 else 'v[20:23]'}")
        if s + 5 < 8: krd(s + 5)
    a(f"""
    s_lshl_b32 s4, s3, 12
    s_add_u32 s4, s4, {ST:#x}
    v_cvt_pk_bf16_f32 v16, v16, v17
    v_cvt_pk_bf16_f32 v18, v18, v19
    v_cvt_pk_bf16_f32 v20, v20, v21
    v_cvt_pk_bf16_f32 v22, v22, v23
    """)
    for q in range(2):
        b = 16 + 4 * q
        a(f"""
        ds_write_b16 v{204+4*q}, v{b}
        ds_write_b16_d16_hi v{205+4*q}, v{b}
        ds_write_b16 v{206+4*q}, v{b+2}
        ds_write_b16_d16_hi v{207+4*q}, v{b+2}
        """)
    a.flush_bg()
    a("s_waitcnt lgkmcnt(0)\ns_barrier")
    stamp(a, "tab")
    pa_loads = [f"buffer_load_dwordx4 {vr(160+4*i,4)}, v3, s[8:11], s4 offen offset:{1024*i} sc1" for i in range(4)]
    for e in range(19):
        a(f"ds_read_u16 v{64+e}, v{212+e}")
    tg = a.lg
    for x in pa_loads: a(x)
    if OPT.get("cvl", 1): emit(blkCV)
    a.wait_lg(tg)
    def expand(c):
        st = 3 - c
        o = 96 + 8 * c
        for k in range(8):
            a(f"v_lshl_or_b32 v{o+k}, v{64+st+2*k+1}, 16, v{64+st+2*k}")
        a(f"ds_write_b128 v231, {vr(o,4)} offset:{c*KC_STR}")
        a(f"ds_write_b128 v231, {vr(o+4,4)} offset:{c*KC_STR+16}")
    NEXP = OPT.get("nexp", 4 if GAT else 2)
    for c in range(NEXP): expand(c)
    stamp(a, "kdone")
    poll4(a, "L_pa", pa_loads, [163, 167, 171, 175])
    if not GAT:
        a(f"""
        s_mul_i32 s4, s29, {2*RS}
        s_lshl_b32 s5, s3, 10
        s_add_u32 s4, s4, s5
        s_add_u32 s4, s4, {XT:#x}
        s_add_u32 s5, s4, {RS}
        """)
        stamp(a, "syncA")
        for i in range(4):
            a(f"buffer_load_dword v{176+2*i}, v233, s[8:11], s4 offen offset:{256*i} sc1")
            a(f"buffer_load_dword v{177+2*i}, v233, s[8:11], s5 offen offset:{256*i} sc1")
    else: stamp(a, 'syncA')
    tokX = a.vm
    for c in range(NEXP, 4): expand(c)
    a(f"""
    v_mov_b32 v20, 0x3f803f80
    v_mov_b32 v21, 0x3f803f80
    v_mov_b32 v22, 0x3f803f80
    v_mov_b32 v23, 0x3f803f80
    s_mul_i32 s76, s81, {RS}
    s_add_u32 s76, s76, s82
    s_add_u32 s77, s76, {HT:#x}
    v_lshlrev_b32 v251, 16, v251
    v_mov_b32 v252, s28
    v_mov_b32 v253, 0
    v_lshlrev_b32 v250, {OPT.get("fs", 4)}, v0
    s_lshl_b32 s82, s29, {OPT.get("fs", 4)}
    s_add_u32 s83, s82, {FBX[1]:#x}
    s_add_u32 s82, s82, {FBX[0]:#x}
    s_mov_b32 s85, {FBX[0]:#x}
    s_mov_b32 s86, {FBX[1]:#x}
    s_mul_i32 s90, s3, {128*RS}
    s_add_u32 s90, s90, {HT:#x}
    """)
    emit(blkGa)
    if OPT.get("tcl") == 1: emit(tc3)
    if OPT.get("j0x", 0):
        emit(w1_dma(0)); settok("j0", a.vm)
    for i in range(4):
        g = 160 + 4 * i
        a(f"v_and_b32 v{129+2*i}, 0xffff0000, v{g}")
        a(f"v_lshlrev_b32 v{128+2*i}, 16, v{g}")
        a(f"v_mov_b32 v{136+2*i}, v{g+1}")
        a(f"v_mov_b32 v{137+2*i}, v{g+2}")
    for i in range(4):
        if GAT:
            e, o, t = 176 + 2 * i, 177 + 2 * i, 144 + 4 * i
            a(f"""
            v_lshlrev_b32 v{t}, 16, v{e}
            v_lshlrev_b32 v{t+1}, 16, v{o}
            v_and_b32 v{t+2}, 0xffff0000, v{e}
            v_and_b32 v{t+3}, 0xffff0000, v{o}
            v_perm_b32 v{64+2*i}, v{o}, v{e}, s73
            v_perm_b32 v{65+2*i}, v{o}, v{e}, s74
            """)
        else: a.wait_vm(tokX - 6 + 2 * i)
        for c in range(2):
            x, t = 176 + 2 * i + c, 144 + 4 * i + 2 * c
            if not GAT: a(f"v_lshlrev_b32 v{t}, 16, v{x}\nv_and_b32 v{t+1}, 0xffff0000, v{x}")
            a(f"""
            v_pk_add_f32 {vr(t,2)}, {vr(t,2)}, {vr(128+2*i,2)} neg_lo:[0,1] neg_hi:[0,1]
            v_cvt_pk_bf16_f32 v{x}, v{t}, v{t+1}
            v_lshlrev_b32 v{t}, 16, v{x}
            v_and_b32 v{t+1}, 0xffff0000, v{x}
            v_pk_mul_f32 {vr(t,2)}, {vr(t,2)}, {vr(136+2*i,2)}
            v_cvt_pk_bf16_f32 v{x}, v{t}, v{t+1}
            """)
        for c in range(2):
            x = 176 + 2 * i + c
            a(f"""
            ds_write_b32 v{234+c}, v{x} offset:{256*i+456}
            ds_write_b32 v{234+c}, v{x} offset:{256*i+UC_STR+448}
            """)
            if GAT: a(f"ds_write_b32 v14, v{64+2*i+c} offset:{4096*c+256*i}")
    a("s_waitcnt lgkmcnt(0)\ns_barrier")
    stamp(a, "conv0")
    a(f"""
    ds_read_b64 v[28:29], v249
    ds_read_b64 v[30:31], v249 offset:512
    ds_read_b64 v[32:33], v249 offset:2048
    ds_read_b64 v[34:35], v249 offset:2560
    """)
    if GAT:
        a(f"""
        s_lshl_b32 s4, s79, 12
        s_lshl_b32 s5, s80, 10
        s_add_u32 s4, s4, s5
        s_add_u32 s4, s4, 98304
        v_add_u32 v2, s4, v248
        ds_read_b64 v[12:13], v2
        ds_read_b64 v[14:15], v2 offset:512
        ds_read_b64 v[16:17], v2 offset:2048
        ds_read_b64 v[18:19], v2 offset:2560
        """)
    else:
        a(f"""
        buffer_load_dwordx2 v[12:13], v248, s[8:11], s76 offen sc1
        buffer_load_dwordx2 v[14:15], v248, s[8:11], s76 offen offset:512 sc1
        buffer_load_dwordx2 v[16:17], v248, s[8:11], s76 offen offset:2048 sc1
        buffer_load_dwordx2 v[18:19], v248, s[8:11], s76 offen offset:2560 sc1
        """)
    T["XE"] = a.vm
    CA, CB = 40, 56
    ZR, XR = 160, 200
    SND, KP, RC = 216, 224, 176
    ops = []
    for X in range(2):
        for r in range(4):
            if X == 0: prs = sorted([(b, aa) for b in range(4) for aa in range(b + 1)], key=lambda p: (max(p[1], p[0] - p[1]), p[0]))
            else: prs = [(aa + c, aa) for aa in range(8) for c in range(7 - aa, max(3 - aa, -1), -1)]
            for b, aa in prs: ops.append((b, ("A", aa, r, X), ("B", b - aa, r, X)))
    order, last = [], {}
    for n, (b, A, B) in enumerate(ops):
        for f in (A, B):
            if f not in last: order.append(f)
            last[f] = n
    pos = {f: i for i, f in enumerate(order)}
    free = list(range(72, 160, 4))
    reg, tok = {}, {}
    st = {"issued": 0}
    def issue():
        f = order[st["issued"]]; reg[f] = free.pop(0)
        k, idx, r, X = f
        off = (7 - idx) * 512 + (3 - r) * 64 if k == "A" else idx * 512 + (3 - r) * 64
        a(f"ds_read_b128 {vr(reg[f],4)}, v{246 if k == 'A' else 247} offset:{off}")
        tok[f] = a.lg; st["issued"] += 1
    def zpre(ks):
        L = []
        for k in ks:
            u, z = 28 + k, ZR + 2 * k
            L += [f"v_lshlrev_b32 v{z}, 16, v{u}", f"v_and_b32 v{z+1}, 0xffff0000, v{u}", f"v_mul_f32 v{z}, v{z}, v251", f"v_mul_f32 v{z+1}, v{z+1}, v251",
                  f"v_cvt_pk_bf16_f32 v{z}, v{z}, v{z+1}", f"v_and_b32 v{z+1}, 0xffff0000, v{z}", f"v_lshlrev_b32 v{z}, 16, v{z}"]
        return L
    def xpre(ks):
        return sum(([f"v_lshlrev_b32 v{XR+2*k}, 16, v{12+k}", f"v_and_b32 v{XR+2*k+1}, 0xffff0000, v{12+k}"] for k in ks), [])
    def xch_send(C, X):
        a(f"""
        s_cmp_eq_u32 s80, 1
        s_cbranch_scc1 L_x{X}1
        s_nop 7
        ds_write_b128 v240, {vr(C+8,4)}
        ds_write_b128 v240, {vr(C+12,4)} offset:1024
        s_branch L_x{X}2
        L_x{X}1:
        s_nop 7
        """)
        a.lg -= 2
        a(f"""
        ds_write_b128 v240, {vr(C,4)}
        ds_write_b128 v240, {vr(C+4,4)} offset:1024
        """)
        for k in range(8): a(f"v_mov_b32 v{C+k}, v{C+8+k}")
        a(f"L_x{X}2:")
        T["exw"] = a.lg
    def xch_recv():
        a(f"ds_read_b128 {vr(RC,4)}, v241\nds_read_b128 {vr(RC+4,4)}, v241 offset:1024")
        T["exr"] = a.lg
    def cepi(C, X, hold=False):
        a.wait_lg(T["exr"])
        for grp in (lambda k, y: f"v_pk_add_f32 {vr(y,2)}, {vr(y,2)}, {vr(RC+2*k,2)}",
                    lambda k, y: f"v_cvt_pk_bf16_f32 v{y}, v{y}, v{y+1}",
                    lambda k, y: f"v_and_b32 v{y+1}, 0xffff0000, v{y}\nv_lshlrev_b32 v{y}, 16, v{y}",
                    lambda k, y: f"v_pk_add_f32 {vr(y,2)}, {vr(y,2)}, {vr(ZR+8*X+2*k,2)}",
                    lambda k, y: f"v_cvt_pk_bf16_f32 v{y}, v{y}, v{y+1}",
                    lambda k, y: f"v_and_b32 v{y+1}, 0xffff0000, v{y}\nv_lshlrev_b32 v{y}, 16, v{y}",
                    lambda k, y: f"v_pk_add_f32 {vr(y,2)}, {vr(y,2)}, {vr(XR+8*X+2*k,2)}",
                    lambda k, y: f"v_cvt_pk_bf16_f32 v{SND+4*X+k}, v{y}, v{y+1}"):
            for k in range(4): a(grp(k, C + 2 * k))
        sts = [f"buffer_store_dwordx2 {vr(SND+4*X,2)}, v248, s[8:11], s77 offen offset:{2048*X} sc1",
               f"buffer_store_dwordx2 {vr(SND+4*X+2,2)}, v248, s[8:11], s77 offen offset:{2048*X+512} sc1"]
        if hold: return sts
        emit(sts)
    FA = OPT.get("fa", 88)
    epiA = [41, lambda: xch_send(CA, 0), waitv("XE")] + xpre(range(4)) + [47, waitl("exw"), "s_barrier", xch_recv, 53, lambda: cepi(CA, 0), tokv("hA")]
    epiA += blkGb + [OPT.get("bj0", 62), waitv("j0"), "s_barrier"] + sum((w1_tr(sg) for sg in range(8)), []) + [tokl("tj0")]
    epiA += [FA, waitv("hA"), waitl("tj0"), "s_barrier", tokl("FA"), flag_store(82), lambda: stamp(a, "flagA")] + (tc3 if OPT.get("tcl") == 2 else []) + xpre(range(4, 8)) + zpre(range(4, 8)) + blkGc
    if OPT.get("ada", 0):
        epiA += [f"s_cmp_ge_u32 s31, 28\ns_cselect_b32 s40, 0, s66\ns_cselect_b32 s41, 0, s36", "s_lshl_b32 s40, s40, 7", "s_add_u32 s90, s90, s40", f"s_add_u32 s34, s90, {128*RS}",
                 f"s_mul_i32 s41, s41, {32*RS}", "s_add_u32 s90, s90, s41",
                 OPT.get("pa0", 134), "buffer_load_dword v254, v250, s[8:11], s85 offen sc1", tokv("pA0")]
    PAL = "buffer_load_dword v254, v250, s[8:11], s85 offen sc1"
    q0 = FQ((w2_tr(0) + [tokl("t0")]) if EARLY else [], start=OPT.get("t0s", 8), rate=OPT.get("t0r", 6) / 10)
    qv = FQ(zpre(range(4)) + epiA, start=6, rate=OPT.get("cvr", 10) / 10)
    if OPT.get("j0x", 0):
        qd = FQ(w1_dma(1) + [OPT.get("res", 70)] + w1_dma(2) + [Dep("FA")] + w1_dma(3) + [tokv("RA")], start=OPT.get("cds", 10), rate=OPT.get("cdr", 42) / 100)
    elif OPT.get("pause", 1):
        J1 = OPT.get("j1", 3)
        def fast(): qd.rate = OPT.get("cdr2", 55) / 100
        qd = FQ(w1_dma(0) + [tokv("j0")] + w1_dma(1)[:J1] + [OPT.get("res", 66), fast] + w1_dma(1)[J1:] + ([waitl("t0")] if EARLY else []) + w1_dma(2) + [Dep("FA")] + w1_dma(3) + [tokv("RA")], start=1, rate=OPT.get("cdr", 35) / 100)
    else:
        qd = FQ(w1_dma(0) + [tokv("j0")] + w1_dma(1) + w1_dma(2) + [Dep("FA")] + w1_dma(3) + [tokv("RA")], start=2, rate=OPT.get("cdr", 38) / 100)
    first = set()
    while st["issued"] < 10: issue()
    for n, (b, A, B) in enumerate(ops):
        needi = max(pos[A], pos[B])
        while st["issued"] <= needi: issue()
        need_tok = tok[order[needi]]
        if need_tok > a.lg_done:
            for la in (1, 2):
                if n + la < len(ops):
                    n2 = max(pos[ops[n+la][1]], pos[ops[n+la][2]])
                    if n2 < st["issued"] and a.lg - tok[order[n2]] >= 6: need_tok = max(need_tok, tok[order[n2]])
            a.wait_lg(need_tok)
        acc = vr(CA + 4 * b, 4)
        a(f"v_mfma_f32_16x16x32_bf16 {acc}, {vr(reg[A],4)}, {vr(reg[B],4)}, {acc if b in first else '0'}")
        first.add(b)
        rel = [f for f in (A, B) if last[f] == n]
        if st["issued"] < len(order) and a.lg - a.lg_done < 12 and free and st["issued"] - needi < 12: issue()
        for f in rel: free.append(reg[f])
        qd.step(n); qv.step(n); q0.step(n)
        if n == 39: stamp(a, "convA")
    assert not qd.items
    qv.flush()
    stamp(a, "conv1")
    ADA = OPT.get("ada", 0)
    xch_send(CB, 1)
    a.wait_vm(T["RA"], " lgkmcnt(0)")
    a("s_barrier")
    xch_recv()
    if ADA:
        a.wait_vm(T["pA0"])
        vm0 = a.vm
        a(f"""
        v_cmp_ne_u32 vcc, s28, v254
        s_mov_b32 s42, 0
        s_cmp_ge_u32 s31, 28
        s_cbranch_scc1 L_ada
        s_cbranch_vccnz L_ada
        s_mov_b32 s42, 1
        """)
        emit(h_dma(0) + h_dma(1))
        stamp(a, "adaA")
        a("L_ada:")
        a.vm = vm0
    a(PAL); T["pA"] = a.vm
    a(f"""
    v_mov_b32 v16, v242
    v_xor_b32 v17, 64, v242
    v_add_u32 v18, 0x20000, v16
    v_add_u32 v19, 0x20000, v17
    """)
    HOLD = OPT.get("hold", 0)
    stsB = cepi(CB, 1, HOLD) or []
    T["hB"] = a.vm
    stamp(a, "epiB")
    epoch = f"""s_cmp_lg_u32 s2, 0
            s_cbranch_scc1 L_noep@
            s_add_u32 s4, s6, 1
            v_mov_b32 v2, s4
            v_mov_b32 v9, {EPOCH:#x}
            buffer_store_dword v2, v9, s[8:11], 0 offen sc1
            L_noep@:"""
    a(f"""
    s_cmp_ge_u32 s31, 28
    s_cbranch_scc1 L_sp
    """)
    vm_sp, lg_sp = a.vm, a.lg
    Tsp = dict(T)
    RING = list(range(64, 96, 4)) + list(range(212, 236, 4)) + list(range(196, 212, 4))
    A2 = 32
    PRA = OPT.get("pra", 8)
    PCA1 = "buffer_load_dword v254, v245, s[8:11], s38 offen sc1"
    PCB1 = "buffer_load_dword v254, v245, s[8:11], s39 offen sc1"
    PCAL = f"s_mov_b64 exec, 0x3fff\n{PCA1}\ns_mov_b64 exec, -1"
    g2s = f"""
        s_lshr_b32 s40, s87, 1
        s_lshl_b32 s40, s40, 11
        s_add_u32 s38, s40, {FCX[0]:#x}
        s_add_u32 s39, s40, {FCX[1]:#x}
        v_lshlrev_b32 v245, {OPT.get("fsc", 5)}, v1
        s_lshr_b32 s41, s3, 1
        s_lshl_b32 s40, s41, 8
        v_xor_b32 v249, s40, v3
        s_mul_i32 s43, s87, {112*1024}
        s_mul_i32 s40, s3, {28*1024}
        s_add_u32 s43, s43, s40
        s_add_u32 s43, s43, {HF:#x}
        s_add_u32 s35, s43, {28*1024}
        s_lshl_b32 s40, s37, 12
        s_add_u32 s43, s43, s40
        v_and_b32 v246, 31, v1
        s_lshl_b32 s40, s69, 5
        v_add_u32 v246, s40, v246
        v_mul_u32_u24 v247, {RS}, v246
        v_lshl_add_u32 v247, v6, 4, v247
        s_lshl_b32 s44, s87, 6
        s_lshl_b32 s40, s41, 5
        s_add_u32 s44, s44, s40
        s_add_u32 s44, s44, {HT:#x}
        v_lshlrev_b32 v246, 1, v246
        v_lshl_add_u32 v248, v6, 12, v246
        s_lshl_b32 s45, s87, 15
        s_lshl_b32 s40, s41, 14
        s_add_u32 s45, s45, s40
        s_add_u32 s46, s45, 8192
        s_mul_i32 s40, s3, 6144
        v_add_u32 v12, s40, v3
        """
    for pl in (1, 2, 3):
        g2s += f"""
        s_xor_b32 s40, s3, {pl}
        s_mul_i32 s40, s40, 6144
        s_add_u32 s40, s40, {(pl-1)*2048}
        v_add_u32 v{12+pl}, s40, v3
        """
    g2s = [x.strip() for x in g2s.split("\n") if x.strip()]
    def g2setup(): emit(g2s)
    RESA = "buffer_load_dwordx4 v[176:179], v247, s[8:11], s44 offen sc1\nglobal_load_ushort v251, v246, s[58:59]"
    RESB = "buffer_load_dwordx4 v[180:183], v247, s[8:11], s44 offen offset:2048 sc1"
    if OPT.get("uni", 0) or OPT.get("adp", 0): RESA = RESB + "\n" + RESA
    def hload(s):
        L = [f"buffer_load_dwordx4 {vr(RING[s % len(RING)],4)}, v249, s[8:11], s43 offen offset:{(s%4)*1024} sc1", tokv(("H", s))]
        if s % 4 == 3: L.append(adv(43, 4096, 35, 28*1024))
        return L
    GA = [64, 96]; FR = [32, 40, 48, 56]
    PBL = "buffer_load_dword v254, v250, s[8:11], s86 offen sc1"
    def st_loads(X): return [f"buffer_load_dwordx4 {vr(160+8*X+4*q,4)}, v10, s[8:11], s{91+X} offen offset:{512*q} sc1" for q in range(2)]
    def hg(X, g): return h_dma(g) + [tokv(f"h{X}{g}")]
    su = f"""
    s_lshl_b32 s4, s66, 7
    s_add_u32 s90, s90, s4
    s_add_u32 s34, s90, {128*RS}
    s_mul_i32 s4, s36, {32*RS}
    s_add_u32 s90, s90, s4
    s_lshl_b32 s5, s67, 6
    v_lshl_add_u32 v25, v6, 3, s5
    v_and_b32 v10, 31, v1
    v_lshlrev_b32 v10, 4, v10
    s_lshl_b32 s91, s66, 10
    s_add_u32 s91, s91, {ST2:#x}
    s_add_u32 s92, s91, 16384
    s_mul_i32 s74, s66, {2*112*1024}
    s_lshl_b32 s5, s67, 11
    s_add_u32 s74, s74, s5
    s_add_u32 s74, s74, {HF:#x}
    s_add_u32 s75, s74, {112*1024}
    s_lshl_b32 s93, s66, 11
    s_lshl_b32 s5, s7, {OPT.get("fsc", 5)}
    s_add_u32 s93, s93, s5
    s_add_u32 s94, s93, {FCX[1]:#x}
    s_add_u32 s93, s93, {FCX[0]:#x}
    """
    su = [x.strip() for x in su.split("\n") if x.strip()]
    if ADA: su = su[5:]
    CKA = OPT.get("cka", 6)
    qt = FQ(sum((w1_tr(sg) + [tokl(("w", sg))] for sg in range(8, 32)), []), 0, 2.5)
    qs_ = FQ(su, 0, 2.5)
    qs2 = FQ(blkGd, CKA + 1, 2.0)
    b1l = [f"global_load_dwordx2 {vr(160+2*g,2)}, v25, s[54:55] offset:{16*g}" for g in range(4)]
    if HOLD == 1: lst = hg(0, 0) + hg(0, 1) + stsB + [tokv("hB")]
    elif HOLD == 2: lst = hg(0, 0) + stsB + [tokv("hB")] + hg(0, 1)
    else: lst = [] if ADA else hg(0, 0) + hg(0, 1)
    if HOLD: T.pop("hB")
    qd = FQ(lst + b1l + [tokv("b1")], CKA, OPT.get("wdr", 100) / 100)
    fbl = [waitv("hB"), "s_barrier", flag_store(83, epoch.replace("@", "1")), lambda: stamp(a, "flagB")]
    qf = FQ([] if HOLD else fbl, OPT.get("fb", 20))
    NCW = OPT.get("ncw", 32)
    def csum(sg): return f"v_mfma_f32_32x32x16_bf16 v[128:143], {ar(4*sg,4)}, v[20:23], {'0' if sg == 0 else 'v[128:143]'}"
    for sg in range(NCW):
        if sg == CKA:
            qs_.flush()
            if ADA:
                a("s_cmp_lg_u32 s42, 0\ns_cbranch_scc1 L_ada2")
                check1("L_pA", "pA", 254, PAL); stamp(a, "okA")
                emit(hg(0, 0) + hg(0, 1))
                a("L_ada2:")
                T["hB"] = a.vm
            else:
                check1("L_pA", "pA", 254, PAL); stamp(a, "okA")
        if sg >= 8:
            while ("w", sg) not in T: qt.step(0, True)
            a.wait_lg(T[("w", sg)])
        a(csum(sg)); cur[0] += 1
        for q in (qt, qs_, qd, qf, qs2): q.step(sg)
    flush_all([qt, qd, qf, qs2])
    for sg in range(8, 32): T.pop(("w", sg))
    def g1(X, queues, after_first=None, hooks={}):
        tk = {}
        def rd(sg, q):
            j = sg >> 3
            for hf in range(2):
                a(f"ds_read_b64_tr_b16 {vr(FR[sg%4]+4*q+2*hf,2)}, v{16+2*(j&1)+q} offset:{(j>>1)*16384+(sg&7)*2048+hf*512}")
            tk[(sg, q)] = a.lg
        a.wait_vm(T[f"h{X}0"], " lgkmcnt(0)"); a("s_barrier")
        if after_first: after_first()
        stamp(a, f"g1{'AB'[X]}a")
        for sg in range(2):
            for q in range(2): rd(sg, q)
        for sg in range(32):
            if sg % 8 == 6 and sg < 30:
                a.wait_vm(T[f"h{X}{sg//8+1}"])
                a("s_barrier")
            if OPT.get("fine") and sg % 4 == 0 and sg: stamp(a, f"{'AB'[X]}{sg}")
            if sg in hooks: hooks[sg]()
            for q in range(2):
                n = 2 * sg + q
                a.wait_lg(tk[(sg, q)])
                acc = vr(GA[X] + 16 * q, 16)
                a(f"v_mfma_f32_32x32x16_bf16 {acc}, {ar(4*sg,4)}, {vr(FR[sg%4]+4*q,4)}, {'0' if sg == 0 else acc}")
                if sg + 2 < 32: rd(sg + 2, q)
                cur[0] += 1
                for qq in queues: qq.step(n)
        flush_all(queues)
        cur[0] += 20
        stamp(a, f"g1{'AB'[X]}b")
    def epi_pk(X, obase, late=False):
        sts = []
        for q in range(2):
            stt = 160 + 8 * X + 4 * q
            A = GA[X] + 16 * q
            for hf in range(2):
                ks = range(8 * hf, 8 * hf + 8, 2)
                for k in ks: a(f"v_pk_fma_f32 {vr(A+k,2)}, {vr(A+k,2)}, {vr(stt,2)}, {vr(144+k,2)} op_sel:[0,1,0] op_sel_hi:[1,1,1]")
                for k in ks: a(f"v_pk_fma_f32 {vr(A+k,2)}, {vr(128+k,2)}, {vr(stt,2)}, {vr(A+k,2)} op_sel_hi:[1,0,1]")
                for k in range(8 * hf, 8 * hf + 8): a(f"v_max_f32 v{A+k}, 0, v{A+k}")
                for k in ks: a(f"v_pk_mul_f32 {vr(A+k,2)}, {vr(A+k,2)}, {vr(A+k,2)}")
                o = obase + 8 * q + 4 * hf
                for k in range(4): a(f"v_cvt_pk_bf16_f32 v{o+k}, v{A+8*hf+2*k}, v{A+8*hf+2*k+1}")
                sts.append(f"buffer_store_dwordx4 {vr(o,4)}, v3, s[8:11], s{74+q} offen offset:{1024*hf} sc1")
                if not late: a(sts.pop())
        return sts
    INB = OPT.get("inb", 0)
    def hkB():
        check1("L_pB", "pB", 254, PBL); stamp(a, "okB")
    NWA = OPT.get("nwa", 3 + EARLY)
    TD = OPT.get("td", 14)
    NTA = OPT.get("nta", 1 + EARLY)
    qd = FQ(hg(0, 2) + hg(0, 3) + ["s_add_u32 s90, s90, 2048\ns_add_u32 s34, s34, 2048"]
            + sum((w2_dma(i) + [tokv(f"r{i}")] for i in range(EARLY, NWA)), [])
            + ([INB, Dep("pB"), hkB] + hg(1, 0) + hg(1, 1) if INB else []), start=0, rate=OPT.get("dr", 100) / 100)
    b1u = []
    for g in range(4):
        for k in range(2):
            b1u += [f"v_lshlrev_b32 v{144+4*g+2*k}, 16, v{160+2*g+k}", f"v_and_b32 v{144+4*g+2*k+1}, 0xffff0000, v{160+2*g+k}"]
    qg = FQ(g2s, start=4, rate=1.0)
    qt = FQ([waitv("b1")] + b1u + sum(([Dep(f"r{i}", TD + 6), waitv(f"r{i}")] + w2_tr(i) + [tokl(f"t{i}")] for i in range(EARLY, NTA)), []), start=14, rate=2.0)
    qp = FQ([PBL, tokv("pB"), OPT.get("sal", 0)] + st_loads(0) + [tokv("sA")], start=OPT.get("pbl", 48))
    qfb = FQ(fbl if HOLD else [], OPT.get("fb2", 10))
    g1(0, [qfb, qp, qd, qt, qg])
    for sg in range(NCW, 32): a(csum(sg))
    if not INB:
        hkB()
        emit(hg(1, 0))
    check2("L_sA", "sA", 162, 166, st_loads(0))
    stamp(a, "stA")
    HB4 = OPT.get("hb4", 0)
    stsA = []
    if HB4 == 1:
        a("s_barrier")
        a.set_bg(hg(1, 1) + hg(1, 2) + hg(1, 3), OPT.get("eas", 5))
        sts = epi_pk(0, 196, True)
        a.flush_bg(); emit(sts)
        T["HA"] = a.vm
    elif HB4 == 2:
        a.set_bg(hg(1, 1), OPT.get("eas", 8))
        stsA = epi_pk(0, 196, True) + [tokv("HA")]
        a.flush_bg()
    elif HB4 == 3:
        a("s_barrier")
        a.set_bg(hg(1, 2) + hg(1, 3), OPT.get("eas", 7))
        sts = epi_pk(0, 196, True)
        a.flush_bg(); emit(sts)
        T["HA"] = a.vm
    else:
        if not INB: a.set_bg(h_dma(1)[:5] + [tokv("h11")] + h_dma(1)[5:], OPT.get("eas", 4))
        epi_pk(0, 196)
        assert not a.bg
        T["HA"] = a.vm
    stamp(a, "epi1A")
    FCA = OPT.get("fca", 18)
    qe = FQ([FCA, waitv("HA"), "s_barrier", flag_store(93), lambda: stamp(a, "flagCA")], start=1)
    NWB = OPT.get("nwb", 6)
    items = ([] if HB4 in (1, 3) else hg(1, 2) + hg(1, 3)) + stsA + [OPT.get("q1b", 14), RESA, tokv("res")]
    for i in range(NWA, NWB):
        if i >= 3: items += [Dep(f"t{i-3}", 3), waitl(f"t{i-3}")]
        items += w2_dma(i) + [tokv(f"r{i}")]
    qd = FQ(items, start=0, rate=OPT.get("dr2", 110) / 100)
    items = []
    for i in range(NTA, min(4, NWB)):
        items += [Dep(f"r{i}", TD), waitv(f"r{i}")] + w2_tr(i) + [tokl(f"t{i}")]
    qt = FQ(items, start=0, rate=2.0)
    qs = FQ(st_loads(1) + [tokv("sB"), PCAL, tokv("pCA")], start=OPT.get("sbl", 50), rate=3)
    g1(1, [qe, qt, qs, qd])
    PR0 = OPT.get("pr0", 0)
    if PR0:
        check1("L_pCA", "pCA", 254, PCA1, mask=0x3fff); stamp(a, "okCA")
        for s in range(PR0): emit(hload(s))
    check2("L_sB", "sB", 170, 174, st_loads(1))
    a(f"s_add_u32 s74, s74, {32*112*1024}\ns_add_u32 s75, s75, {32*112*1024}")
    PR1 = OPT.get("pr1", 0)
    if PR1:
        a.set_bg(sum((hload(s) for s in range(PR0, PR0 + PR1)), []), OPT.get("prs", 6))
        sts = epi_pk(1, 16, True)
        a.flush_bg(); emit(sts)
        PR0 += PR1
    else:
        epi_pk(1, 16)
    T["HB"] = a.vm
    stamp(a, "epi1B")
    if not OPT.get("pr0", 0):
        check1("L_pCA", "pCA", 254, PCA1, mask=0x3fff); stamp(a, "okCA")
    for s in range(PR0, PRA): emit(hload(s))
    a("s_mov_b32 s81, s3")
    a("s_branch L_join")
    vm_j, lg_j = a.vm, a.lg
    Tsave = dict(T)
    a.label("L_sp")
    a.vm, a.lg = vm_sp, lg_sp; a.lg_done = lg_sp
    a(f"""
    v_lshrrev_b32 v9, 2, v1
    v_mul_u32_u24 v9, {RS}, v9
    v_lshl_add_u32 v36, v7, 4, v9
    v_add_u32 v37, {16*RS-1024}, v36
    v_add_u32 v38, {2*(16*RS-1024)}, v36
    v_add_u32 v39, {3*(16*RS-1024)}, v36
    s_lshl_b32 s4, s30, 2
    s_add_u32 s4, s4, s31
    s_sub_u32 s4, s4, 28
    s_lshl_b32 s5, s4, 6
    s_add_u32 s90, s90, s5
    s_add_u32 m0, s89, 32768
    """)
    T.clear(); T.update(Tsp)
    emit(stsB)
    check1("L_pA2", "pA", 254, PAL)
    stamp(a, "spokA")
    emit(dma_seq(8, 36, 8, 90, 16 * RS, flags="sc1"))
    a(f"""
    v_lshl_add_u32 v11, v4, 3, v8
    v_lshlrev_b32 v11, 6, v11
    v_lshl_add_u32 v11, v7, 3, v11
    s_lshl_b32 s5, s80, 5
    v_add_u32 v11, s5, v11
    s_lshl_b32 s91, s4, 9
    s_lshl_b32 s5, s80, 8
    s_add_u32 s91, s91, s5
    s_add_u32 s91, s91, {ST2:#x}
    s_add_u32 s92, s91, 16384
    v_lshlrev_b32 v10, 4, v5
    v_cmp_eq_u32 s[74:75], 1, v7
    v_cmp_eq_u32 s[76:77], 2, v7
    v_cmp_eq_u32 s[78:79], 3, v7
    """)
    def sp_stats(X, base):
        tks = []
        def mf(s2):
            a.wait_lg(tks[s2])
            a(f"v_mfma_f32_16x16x32_bf16 v[24:27], {vr(64+4*s2,4)}, {vr(64+4*s2,4)}, {'0' if s2==0 else 'v[24:27]'}")
            a(f"v_mfma_f32_16x16x32_bf16 v[28:31], v[20:23], {vr(64+4*s2,4)}, {'0' if s2==0 else 'v[28:31]'}")
        for s in range(16):
            a(f"ds_read_b64_tr_b16 {vr(64+4*s,2)}, v11 offset:{base+s*2048}")
            a(f"ds_read_b64_tr_b16 {vr(66+4*s,2)}, v11 offset:{base+s*2048+256}"); tks.append(a.lg)
            if s >= 6: mf(s - 6)
        for s2 in range(10, 16): mf(s2)
        a(f"""
        v_cndmask_b32 v24, v24, v25, s[74:75]
        v_cndmask_b32 v24, v24, v26, s[76:77]
        v_cndmask_b32 v24, v24, v27, s[78:79]
        """)
        row_stats(a, 28, 24, 32, 33, 25)
        a(f"""
        v_mul_f32 v32, -v32, v33
        v_mov_b32 v34, s28
        v_mov_b32 v35, s28
        s_cmp_ge_u32 s3, 2
        s_cbranch_scc1 L_sps{X}
        s_mov_b32 exec_lo, 0x00F0000F
        s_mov_b32 exec_hi, 0xF0000F00
        buffer_store_dwordx4 v[32:35], v10, s[8:11], s{91+X} offen sc1
        s_mov_b64 exec, -1
        L_sps{X}:
        """)
        stamp(a, f"sp{'AB'[X]}")
    emit(blkGd)
    a("s_waitcnt vmcnt(8)\ns_barrier")
    flag_store(83)()
    a("s_waitcnt vmcnt(0)\ns_barrier")
    stamp(a, "spldA")
    sp_stats(0, 32768)
    a(PBL); T["pB"] = a.vm
    check1("L_pB2", "pB", 254, PBL)
    stamp(a, "spokB")
    a(f"s_add_u32 s90, s90, {2048 - 128*RS}\ns_mov_b32 m0, s89")
    emit(dma_seq(8, 36, 8, 90, 16 * RS, flags="sc1"))
    if EARLY:
        a("s_waitcnt vmcnt(0)\ns_barrier")
        sp_stats(1, 0)
        emit(w2_dma(1) + w2_dma(2) + w2_dma(3))
    else:
        emit(w2_dma(0))
        a("s_waitcnt vmcnt(8)\ns_barrier")
        sp_stats(1, 0)
        emit(w2_dma(1) + w2_dma(2))
        a("s_waitcnt vmcnt(16)")
        emit(w2_tr(0))
        a("s_waitcnt lgkmcnt(0)")
        emit(w2_dma(3))
    a("s_waitcnt vmcnt(0)")
    emit(w2_tr(1) + w2_tr(2) + w2_tr(3))
    a("s_waitcnt lgkmcnt(0)")
    for i in range(4, NWB): emit(w2_dma(i))
    g2setup()
    a(RESA)
    a(PCAL); T["pCA"] = a.vm
    check1("L_pCA2", "pCA", 254, PCA1, mask=0x3fff)
    a("s_barrier\ns_mov_b32 s81, 1")
    for s in range(PRA): emit(hload(s))
    if PR0: a(f"s_waitcnt vmcnt({PRA-PR0})")
    T.clear(); T.update(Tsave)
    a.label("L_join")
    a.vm, a.lg = vm_j, lg_j; a.lg_done = 0
    a.wait_vm(T["res"])
    a("v_lshlrev_b32 v251, 16, v251")
    def g2(X, pre, queues):
        a(f"v_permlane32_swap_b32 v{176+4*X}, v{178+4*X}\nv_permlane32_swap_b32 v{177+4*X}, v{179+4*X}")
        for k in range(4):
            r = 176 + 4 * X + k
            a(f"v_lshlrev_b32 v{A2+2*k}, 16, v{r}\nv_and_b32 v{A2+2*k+1}, 0xffff0000, v{r}")
        for k in range(8): a(f"v_add_f32 v{A2+k}, v{A2+k}, v251")
        for k in range(8, 16): a(f"v_mov_b32 v{A2+k}, 0")
        ql = FQ(sum((hload(s) for s in range(pre, 28)), []), 0, OPT.get("hr", 70) / 100)
        for s in range(28):
            b = vr(RING[s % len(RING)], 4)
            while ("H", s) not in T: ql.step(0, True)
            a.wait_vm(T.pop(("H", s)))
            if X == 0 and s % 4 == 0 and s >= 16:
                while f"t{s//4}" not in T:
                    for qq in queues[:2]: qq.step(0, True)
                a.wait_lg(T[f"t{s//4}"])
            for dl in (1, 0):
                acc = vr(A2 + 16 * dl, 16)
                a(f"v_mfma_f32_32x32x16_bf16 {acc}, {b}, {ar(W2A(s)+4*dl,4)}, {'0' if (s == 0 and dl == 1) else acc}")
                n = 2 * s + 1 - dl
                if ql.items and sum(1 for k in T if isinstance(k, tuple)) < len(RING) - 2: ql.step(n)
                cur[0] += 1
                for qq in queues: qq.step(n)
            if s == 0: stamp(a, f"g2{'AB'[X]}a")
        for qq in queues: qq.flush()
        stamp(a, f"g2{'AB'[X]}b")
    def tail(X, mid=None, A2=A2):
        off = 131072 * X
        if X:
            for k in range(4): a(f"v_add_u32 v{12+k}, 0x20000, v{12+k}")
        for pl in (1, 3, 2):
            src = A2 + 16 * (pl & 1) + 8 * (pl >> 1)
            for k in range(2): a(f"ds_write_b128 v{12+pl}, {vr(src+4*k,4)} offset:{1024*k}")
        a("s_waitcnt lgkmcnt(0)\ns_barrier")
        for k in range(2):
            for sl in range(3): a(f"ds_read_b128 {vr(96+8*sl+4*k,4)}, v12 offset:{2048*sl+1024*k}")
        if mid: mid()
        for k in range(2):
            a(f"s_waitcnt lgkmcnt({3-3*k})")
            for j in (0, 2):
                r = 4 * k + j
                a(f"v_pk_add_f32 {vr(96+r,2)}, {vr(96+r,2)}, {vr(104+r,2)}")
                a(f"v_pk_add_f32 {vr(120+r,2)}, {vr(A2+r,2)}, {vr(112+r,2)}")
            for j in (0, 2):
                r = 4 * k + j
                a(f"v_pk_add_f32 {vr(120+r,2)}, {vr(120+r,2)}, {vr(96+r,2)}")
            for j in (0, 2):
                r = 4 * k + j
                a(f"v_cvt_pk_bf16_f32 v{120+r}, v{120+r}, v{121+r}")
            for j in (0, 2):
                r = 4 * k + j
                a(f"buffer_store_short v{120+r}, v248, s[24:27], s{45+k} offen offset:{1024*j}")
                a(f"buffer_store_short_d16_hi v{120+r}, v248, s[24:27], s{45+k} offen offset:{1024*(j+1)}")
    items = []
    for i in range(NWB, 7): items += [waitl(f"t{i-3}")] + w2_dma(i) + [tokv(f"r{i}")]
    qd = FQ(items, start=0, rate=1.5)
    qd.flush(); cur[0] += 8
    NT2 = min(OPT.get("nt2", 3), NWB - 4)
    for i in range(4, 4 + NT2):
        assert i < NWB
        a.wait_vm(T[f"r{i}"]); emit(w2_tr(i)); settok(f"t{i}", a.lg)
    items = []
    for i in range(4 + NT2, 7):
        items += [Dep(f"r{i}", TD), waitv(f"r{i}")] + w2_tr(i) + [tokl(f"t{i}")]
    qt = FQ(items, start=1, rate=2.0)
    pcb = f"s_mov_b64 exec, 0x3fff\n{PCB1}\ns_mov_b64 exec, -1"
    if OPT.get("adp", 0):
        AX = [32, 128]
        CK = OPT.get("adp")
        def init(X):
            A = AX[X]
            L = [f"v_permlane32_swap_b32 v{176+4*X}, v{178+4*X}", f"v_permlane32_swap_b32 v{177+4*X}, v{179+4*X}"]
            for k in range(4):
                r = 176 + 4 * X + k
                L += [f"v_lshlrev_b32 v{A+2*k}, 16, v{r}", f"v_and_b32 v{A+2*k+1}, 0xffff0000, v{r}"]
            L += [f"v_add_f32 v{A+k}, v{A+k}, v251" for k in range(8)] + [f"v_mov_b32 v{A+k}, 0" for k in range(8, 16)]
            return L
        def steps(s0, s1, ql, queues, bur=0):
            for s in range(s0, s1):
                X, sk = s // 28, s % 28
                bb = vr(RING[s % len(RING)], 4)
                while ("H", s) not in T: ql.step(0, True)
                a.wait_vm(T.pop(("H", s)))
                if X == 0 and s % 4 == 0 and s >= 16:
                    while f"t{s//4}" not in T: qt.step(0, True)
                    a.wait_lg(T[f"t{s//4}"])
                for dl in (1, 0):
                    acc = vr(AX[X] + 16 * dl, 16)
                    a(f"v_mfma_f32_32x32x16_bf16 {acc}, {bb}, {ar(W2A(sk)+4*dl,4)}, {'0' if (sk == 0 and dl == 1) else acc}")
                    n = 2 * s + 1 - dl
                    cur[0] += 1
                    if ql.items and sum(1 for k in T if isinstance(k, tuple)) < len(RING) - 3: ql.step(n)
                    for qq in queues: qq.step(n)
                if sk == 0: stamp(a, f"g2{'AB'[X]}a")
                if sk == 27: stamp(a, f"g2{'AB'[X]}b")
        emit(init(0))
        ql = FQ(sum((hload(s) for s in range(PRA, 28)), []), 0, OPT.get("hr", 70) / 100)
        qf = FQ([waitv("HB"), "s_barrier", flag_store(94, creg=81), lambda: stamp(a, "flagCB"), 2 * CK - OPT.get("pcd", 8), pcb, tokv("pCB0")], start=0)
        steps(0, CK, ql, [qf, qt])
        ql.flush(); qt.flush(); qf.flush()
        offB = f"s_add_u32 s43, s43, {32*112*1024}\ns_add_u32 s35, s35, {32*112*1024}"
        a.wait_vm(T["pCB0"])
        a(f"""
        {offB}
        s_mov_b64 exec, 0x3fff
        v_cmp_ne_u32 vcc, s28, v254
        s_mov_b64 exec, -1
        s_cbranch_vccz L_fast
        """)
        snap = (dict(T), dict(TS_), a.vm, a.lg, a.lg_done, cur[0], list(a.hist))
        qe_ = FQ(init(1) + [OPT.get("pcb", 50), pcb, tokv("pCB")], 0, 3.0)
        steps(CK, 28, FQ([]), [qe_]); qe_.flush()
        PRB = OPT.get("prb", 8)
        def mid():
            check1("L_pCB", "pCB", 254, PCB1, mask=0x3fff)
            stamp(a, "okCB")
            for s in range(28, 28 + PRB): emit(hload(s))
        tail(0, mid)
        stamp(a, "tailA")
        a(f"s_add_u32 s45, s45, {1024*1024}\ns_add_u32 s46, s46, {1024*1024}")
        steps(28, 56, FQ(sum((hload(s) for s in range(28 + PRB, 56)), []), 0, OPT.get("hr", 70) / 100), [])
        a("s_branch L_fin")
        a.label("L_fast")
        T.clear(); T.update(snap[0]); TS_.clear(); TS_.update(snap[1]); a.vm, a.lg, a.lg_done, cur[0] = snap[2:6]; a.hist = snap[6]
        stamp(a, "fast")
        for s in range(28, 28 + OPT.get("bur", 4)): emit(hload(s))
        tl = [59]
        for pl in (1, 3, 2):
            src = 32 + 16 * (pl & 1) + 8 * (pl >> 1)
            for k in range(2): tl += [f"ds_write_b128 v{12+pl}, {vr(src+4*k,4)} offset:{1024*k}", "s_nop 0", "s_nop 0"]
        tl += [tokl("tw"), Dep("tw", 3), waitl("tw"), "s_barrier"]
        for k in range(2):
            for sl in range(3): tl.append(f"ds_read_b128 {vr(96+8*sl+4*k,4)}, v12 offset:{2048*sl+1024*k}")
        tl += [tokl("tr"), Dep("tr", 4), waitl("tr")]
        for r in range(8):
            tl += [f"v_add_f32 v{96+r}, v{96+r}, v{104+r}", f"v_add_f32 v{120+r}, v{32+r}, v{112+r}", f"v_add_f32 v{120+r}, v{120+r}, v{96+r}"]
            if r % 2: tl.append(f"v_cvt_pk_bf16_f32 v{119+r}, v{119+r}, v{120+r}")
        tl.append(OPT.get("tst", 92))
        for r in (1, 3, 5, 7):
            tl += [f"buffer_store_short v{119+r}, v248, s[24:27], s{45+r//4} offen offset:{1024*((r-1)%4)}",
                   f"buffer_store_short_d16_hi v{119+r}, v248, s[24:27], s{45+r//4} offen offset:{1024*(r%4)}"]
        tl += [f"s_add_u32 s45, s45, {1024*1024}", f"s_add_u32 s46, s46, {1024*1024}"]
        qtl = FQ(tl, 0, 3.0)
        ql2 = FQ(sum((hload(s) for s in range(28 + OPT.get("bur", 4), 56)), []), 0, OPT.get("hr2", 80) / 100)
        qi = FQ(init(1), 0, 3.0)
        steps(CK, 28, ql2, [qi]); qi.flush()
        steps(28, 56, ql2, [qtl])
        assert not qtl.items
        a.label("L_fin")
        tail(1, None, 128)
    elif OPT.get("uni", 0):
        AX = [32, 128]
        def init(X):
            A = AX[X]
            L = [f"v_permlane32_swap_b32 v{176+4*X}, v{178+4*X}", f"v_permlane32_swap_b32 v{177+4*X}, v{179+4*X}"]
            for k in range(4):
                r = 176 + 4 * X + k
                L += [f"v_lshlrev_b32 v{A+2*k}, 16, v{r}", f"v_and_b32 v{A+2*k+1}, 0xffff0000, v{r}"]
            L += [f"v_add_f32 v{A+k}, v{A+k}, v251" for k in range(8)] + [f"v_mov_b32 v{A+k}, 0" for k in range(8, 16)]
            return L
        emit(init(0) + init(1))
        CKB2 = OPT.get("ckcb", 42)
        def ckcb():
            check1("L_pCB", "pCB", 254, PCB1, mask=0x3fff); stamp(a, "okCB")
        qf = FQ([waitv("HB"), "s_barrier", flag_store(94, creg=81), lambda: stamp(a, "flagCB"), CKB2 - OPT.get("pcd", 10), pcb, tokv("pCB")], start=0)
        ql = FQ(sum((hload(s) for s in range(PRA, 28)), []) + [CKB2, Dep("pCB"), ckcb, f"s_add_u32 s43, s43, {32*112*1024}\ns_add_u32 s35, s35, {32*112*1024}", lambda: setattr(ql, "credit", OPT.get("bur", 4))]
                + sum((hload(s) for s in range(28, 56)), []), 0, OPT.get("hr", 70) / 100)
        tl = [59]
        for pl in (1, 3, 2):
            src = 32 + 16 * (pl & 1) + 8 * (pl >> 1)
            for k in range(2): tl += [f"ds_write_b128 v{12+pl}, {vr(src+4*k,4)} offset:{1024*k}", "s_nop 0"]
        tl += [tokl("tw"), Dep("tw", 3), waitl("tw"), "s_barrier"]
        for k in range(2):
            for sl in range(3): tl.append(f"ds_read_b128 {vr(96+8*sl+4*k,4)}, v12 offset:{2048*sl+1024*k}")
        tl += [tokl("tr"), Dep("tr", 4), waitl("tr")]
        for r in range(8):
            tl += [f"v_add_f32 v{96+r}, v{96+r}, v{104+r}", f"v_add_f32 v{120+r}, v{32+r}, v{112+r}", f"v_add_f32 v{120+r}, v{120+r}, v{96+r}"]
            if r % 2:
                tl += [f"v_cvt_pk_bf16_f32 v{119+r}, v{119+r}, v{120+r}",
                       f"buffer_store_short v{119+r}, v248, s[24:27], s{45+r//4} offen offset:{1024*((r-1)%4)}",
                       f"buffer_store_short_d16_hi v{119+r}, v248, s[24:27], s{45+r//4} offen offset:{1024*(r%4)}"]
        tl += [f"s_add_u32 s45, s45, {1024*1024}", f"s_add_u32 s46, s46, {1024*1024}", lambda: stamp(a, "tailA")]
        qtl = FQ(tl, 0, OPT.get("tlr", 20) / 10)
        for s in range(56):
            X, sk = s // 28, s % 28
            bb = vr(RING[s % len(RING)], 4)
            while ("H", s) not in T:
                qf.step(0, True); ql.step(0, True)
            a.wait_vm(T.pop(("H", s)))
            if X == 0 and s % 4 == 0 and s >= 16:
                while f"t{s//4}" not in T: qt.step(0, True)
                a.wait_lg(T[f"t{s//4}"])
            for dl in (1, 0):
                acc = vr(AX[X] + 16 * dl, 16)
                a(f"v_mfma_f32_32x32x16_bf16 {acc}, {bb}, {ar(W2A(sk)+4*dl,4)}, {'0' if (sk == 0 and dl == 1) else acc}")
                n = 2 * s + 1 - dl
                cur[0] += 1
                qf.step(n)
                if ql.items and sum(1 for k in T if isinstance(k, tuple)) < len(RING) - 2 - OPT.get("bur", 4): ql.step(n)
                qt.step(n); qtl.step(n)
            if sk == 0: stamp(a, f"g2{'AB'[X]}a")
            if sk == 27: stamp(a, f"g2{'AB'[X]}b")
        assert not qtl.items and not ql.items
        tail(1, None, 128)
    else:
        qf = FQ([waitv("HB"), "s_barrier", flag_store(94, creg=81), lambda: stamp(a, "flagCB"), OPT.get("pcb", 50), RESB, pcb, tokv("pCB")], start=OPT.get("fcb", 2 * PR0))
        g2(0, PRA, [qd, qt, qf])
        PRB = OPT.get("prb", 8)
        def mid():
            a(f"s_add_u32 s43, s43, {32*112*1024}\ns_add_u32 s35, s35, {32*112*1024}")
            check1("L_pCB", "pCB", 254, PCB1, mask=0x3fff)
            stamp(a, "okCB")
            for s in range(PRB): emit(hload(s))
        if OPT.get("cbe", 1): tail(0, mid)
        else:
            tail(0); mid()
        stamp(a, "tailA")
        a(f"s_add_u32 s45, s45, {1024*1024}\ns_add_u32 s46, s46, {1024*1024}")
        g2(1, PRB, [])
        tail(1)
    if STAMP:
        a("s_waitcnt vmcnt(0)")
        stamp(a, "end")
        a(f"""
        s_lshl_b32 s4, s2, 10
        s_add_u32 s4, s4, {TSB:#x}
        v_lshlrev_b32 v2, 2, v0
        buffer_store_dword v255, v2, s[8:11], s4 offen
        """)
    a.label("L_exit")
    a("s_endpgm")
    a.label("L_end")

def build(path, stamp_=False, as_list=False, **opt):
    global STAMP
    STAMP = stamp_
    STAMPS.clear()
    OPT.clear(); OPT.update(opt)
    hdr = open(f"cdna_kernels/{NAME}.s.ref").read().split("; Override launch")[0]
    a = Asm()
    mega(a)
    lines = []
    for l in a.lines: lines += l.split("\n")
    lines, size, fx, np_ = align_pass(lines)
    s = hdr
    if as_list: s += f"; @launch kernel={KN} grid=(256,1,1) block=(256,1,1) lds={LDS_BYTES}\n"
    else: s += f"; @launch grid=(256,1,1) block=(256,1,1) lds={LDS_BYTES}\n"
    s += '.amdgcn_target "amdgcn-amd-amdhsa--gfx950"\n.text\n'
    s += "\n".join(lines) + "\n"
    s += f""".section .rodata,"a"
.p2align 6
.amdhsa_kernel {KN}
  .amdhsa_next_free_vgpr 512
  .amdhsa_next_free_sgpr 102
  .amdhsa_accum_offset 256
  .amdhsa_group_segment_fixed_size 0
  .amdhsa_kernarg_size 136
  .amdhsa_user_sgpr_count 2
  .amdhsa_user_sgpr_kernarg_segment_ptr 1
  .amdhsa_system_sgpr_workgroup_id_x 1
.end_amdhsa_kernel
"""
    open(path, "w").write(s)
    print(path, "code bytes", size, "align fixes", fx, np_)
if __name__ == "__main__":
    import json
    if len(sys.argv) > 1:
        for spec in sys.argv[1:]:
            name, _, o = spec.partition(":")
            opt = {k: int(v) for k, v in (kv.split("=") for kv in o.split(",") if kv)}
            build(f"work/{name}.s", False, True, **opt)
            build(f"work/{name}_dbg.s", True, True, **opt)
    else:
        build("mega.s", False)
        build("mega_l.s", False, True)
        build("mega_dbg.s", True, True)
    json.dump(STAMPS, open("stamps.json", "w"))
```
